```python
import torch

def _softmax(x, axis=-1):
    return torch.softmax(x, dim=axis)
def _gelu(x):
    return torch.nn.functional.gelu(x, approximate="tanh")
def _silu(x):
    return torch.nn.functional.silu(x)
def _sigmoid(x):
    return torch.sigmoid(x)
def _layernorm(x, axis=-1, eps=1e-5):
    m = x.mean(dim=axis, keepdim=True)
    v = x.var(dim=axis, keepdim=True, unbiased=False)
    return (x - m) / torch.sqrt(v + eps)
def _scatter_add(tgt, idx, src, axis=0):
    return tgt.clone().index_add_(axis, idx, src)
def _segment_sum(src, seg, n):
    out = torch.zeros((n,) + src.shape[1:], dtype=src.dtype)
    return out.index_add_(0, seg, src)
def _pad(x, pw):
    flat = tuple(v for pair in reversed(pw) for v in pair)
    return torch.nn.functional.pad(x, flat)

kernel_name = 'gated_mix__ssm_conv_s4d__linear_kernel_hedgehog__prompt'

def setup_inputs():

    _w = (lambda a: (lambda t: t.to(torch.bfloat16) if t.is_floating_point() else t)(torch.as_tensor(a)))
    def _A_setup():
        Bsz, L, D, N = 1, 2048, 640, 128
        return {
            "u": _w((lambda *s: torch.randn(*s, dtype=torch.bfloat16) * 0.05)(Bsz, L, D)),
            "log_A_real": _w((lambda *s: torch.randn(*s, dtype=torch.bfloat16) * 6.4)(D, N) * 0.5),
            "A_imag": _w((lambda *s: torch.randn(*s, dtype=torch.bfloat16) * 0.05)(D, N) * 3.14),
            "C_real": _w((lambda *s: torch.randn(*s, dtype=torch.bfloat16) * 0.2)(D, N) / N ** 0.5),
            "C_imag": _w((lambda *s: torch.randn(*s, dtype=torch.bfloat16) * 0.2)(D, N) / N ** 0.5),
            "log_dt": _w((lambda *s: torch.randn(*s, dtype=torch.bfloat16) * 0.05)(D) * 0.5 - 4.0),
            "D_skip": _w((lambda *s: torch.randn(*s, dtype=torch.bfloat16) * 0.05)(D)),
        }
    _A_in = _A_setup()

    def _B_setup():
        B, S, D, H = 1, 2048, 640, 32
        Dh = D // H
        return {
            "x": _w((lambda *s: torch.randn(*s, dtype=torch.bfloat16) * 0.05)(B, S, D)),
            "wqkv": _w((lambda *s: torch.randn(*s, dtype=torch.bfloat16) * 0.8)(D, 3 * D)),
            "w_phi": _w((lambda *s: torch.randn(*s, dtype=torch.bfloat16) * 0.8)(H, Dh, Dh) * (Dh ** -0.5)),
            "wo": _w((lambda *s: torch.randn(*s, dtype=torch.bfloat16) * 0.05)(D, D)),
        }
    _B_in = _B_setup()

    return {
        "A_u": _A_in["u"],
        "A_log_A_real": _A_in["log_A_real"],
        "A_A_imag": _A_in["A_imag"],
        "A_C_real": _A_in["C_real"],
        "A_C_imag": _A_in["C_imag"],
        "A_log_dt": _A_in["log_dt"],
        "A_D_skip": _A_in["D_skip"],
        "B_x": _B_in["x"],
        "B_wqkv": _B_in["wqkv"],
        "B_w_phi": _B_in["w_phi"],
        "B_wo": _B_in["wo"],
        "gate_w": _w((lambda *s: torch.randn(*s, dtype=torch.bfloat16) * 0.05)(640) * 16.0),
    }

def reference(A_u, A_log_A_real, A_A_imag, A_C_real, A_C_imag, A_log_dt, A_D_skip, B_x, B_wqkv, B_w_phi, B_wo, gate_w):
    def _A_ref(u, log_A_real, A_imag, C_real, C_imag, log_dt, D_skip):
        L = u.shape[1]
        dt = torch.exp(log_dt)
        A = -torch.exp(log_A_real) + 1j * A_imag
        C = (C_real + 1j * C_imag) * dt[:, None]
        pos = (lambda x, dt: x.to(dt))(torch.arange(L), log_dt.dtype)
        P = torch.exp((A * dt[:, None])[:, :, None] * pos[None, None, :])
        K = 2.0 * torch.einsum("dn,dnl->dl", C, P).real
        L2 = 2 * L
        u_t = (lambda x, *d: x.permute(*d))(u, 0, 2, 1)
        Kf = (lambda x, *a, **k: torch.fft.rfft(x.float(), *a, **k))(K, L2)
        Uf = (lambda x, *a, **k: torch.fft.rfft(x.float(), *a, **k))(u_t, L2)
        y = (lambda x, *a, **k: torch.fft.irfft(x, *a, **k).to(torch.bfloat16))(Uf * Kf[None, :, :], L2)[:, :, :L]
        y = (lambda x, *d: x.permute(*d))(y, 0, 2, 1)
        return y + u * D_skip[None, None, :]

    def _B_ref(x, wqkv, w_phi, wo):
        B, S, D = x.shape
        H = 32; Dh = D // H
        qkv = (lambda x, *d: x.permute(*d))((x @ wqkv).reshape(B, S, 3, H, Dh), 2, 0, 3, 1, 4)
        q, k, v = qkv[0], qkv[1], qkv[2]
        pq = torch.einsum("bhsd,hdf->bhsf", q, w_phi)
        pk = torch.einsum("bhsd,hdf->bhsf", k, w_phi)
        phi_q = torch.concatenate([_softmax(pq, axis=-1), _softmax(-pq, axis=-1)], axis=-1)
        phi_k = torch.concatenate([_softmax(pk, axis=-1), _softmax(-pk, axis=-1)], axis=-1)
        kv = torch.einsum("bhsf,bhsd->bhfd", phi_k, v)
        z  = torch.einsum("bhsf->bhf", phi_k)
        num = torch.einsum("bhqf,bhfd->bhqd", phi_q, kv)
        den = torch.einsum("bhqf,bhf->bhq", phi_q, z)[..., None] + 1e-6
        o = num / den
        return (lambda x, *d: x.permute(*d))(o, 0, 2, 1, 3).reshape(B, S, D) @ wo

    x = A_u
    g = _sigmoid((x * gate_w).sum(-1, keepdims=True))
    a = _A_ref(x, A_log_A_real, A_A_imag, A_C_real, A_C_imag, A_log_dt, A_D_skip)
    b = _B_ref(x, B_wqkv, B_w_phi, B_wo)
    return g * a + (1 - g) * b
```

```python
import re

TRANS = ('v_exp_f32','v_log_f32','v_rcp_f32','v_rsq_f32','v_sqrt_f32','v_sin_f32','v_cos_f32','v_rcp_iflag_f32')

def regs_of(tok):
    tok = tok.strip()
    neg = tok.lstrip('-')
    m = re.fullmatch(r'(?:abs\()?\|?([vsa])(\d+)\|?\)?', neg)
    if m: return [(m.group(1), int(m.group(2)))]
    m = re.fullmatch(r'([vsa])\[(\d+):(\d+)\]', neg)
    if m: return [(m.group(1), i) for i in range(int(m.group(2)), int(m.group(3)) + 1)]
    if neg == 'vcc': return [('s', 'vcc_lo'), ('s', 'vcc_hi')]
    if neg in ('vcc_lo', 'vcc_hi', 'exec_lo', 'exec_hi', 'm0'): return [('s', neg)]
    if neg == 'exec': return [('s', 'exec_lo'), ('s', 'exec_hi')]
    return []

def split_ops(s):
    out = []; depth = 0; cur = ''
    for ch in s:
        if ch in '[(': depth += 1
        if ch in '])': depth -= 1
        if ch == ',' and depth == 0: out.append(cur.strip()); cur = ''
        else: cur += ch
    if cur.strip(): out.append(cur.strip())
    return out

class Ins:
    def __init__(self, text):
        self.text = text
        t = text.split(';')[0].strip()
        self.label = t.endswith(':')
        self.directive = t.startswith('.')
        self.op = t.split()[0] if t and not self.label else ''
        self.dst = []; self.src = []; self.srcC = []; self.mods = ''
        self.kind = 'other'
        if self.label or self.directive or not t: return
        rest = t[len(self.op):].strip()
        ops = split_ops(rest)
        if ops:
            parts = ops[-1].split()
            ops[-1] = parts[0]; self.mods = ' '.join(parts[1:])
        R = [regs_of(o) for o in ops]
        op = self.op
        flat = lambda L: [r for x in L for r in x]
        if op.startswith('v_mfma'):
            self.kind = 'mfma'; self.dst = R[0]; self.src = R[1] + R[2]; self.srcC = R[3]
            self.passes = 8 if '32x32' in op else (2 if '4x4' in op else 4)
        elif op.startswith('v_'):
            self.kind = 'valu'
            base = op.replace('_e32','').replace('_e64','').replace('_dpp','').replace('_sdwa','')
            self.trans = base in TRANS
            self.dpp = ('_dpp' in op) or any(k in self.mods for k in ('quad_perm','row_','wave_'))
            self.perml = base.startswith('v_permlane')
            self.rdl = base.startswith('v_readfirstlane') or base.startswith('v_readlane')
            self.dst = R[0]; self.src = flat(R[1:])
            if self.perml or base == 'v_swap_b32': self.dst = R[0] + R[1]; self.src = R[0] + R[1]
            if base in ('v_fmac_f32','v_dot2c_f32_bf16','v_pk_fmac_f16','v_writelane_b32') or self.dpp or 'sdwa' in op: self.src = self.src + R[0]
            if base in ('v_add_co_u32','v_sub_co_u32','v_addc_co_u32','v_mad_u64_u32'): self.dst = R[0] + R[1]; self.src = flat(R[2:])
            if base.startswith('v_cndmask') and len(ops) == 3: self.src += regs_of('vcc')
            self.opsel_dst = ('dst_sel' in self.mods and 'dst_sel:DWORD' not in self.mods)
        elif op.startswith('ds_'):
            self.kind = 'ds'
            if op.startswith('ds_read') or op.startswith('ds_bpermute') or op.startswith('ds_swizzle') or '_rtn' in op:
                self.dst = R[0]; self.src = flat(R[1:])
                if 'd16' in op: self.src += R[0]
            else: self.src = flat(R)
        elif op.startswith('buffer_') or op.startswith('global_'):
            self.kind = 'vmem'
            self.lds = ' lds' in (' ' + self.mods) or '_lds_' in op
            if op in ('buffer_wbl2','buffer_inv'): pass
            elif 'load' in op and not self.lds:
                self.dst = R[0]; self.src = flat(R[1:])
                if 'd16' in op: self.src += R[0]
            elif 'atomic' in op and 'sc0' in self.mods: self.dst = R[0]; self.src = flat(R)
            else: self.src = flat(R)
            if self.lds: self.src += [('s', 'm0')]
            self.wide_store = ('store' in op) and ('x4' in op or 'x3' in op)
            self.sdata = (R[0] if op.startswith('buffer_') else R[1]) if 'store' in op else []
        elif op.startswith('s_load') or op.startswith('s_buffer_load') or op.startswith('s_memtime') or op.startswith('s_memrealtime'):
            self.kind = 'smem'; self.dst = R[0]; self.src = flat(R[1:])
        elif op.startswith('s_'):
            self.kind = 'salu'
            if op.startswith('s_cmp') or op.startswith('s_cbranch') or op in ('s_branch','s_waitcnt','s_nop','s_barrier','s_endpgm','s_sleep','s_setprio','s_setpc_b64'):
                self.src = flat(R)
                if 'vcc' in op: self.src += regs_of('vcc')
            else:
                self.dst = R[0] if R else []; self.src = flat(R[1:])
                if 'saveexec' in op: self.dst = self.dst + regs_of('exec')
    def states(self):
        if self.label or self.directive or not self.op: return 0
        if self.op == 's_nop': return int(self.text.split()[1]) + 1
        return 1

def need(prod, cons):
    n = 0
    ov = lambda a, b: bool(set(a) & set(b))
    vg = lambda L: [r for r in L if r[0] in 'va']
    sg = lambda L: [r for r in L if r[0] == 's']
    if prod.kind == 'valu':
        pv = vg(prod.dst); ps = sg(prod.dst)
        if cons.kind == 'mfma' and ov(pv, cons.src + cons.srcC): n = max(n, 2)
        if cons.kind == 'valu':
            if prod.trans and not cons.trans and ov(pv, cons.src): n = max(n, 1)
            if prod.trans and cons.trans and ov(pv, cons.src): n = max(n, 1)
            if (cons.dpp or cons.perml) and ov(pv, cons.src): n = max(n, 2)
            if cons.rdl and ov(pv, cons.src): n = max(n, 1)
            if prod.opsel_dst and ov(pv, cons.src + cons.dst): n = max(n, 1)
            if ov(ps, cons.src): n = max(n, 4 if cons.rdl else 2)
        if prod.trans and cons.kind in ('ds', 'vmem') and ov(pv, cons.src): n = max(n, 1)
        if cons.kind == 'vmem' and ov(ps, cons.src): n = max(n, 5)
        if cons.kind in ('salu', 'smem') and ov(ps, cons.src): n = max(n, 1)
    if prod.kind == 'mfma':
        p = prod.passes
        if cons.kind == 'mfma':
            if ov(prod.dst, cons.src): n = max(n, {2:5,4:8,8:12}[p])
            if ov(prod.dst, cons.srcC):
                if prod.dst == cons.srcC and p == cons.passes: n = max(n, 2 if p == 2 else 0)
                else: n = max(n, {2:4,4:6,8:10}[p])
            elif ov(prod.dst, cons.dst): n = max(n, {2:5,4:8,8:12}[p])
        elif cons.kind in ('valu', 'ds', 'vmem'):
            if ov(prod.dst, cons.src + cons.dst): n = max(n, {2:5,4:8,8:12}[p])
            if ov(prod.srcC, cons.dst): n = max(n, {2:1,4:3,8:7}[p])
    if prod.kind == 'salu' and ('s', 'm0') in prod.dst and cons.kind in ('vmem','ds') and ('s', 'm0') in cons.src: n = max(n, 1)
    if prod.kind == 'vmem' and getattr(prod, 'wide_store', False) and ov(prod.sdata, cons.dst): n = max(n, 2)
    return n

class Asm:
    def __init__(self):
        self.ins = []
        self.lg = []
        self.vm = []
        self.nops = 0
        self.auto = True
        self.uid = 0
    def raw(self, text): self.ins.append(Ins(text))
    def label(self, name):
        self.raw(name + ':')
    def newlabel(self, base):
        self.uid += 1; return f'{base}_{self.uid}'
    def comment(self, t): self.raw('; ' + t)
    def forget(self):
        self.lg = []; self.vm = []
    def _apply_wait(self, vm=None, lg=None):
        if vm is not None: self.vm = self.vm[len(self.vm) - vm:] if vm < len(self.vm) and vm > 0 else ([] if vm == 0 else self.vm)
        if lg is not None: self.lg = self.lg[len(self.lg) - lg:] if lg < len(self.lg) and lg > 0 else ([] if lg == 0 else self.lg)
    def wait(self, vm=None, lg=None):
        s = 's_waitcnt'
        if vm is not None: s += f' vmcnt({vm})'
        if lg is not None: s += f' lgkmcnt({lg})'
        self._apply_wait(vm, lg)
        self.ins.append(Ins(s))
    def __call__(self, text):
        for line in text.split('\n'):
            line = line.strip()
            if not line: continue
            self.emit(line)
    def emit(self, line):
        i = Ins(line)
        if i.label or i.directive or not i.op:
            self.ins.append(i); return
        if i.op == 's_waitcnt':
            vm = re.search(r'vmcnt\((\d+)\)', line); lg = re.search(r'lgkmcnt\((\d+)\)', line)
            self._apply_wait(int(vm.group(1)) if vm else None, int(lg.group(1)) if lg else None)
            self.ins.append(i); return
        touched = set(i.src + i.srcC + i.dst)
        if self.auto:
            wv = wl = None
            for k in range(len(self.vm) - 1, -1, -1):
                if touched & set(self.vm[k]): wv = len(self.vm) - 1 - k; break
            for k in range(len(self.lg) - 1, -1, -1):
                if touched & set(self.lg[k][1]):
                    wl = len(self.lg) - 1 - k
                    if any(x[0] == 'smem' for x in self.lg): wl = 0
                    break
            if wv is not None: wv = min(wv, 63)
            if wl is not None: wl = min(wl, 15)
            if wv is not None or wl is not None: self.wait(wv, wl)
        dist = 0; req = 0
        for p in reversed(self.ins):
            if dist >= 20: break
            if p.op: req = max(req, need(p, i) - dist)
            dist += p.states()
        if req > 0:
            self.nops += req
            self.ins.append(Ins(f's_nop {req - 1}'))
        self.ins.append(i)
        if i.kind == 'ds': self.lg.append(('ds', i.dst))
        elif i.kind == 'smem': self.lg.append(('smem', i.dst))
        elif i.kind == 'vmem': self.vm.append(i.dst)
    def text(self):
        out = []
        for i in self.ins:
            out.append(i.text if (i.label or i.directive) else '    ' + i.text)
        return '\n'.join(out) + '\n'

def vr(a, n=1): return f'v{a}' if n == 1 else f'v[{a}:{a+n-1}]'
def sr(a, n=1): return f's{a}' if n == 1 else f's[{a}:{a+n-1}]'

def interleave(*streams):
    streams = [list(s) for s in streams if s]
    tot = [len(s) for s in streams]; pos = [0] * len(streams); out = []
    while any(pos[k] < tot[k] for k in range(len(streams))):
        k = min((k for k in range(len(streams)) if pos[k] < tot[k]), key=lambda k: (pos[k] + 0.5) / tot[k])
        out.append(streams[k][pos[k]]); pos[k] += 1
    return out

def header(launches):
    s = ''
    for (name, grid, block, lds) in launches:
        s += f'; @launch kernel={name} grid=({grid},1,1) block=({block},1,1) lds={lds}\n'
    s += '.amdgcn_target "amdgcn-amd-amdhsa--gfx950"\n.text\n'
    return s
def kbegin(name): return f'.globl {name}\n.p2align 8\n.type {name},@function\n{name}:\n'
def kdesc(name, vgpr, sgpr=102, accum=None):
    if accum is None: accum = (min(vgpr, 256) + 3) // 4 * 4
    return f'''.section .rodata,"a"
.p2align 6
.amdhsa_kernel {name}
  .amdhsa_next_free_vgpr {vgpr}
  .amdhsa_next_free_sgpr {sgpr}
  .amdhsa_accum_offset {accum}
  .amdhsa_group_segment_fixed_size 0
  .amdhsa_kernarg_size 120
  .amdhsa_user_sgpr_count 2
  .amdhsa_user_sgpr_kernarg_segment_ptr 1
  .amdhsa_system_sgpr_workgroup_id_x 1
  .amdhsa_float_denorm_mode_32 3
.end_amdhsa_kernel
.text
'''

def _need(self, regs):
    touched = set(('v', r) for r in regs)
    wv = wl = None
    for k in range(len(self.vm) - 1, -1, -1):
        if touched & set(self.vm[k]): wv = min(len(self.vm) - 1 - k, 63); break
    for k in range(len(self.lg) - 1, -1, -1):
        if touched & set(self.lg[k][1]):
            wl = 0 if any(x[0] == 'smem' for x in self.lg) else min(len(self.lg) - 1 - k, 15); break
    if wv is not None or wl is not None: self.wait(wv, wl)
Asm.need = _need
```

```python
from asmgen import *
NAME = 'gated_mix__ssm_conv_s4d__linear_kernel_hedgehog__prompt'
KA = dict(u=0, logA=8, Aim=16, Cre=24, Cim=32, logdt=40, Dskip=48, x=56, wqkv=64, wphi=72, wo=80, gate=88, out=96, dbg=104, ws=112)
WS_A   = 0x000000
WS_Q   = 0x400000
WS_KV  = 0x800000
WS_O   = 0xC00000
WS_G   = 0xF80000
WS_STAMP = 0x1000000
LOG2E = 0x3fb8aa3b
INV2PI = 0x3e22f983

class Stamps:
    def __init__(self, on): self.on = on; self.n = 0
    def mark(self, a):
        if not self.on: return
        assert self.n < 10
        a.raw(f'    s_memrealtime s[{80+2*self.n}:{81+2*self.n}]');
        a.lg.append(('smem', [('s', 80+2*self.n), ('s', 81+2*self.n)]))
        self.n += 1
    def dump(self, a, s_ws, s_wg, s_wave, kidx=0):
        if not self.on: return
        a.wait(vm=0, lg=0)
        a(f's_lshl_b32 s78, s{s_wg}, 3')
        a(f's_add_u32 s78, s78, s{s_wave}')
        a(f's_lshl_b32 s78, s78, 6')
        a(f's_add_u32 s78, s78, {WS_STAMP + kidx*0x40000}')
        a('v_mov_b32 v1, s78')
        for k in range(self.n):
            a(f'v_mov_b32 v2, s{80+2*k}')
            a(f'global_store_dword v1, v2, s[{s_ws}:{s_ws+1}] offset:{4*k}')
```

```python
from common import *

STG, TAB, UPAD = 0, 8704, 8704 + 3200
UDAT = UPAD + 496
CW = UDAT + 4096
RS = 544
DA, DB, T2, T3 = TAB, TAB + 1216, TAB + 2368, TAB + 2880
CONV_LDS = 8 * CW

def cmul(z, x, y, t):
    return [f'v_pk_mul_f32 {vr(t,2)}, {vr(x,2)}, {vr(y,2)} op_sel:[0,0] op_sel_hi:[0,1]',
            f'v_pk_fma_f32 {vr(z,2)}, {vr(x,2)}, {vr(y,2)}, {vr(t,2)} op_sel:[1,1,0] op_sel_hi:[1,0,1] neg_lo:[1,0,0]']

def conv_role(a, st, s_cg, s_rot, s_wave, P, store_flags=''):
    lane, li, lg = 1, 2, 3
    sT, sT2, sLB = 40, 41, 42
    a(f'v_and_b32 v{lane}, 63, v0')
    a(f's_lshl_b32 s{sT}, s{s_cg}, 3')
    a(f's_add_u32 s{sT}, s{sT}, s{s_wave}')
    a(f's_lshl_b32 s{sT2}, s{sT}, 8')
    a(f'v_lshl_add_u32 v4, v{lane}, 2, s{sT2}')
    a(f's_lshl_b32 s{sT2}, s{sT}, 1')
    a(f'v_mov_b32 v5, s{sT2}')
    pl = dict(dt=8, logA=9, Aim=10, Cre=11, Cim=12, Dsk=13)
    a(f'global_load_ushort v{pl["dt"]}, v5, {sr(P["logdt"],2)}')
    a(f'global_load_dword v{pl["logA"]}, v4, {sr(P["logA"],2)}')
    a(f'global_load_dword v{pl["Aim"]}, v4, {sr(P["Aim"],2)}')
    a(f'global_load_dword v{pl["Cre"]}, v4, {sr(P["Cre"],2)}')
    a(f'global_load_dword v{pl["Cim"]}, v4, {sr(P["Cim"],2)}')
    a(f'global_load_ushort v{pl["Dsk"]}, v5, {sr(P["Dskip"],2)}')
    a(f'v_and_b32 v{li}, 15, v0')
    a(f'v_bfe_u32 v{lg}, v0, 4, 2')
    a(f's_mul_i32 s{sLB}, s{s_wave}, {CW}')
    Z = 16
    for k in range(4): a(f'v_mov_b32 v{Z+k}, 0')
    a(f'v_lshl_add_u32 v6, v{lane}, 4, s{sLB}')
    for k in range(4): a(f'ds_write_b128 v6, {vr(Z,4)} offset:{UDAT - 4096 + 1024*k}')
    BAND = 224
    bands = dict(w9=(8, 4), w7=(8, 3), w5=(8, 2), w3a=(4, 1), w3b=(12, 1))
    breg = {k: BAND + 4*i for i, k in enumerate(bands)}; breg['bd'] = BAND + 20
    a(f'v_lshlrev_b32 v7, 3, v{lg}')
    a('s_mov_b32 s43, 0x3f803f80')
    a('s_mov_b32 s44, 0xffff')
    def band(reg, bits, shift, val):
        a(f's_mov_b32 s45, {((1 << bits) - 1) << shift}')
        a(f'v_lshlrev_b32 v20, v{li}, s45')
        a(f'v_lshrrev_b32 v20, v7, v20')
        for q in range(4):
            a(f'v_bfe_i32 v21, v20, {2*q}, 1')
            a(f'v_bfe_i32 v22, v20, {2*q+1}, 1')
            a(f'v_bfi_b32 v{reg+q}, s44, v21, v22')
            if val: a(f'v_and_b32 v{reg+q}, s43, v{reg+q}')
    keys = list(bands)
    for k in keys[:2]: band(breg[k], 2*bands[k][1] + 1, bands[k][0] - bands[k][1], True)
    UL = 208
    a(f's_add_u32 s{sT2}, s{s_wave}, s{s_rot}')
    a(f's_and_b32 s46, s{sT2}, 7')
    a(f's_mul_i32 s{sT2}, s46, {256*1280}')
    a(f's_lshl_b32 s47, s{s_cg}, 4')
    a(f's_add_u32 s{sT2}, s{sT2}, s47')
    a(f'v_mul_u32_u24 v15, {4*1280}, v{lane}')
    a(f'v_add_u32 v15, s{sT2}, v15')
    a(f's_lshr_b32 s49, s{s_wave}, 1')
    def usite(k):
        L = a.newlabel('L_us')
        a(f's_cmp_lg_u32 s49, {k}'); a(f's_cbranch_scc1 {L}')
        for j in range(4): a.raw(f'    global_load_dwordx4 {vr(UL+4*j,4)}, v15, {sr(P["u"],2)} offset:{1280*j}')
        a.label(L)
    usite(0)
    for k in keys[2:]: band(breg[k], 2*bands[k][1] + 1, bands[k][0] - bands[k][1], True)
    band(breg['bd'], 2, 12, False)
    st.mark(a)
    L1, L2 = a.newlabel('L_pw'), a.newlabel('L_pw')
    a('s_cmp_eq_u32 s49, 0'); a(f's_cbranch_scc1 {L1}')
    a.raw('    s_waitcnt vmcnt(0)'); a.label(L1); a.raw('    s_waitcnt vmcnt(4)'); a.vm = []
    st.mark(a)
    usite(1)
    a('s_mov_b32 s43, %#x' % LOG2E)
    a('s_mov_b32 s44, 0xffff0000')
    a('s_mov_b32 s45, %#x' % INV2PI)
    dt = 14
    a(f'v_lshlrev_b32 v{dt}, 16, v{pl["dt"]}')
    a(f'v_mul_f32 v{dt}, s43, v{dt}')
    a(f'v_exp_f32 v{dt}, v{dt}')
    al = [16, 17]; be = [18, 19]
    a(f'v_lshlrev_b32 v{al[0]}, 16, v{pl["logA"]}')
    a(f'v_and_b32 v{al[1]}, s44, v{pl["logA"]}')
    a(f'v_cvt_pk_bf16_f32 v{dt}, v{dt}, v{dt}')
    for n in range(2): a(f'v_mul_f32 v{al[n]}, s43, v{al[n]}')
    a(f'v_and_b32 v{dt}, s44, v{dt}')
    for n in range(2): a(f'v_exp_f32 v{al[n]}, v{al[n]}')
    a(f'v_lshlrev_b32 v{be[0]}, 16, v{pl["Aim"]}')
    a(f'v_and_b32 v{be[1]}, s44, v{pl["Aim"]}')
    a(f'v_cvt_pk_bf16_f32 v{al[1]}, v{al[0]}, v{al[1]}')
    for n in range(2): a(f'v_mul_f32 v{be[n]}, v{dt}, v{be[n]}')
    a(f'v_lshlrev_b32 v{al[0]}, 16, v{al[1]}')
    a(f'v_and_b32 v{al[1]}, s44, v{al[1]}')
    for n in range(2): a(f'v_mul_f32 v{be[n]}, s45, v{be[n]}')
    for n in range(2): a(f'v_mul_f32 v{al[n]}, v{dt}, v{al[n]}')
    for n in range(2): a(f'v_mul_f32 v{al[n]}, s43, v{al[n]}')
    w1 = [20, 22]; W = [24, 26]; C = [28, 30]; w8 = [32, 34]; tmp = [36, 38]
    a('s_mov_b32 s47, 0x43000000')
    def direct(dst, scale):
        for n in range(2):
            if scale:
                a(f'v_mul_f32 v{40+n}, s47, v{al[n]}'); a(f'v_mul_f32 v{42+n}, s47, v{be[n]}')
        ms = [40, 41] if scale else al; ps = [42, 43] if scale else be
        for n in range(2): a(f'v_fract_f32 v{42+n}, v{ps[n]}')
        for n in range(2): a(f'v_exp_f32 v{40+n}, -v{ms[n]}')
        for n in range(2):
            a(f'v_cos_f32 v{dst[n]}, v{42+n}'); a(f'v_sin_f32 v{dst[n]+1}, v{42+n}')
        for n in range(2):
            a(f'v_mul_f32 v{dst[n]}, v{40+n}, v{dst[n]}'); a(f'v_mul_f32 v{dst[n]+1}, v{40+n}, v{dst[n]+1}')
    direct(w1, False)
    def cm2(z, x, y):
        i0 = cmul(z[0], x[0], y[0], tmp[0]); i1 = cmul(z[1], x[1], y[1], tmp[1])
        for s in (i0[0], i1[0], i0[1], i1[1]): a(s)
    cm2(w8, w1, w1); cm2(w8, w8, w8); cm2(w8, w8, w8)
    direct(W, True)
    a(f'v_add_f32 v{dt}, v{dt}, v{dt}')
    a(f'v_lshlrev_b32 v{C[0]}, 16, v{pl["Cre"]}'); a(f'v_and_b32 v{C[1]}, s44, v{pl["Cre"]}')
    a(f'v_lshlrev_b32 v{C[0]+1}, 16, v{pl["Cim"]}'); a(f'v_and_b32 v{C[1]+1}, s44, v{pl["Cim"]}')
    for n in range(2):
        a(f'v_mul_f32 v{C[n]}, v{dt}, v{C[n]}'); a(f'v_mul_f32 v{C[n]+1}, v{dt}, v{C[n]+1}')
    aw, ar = 4, 5
    a(f'v_lshl_add_u32 v{aw}, v{lane}, 3, s{sLB}')
    a(f'v_mul_u32_u24 v{ar}, {RS}, v{li}')
    a(f'v_lshl_add_u32 v{ar}, v{lg}, 4, v{ar}')
    a(f'v_add_u32 v{ar}, s{sLB}, v{ar}')
    pk = [44, 46]; pkn = [0]
    def put(row, x, conj=False):
        r = pk[pkn[0] & 1]; pkn[0] += 1
        for n in range(2): a(f'v_cvt_pk_bf16_f32 v{r+n}, v{x[n]}, {"-" if conj else ""}v{x[n]+1}')
        a(f'ds_write_b64 v{aw}, {vr(r,2)} offset:{STG + row*RS}')
    def cx(i): return [48 + 4*i, 50 + 4*i]
    F2 = 128
    F1 = 160
    a(f'v_mov_b32 v{pk[0]}, 0x3f80'); a(f'v_mov_b32 v{pk[0]+1}, 0x3f80')
    a(f'ds_write_b64 v{aw}, {vr(pk[0],2)} offset:{STG}'); pkn[0] = 1
    put(1, w8, True)
    w16 = cx(0); cm2(w16, w8, w8); put(2, w16, True)
    ev, od = cx(1), cx(2)
    cm2(od, w8, w16); cm2(ev, w16, w16); put(3, od, True); put(4, ev, True)
    for j in range(5, 16):
        x = od if j & 1 else ev
        cm2(x, x, w16); put(j, x, True)
    for t in range(8): a(f'ds_read_b128 {vr(F2+4*t,4)}, v{ar} offset:{STG + 64*t}')
    usite(2)
    KT = [192, 196, 200]
    t0 = [cx(i) for i in range(8)]
    put(0, C)
    prev = C
    for i in range(8):
        if i < 7:
            nx = cx(8 + (i & 1)); cm2(nx, prev, w1)
        cm2(t0[i], prev, W)
        if i < 7: put(i + 1, nx); prev = nx
        put(8 + i, t0[i])
    def tile(k, swap=False):
        for t in range(8): a(f'ds_read_b128 {vr(F1+4*t,4)}, v{ar} offset:{STG + 64*t}')
    def tile_mfma(k, swap=False):
        for t in range(8):
            x, y = (F2, F1) if swap else (F1, F2)
            a(f'v_mfma_f32_16x16x32_bf16 {vr(KT[k],4)}, {vr(x+4*t,4)}, {vr(y+4*t,4)}, {vr(KT[k],4) if t else 0}')
    tile(0)
    usite(3)
    e = [t0[0], t0[2], t0[4], t0[6]]
    for k in range(4): cm2(e[k], e[k], W); put(k, e[k])
    tile_mfma(0)
    for k in range(4): cm2(e[k], e[k], W); put(4 + k, e[k])
    p512, pa, pb = e[0], e[2], e[1]
    cm2(p512, p512, W); cm2(pa, pa, W); cm2(pb, p512, w8)
    for k in range(4):
        if k: cm2(pa, pa, W); cm2(pb, pb, W)
        put(8 + 2*k, pa); put(9 + 2*k, pb)
    tile(1)
    W2 = e[3]; cm2(W2, W, W); cm2(pa, pb, W); cm2(pb, pb, W2)
    put(8, p512); put(0, pa); put(1, pb)
    tile_mfma(1)
    for i in range(2, 8):
        x = pb if i & 1 else pa
        cm2(x, x, W2); put(i, x)
    tile(2)
    st.mark(a)
    a.wait(vm=0)
    st.mark(a)
    a('s_mov_b32 s43, 0x05040100'); a('s_mov_b32 s45, 0x07060302')
    a(f's_lshl_b32 s47, s46, 9')
    a(f'v_lshl_add_u32 v6, v{lane}, 3, s47')
    a(f'v_add_u32 v7, {4*CW}, v6')
    for ch in range(8):
        r = 48 + 2*(ch & 3); sel = 's45' if ch & 1 else 's43'; q = ch >> 1
        a(f'v_perm_b32 v{r}, v{UL+4+q}, v{UL+q}, {sel}')
        a(f'v_perm_b32 v{r+1}, v{UL+12+q}, v{UL+8+q}, {sel}')
        a(f'ds_write_b64 v{6 if ch < 4 else 7}, {vr(r,2)} offset:{(ch & 3)*CW + UDAT}')
    tile_mfma(2, swap=True)
    k0, k1, k2 = KT
    a(f'v_lshlrev_b32 v{pl["Dsk"]}, 16, v{pl["Dsk"]}')
    a('s_mov_b64 exec, 1')
    a(f'v_add_f32 v{k0}, v{k0}, v{pl["Dsk"]}')
    a('s_mov_b64 exec, -1')
    a(f's_add_u32 s48, s{sLB}, 2048')
    a(f'v_lshlrev_b32 v8, 8, v{lg}'); a(f'v_lshl_add_u32 v8, v{li}, 4, v8'); a(f'v_sub_u32 v8, s48, v8')
    a(f'v_cvt_pk_bf16_f32 v48, v{k1+3}, v{k1+2}')
    a(f'v_cvt_pk_bf16_f32 v49, v{k1+2}, v{k1+2}')
    a(f'v_cvt_pk_bf16_f32 v50, v{k1+1}, v{k1}')
    a(f'v_cvt_pk_bf16_f32 v51, v{k1}, v{k1}')
    a(f'v_cvt_pk_bf16_f32 v52, v{k1+2}, v{k1+1}')
    a('s_mov_b32 exec_hi, 0')
    a(f'ds_write_b128 v8, {vr(48,4)} offset:{DA - 2048 + 2*(542-256-6)}')
    a(f'ds_write_b16 v8, v48 offset:{DB - 2048 + 2*(543-256-6)}')
    a(f'ds_write_b32 v8, v49 offset:{DB - 2048 + 2*(543-256-5)}')
    a(f'ds_write_b32 v8, v52 offset:{DB - 2048 + 2*(543-256-3)}')
    a(f'ds_write_b32 v8, v51 offset:{DB - 2048 + 2*(543-256-1)}')
    a(f'ds_write_b16 v8, v51 offset:{DB - 2048 + 2*(543-256+1)}')
    a('s_mov_b64 exec, -1')
    a(f'v_lshlrev_b32 v9, 7, v{lg}'); a(f'v_lshl_add_u32 v9, v{li}, 2, v9'); a(f'v_sub_u32 v9, s48, v9')
    a(f'v_readlane_b32 s47, v48, 63')
    a('s_mov_b32 exec_lo, 0')
    a(f'ds_write_b32 v9, v50 offset:{T2 - 2048 + 2*(320-130+128)}')
    a(f'ds_write_b32 v9, v48 offset:{T2 - 2048 + 2*(320-162+128)}')
    a('s_mov_b64 exec, -1')
    a('s_pack_ll_b32_b16 s47, s47, s47')
    a(f'v_and_b32 v8, 1, v{lg}'); a(f'v_lshlrev_b32 v8, 3, v8'); a(f'v_lshl_add_u32 v8, v{li}, 4, v8')
    a(f'v_lshrrev_b32 v9, 1, v{lg}'); a(f'v_lshl_add_u32 v8, v9, 8, v8'); a(f'v_sub_u32 v8, s48, v8')
    a(f'v_cvt_pk_bf16_f32 v54, v{k0+3}, v{k0+2}')
    a(f'v_cvt_pk_bf16_f32 v55, v{k0+1}, v{k0}')
    a(f'v_cvt_pk_bf16_f32 v56, v{k0+2}, v{k0+1}')
    a(f'ds_write_b64 v8, {vr(54,2)} offset:{DB - 2048 + 2*(543-3)}')
    a(f'ds_write_b16 v8, v54 offset:{DA - 2048 + 2*(542-3)}')
    a(f'ds_write_b32 v8, v56 offset:{DA - 2048 + 2*(542-2)}')
    a(f'ds_write_b16_d16_hi v8, v55 offset:{DA - 2048 + 2*542}')
    for q in range(4): a(f'v_and_b32 v{breg["bd"]+q}, s47, v{breg["bd"]+q}')
    a(f'v_lshlrev_b32 v9, 5, v{li}'); a(f'v_lshl_add_u32 v9, v{lg}, 3, v9'); a(f'v_sub_u32 v9, s48, v9')
    a(f'v_cvt_pk_bf16_f32 v58, v{k2+3}, v{k2+2}')
    a(f'v_cvt_pk_bf16_f32 v59, v{k2+1}, v{k2}')
    a(f'v_cvt_pk_bf16_f32 v60, v{k2}, v{k2}')
    a(f'v_mov_b32 v10, s{sLB}')
    a(f'v_mov_b32 v61, v60')
    a('s_mov_b32 exec_lo, 0x00ff00ff'); a('s_mov_b32 exec_hi, 0x00ff00ff')
    a(f'ds_write_b64 v9, {vr(58,2)} offset:{T3 - 2048 + 2*124}')
    a('s_mov_b64 exec, 0x100')
    a(f'ds_write_b64 v10, {vr(60,2)} offset:{DA + 2*28}')
    a(f'ds_write_b16 v10, v60 offset:{DB + 2*29}')
    a(f'ds_write_b32 v10, v60 offset:{DB + 2*30}')
    a(f'ds_write_b16 v10, v60 offset:{DB + 2*32}')
    a('s_mov_b64 exec, -1')
    AF = 48
    K2 = 116
    K3 = 140
    D = 156
    UF = 188
    WT = 16
    WF = [208, 212, 216]
    OUT = 40
    a(f'v_and_b32 v8, 1, v{li}'); a(f'v_mul_u32_u24 v8, {DB - DA}, v8')
    a(f'v_and_b32 v9, 14, v{li}'); a(f'v_lshlrev_b32 v9, 1, v9'); a(f'v_sub_u32 v8, v8, v9')
    a(f'v_lshl_add_u32 v8, v{lg}, 4, v8')
    a(f'v_add_u32 v8, s{sLB}, v8')
    a(f'v_add_u32 v9, {DA + 2*(526 - 512)}, v8')
    a(f'v_add_u32 v8, {DA + 2*(526 - 480)}, v8')
    a(f'v_lshlrev_b32 v10, 3, v{li}'); a(f'v_lshlrev_b32 v11, 5, v{lg}'); a(f'v_sub_u32 v10, v11, v10'); a(f'v_add_u32 v10, s48, v10')
    a(f'v_lshlrev_b32 v11, 2, v{li}'); a(f'v_lshlrev_b32 v12, 4, v{lg}'); a(f'v_sub_u32 v11, v12, v11'); a(f'v_add_u32 v11, s{sLB}, v11')
    a(f'v_add_u32 v11, {T3 + 2*(254 - 224)}, v11')
    a(f'v_lshlrev_b32 v12, 5, v{li}'); a(f'v_lshl_add_u32 v12, v{lg}, 4, v12'); a(f'v_add_u32 v12, s{sLB}, v12')
    def rdA(k):
        if k == 16: return [f'ds_read2_b32 {vr(AF+64,2)}, v9 offset0:0 offset1:1', f'ds_read2_b32 {vr(AF+66,2)}, v9 offset0:2 offset1:3']
        o = 16*(15 - k)
        return [f'ds_read2_b32 {vr(AF+4*k,2)}, v8 offset0:{o} offset1:{o+1}', f'ds_read2_b32 {vr(AF+4*k+2,2)}, v8 offset0:{o+2} offset1:{o+3}']
    for k in (0, 8, 16, 1, 9, 2, 10, 3, 11, 4, 12, 5, 13, 6, 14, 7, 15):
        for s in rdA(k): a(s)
    for dl in (2, 3, 4):
        for h in range(2):
            r = K2 + 4*((dl-2)*2 + h); o = T2 - 2048 + 2*(316 - 64*dl + 8*h)
            a(f'ds_read_b64 {vr(r,2)}, v10 offset:{o}'); a(f'ds_read_b64 {vr(r+2,2)}, v10 offset:{o+8}')
    for dl in (4, 5, 6, 7):
        r = K3 + 4*(dl-4); o = 16*(7 - dl)
        a(f'ds_read2_b32 {vr(r,2)}, v11 offset0:{o} offset1:{o+1}'); a(f'ds_read2_b32 {vr(r+2,2)}, v11 offset0:{o+2} offset1:{o+3}')
    a(f'v_and_b32 v13, 1, v{lg}'); a(f'v_lshlrev_b32 v13, 9, v13')
    a(f'v_lshrrev_b32 v14, 2, v{li}'); a(f'v_lshl_add_u32 v13, v14, 7, v13')
    a(f'v_lshrrev_b32 v14, 1, v{lg}'); a(f'v_lshl_add_u32 v13, v14, 6, v13')
    a(f'v_and_b32 v14, 3, v{li}'); a(f'v_lshl_add_u32 v13, v14, 4, v13')
    a(f's_lshl_b32 s{sT2}, s{sT}, 12')
    if WS_A: a(f's_add_u32 s{sT2}, s{sT2}, {WS_A}')
    a(f'v_add_u32 v13, s{sT2}, v13')
    a.wait(lg=0)
    a('s_barrier')
    st.mark(a)
    seq = []
    for m in range(8):
        if m <= 5: seq.append((m, -1))
        seq += [(m, b) for b in range(8)]
    NR = 5
    slot = {f: UF + 4*(i % NR) for i, f in enumerate(seq)}
    issued = [0]
    def fetch(upto):
        while issued[0] <= min(upto, len(seq) - 1):
            m, b = seq[issued[0]]
            off = 256*m - 24 if b < 0 else 256*m - 16 - 32*b
            a(f'ds_read_b128 {vr(slot[(m,b)],4)}, v12 offset:{UDAT + 2*off}')
            issued[0] += 1
    touched = set()
    def acc(n, A, B):
        a(f'v_mfma_f32_16x16x32_bf16 {vr(D+4*n,4)}, {vr(A,4)}, {vr(B,4)}, {vr(D+4*n,4) if n in touched else 0}')
        touched.add(n)
    def wt(i, U, band): a(f'v_mfma_f32_16x16x32_bf16 {vr(WT+4*i,4)}, {vr(U,4)}, {vr(breg[band],4)}, 0')
    fetch(NR - 2)
    pend_out = []
    for m in range(8):
        fill = list(pend_out); pend_out = []
        if m <= 5:
            i = seq.index((m, -1)); fetch(i + NR - 2)
            U = slot[(m, -1)]
            wt(0, U, 'w5')
            if m <= 3: wt(4, U, 'w9')
            fetch(i + NR - 1)
            U = slot[(m, 0)]
            wt(1, U, 'w3a'); wt(2, U, 'w5'); wt(3, U, 'w3b')
            if m <= 3: wt(5, U, 'w7')
            cv = []
            for h in range(2):
                for jj in range(2):
                    j = 2*h + jj
                    cv.append(f'v_cvt_pk_bf16_f32 v{WF[h]+2*jj}, v{WT+j}, v{WT+4+j}')
                    cv.append(f'v_cvt_pk_bf16_f32 v{WF[h]+2*jj+1}, v{WT+8+j}, v{WT+12+j}')
            if m <= 3:
                for j in range(4): cv.append(f'v_cvt_pk_bf16_f32 v{WF[2]+j}, v{WT+16+j}, v{WT+20+j}')
            fill = fill + cv
        for b in range(8):
            i = seq.index((m, b)); fetch(i + NR - 2)
            U = slot[(m, b)]
            acc(m, AF + 4*b, U)
            if b >= 2 or m > 5:
                for _ in range(2):
                    if fill: a(fill.pop(0))
            if m + 1 < 8: acc(m + 1, AF + 4*(8 + b), U)
            if b >= 2 or m > 5:
                for _ in range(2):
                    if fill: a(fill.pop(0))
            if b == 0:
                if m + 2 < 8: acc(m + 2, AF + 64, U)
                if m + 4 < 8: acc(m + 4, breg['bd'], U)
        assert not fill, fill
        if m <= 5:
            for dl in (2, 3, 4):
                if m + dl < 8:
                    for h in range(2): acc(m + dl, WF[h], K2 + 4*((dl-2)*2 + h))
        if m <= 3:
            for dl in range(4, 8 - m): acc(m + dl, WF[2], K3 + 4*(dl - 4))
        if m & 1:
            o = OUT + 4*((m >> 1) & 1); d0 = D + 4*(m - 1); d1 = D + 4*m
            pend_out = [f'v_cvt_pk_bf16_f32 v{o}, v{d0}, v{d0+1}', f'v_cvt_pk_bf16_f32 v{o+1}, v{d0+2}, v{d0+3}',
                        f'v_cvt_pk_bf16_f32 v{o+2}, v{d1}, v{d1+1}', f'v_cvt_pk_bf16_f32 v{o+3}, v{d1+2}, v{d1+3}',
                        f'v_permlane16_swap_b32 v{o}, v{o+2}', f'v_permlane16_swap_b32 v{o+1}, v{o+3}',
                        f'global_store_dwordx4 v13, {vr(o,4)}, {sr(P["ws"],2)} offset:{512*(m-1)} {store_flags}']
    for s in pend_out: a(s)
    st.mark(a)

if __name__ == '__main__':
    import sys
    stamps = len(sys.argv) > 2
    a = Asm(); st = Stamps(stamps)
    st.mark(a)
    P = dict(u=4, logA=6, Aim=8, Cre=10, Cim=12, logdt=14, Dskip=16, ws=20)
    a('s_load_dwordx8 s[4:11], s[0:1], 0'); a('s_load_dwordx4 s[12:15], s[0:1], 32'); a('s_load_dwordx2 s[16:17], s[0:1], 48'); a('s_load_dwordx2 s[20:21], s[0:1], 112')
    a('s_cmp_ge_u32 s2, 80'); a('s_cbranch_scc1 L_end')
    a('v_lshrrev_b32 v1, 6, v0'); a('v_readfirstlane_b32 s24, v1')
    a('s_and_b32 s22, s2, 7'); a('s_mul_i32 s22, s22, 10'); a('s_lshr_b32 s23, s2, 3'); a('s_add_u32 s22, s22, s23')
    a('s_lshl_b32 s23, s23, 1')
    conv_role(a, st, 22, 23, 24, P)
    st.dump(a, 20, 2, 24)
    a.label('L_end'); a('s_endpgm')
    open(sys.argv[1], 'w').write(header([('conv_kernel', 80, 512, CONV_LDS)]) + kbegin('conv_kernel') + a.text() + kdesc('conv_kernel', 256))
    print('nops', a.nops, 'instructions', len(a.ins))
```

```python
from common import *
from kv import srd

WOI = 0
AI = 102400
XCH = AI + 10240
F_LDS = XCH + 20480

def f_load_wo(a, s_ct, s_i, n, step, P):
    SW = 28
    srd(a, SW, P['wo'], 819200)
    a('v_and_b32 v1, 63, v0')
    a(f's_mul_i32 s46, s{s_ct}, 160')
    for i in range(5):
        a(f'v_add_u32 v2, {64*i}, v1')
        a('v_mul_u32_u24 v3, 6554, v2'); a('v_lshrrev_b32 v3, 16, v3')
        a('v_mul_u32_u24 v4, 10, v3'); a('v_sub_u32 v4, v2, v4')
        a('v_mul_u32_u24 v3, 1280, v3'); a('v_lshlrev_b32 v4, 4, v4'); a(f'v_add3_u32 v{12+i}, v4, v3, s46')
    a(f's_mul_i32 s45, s{s_i}, {32*1280}'); a(f's_mul_i32 s44, s{s_i}, 5120')
    for gi in range(n):
        for i in range(5):
            a(f's_add_u32 m0, s44, {WOI + gi*step*5120 + 1024*i}')
            a(f'buffer_load_dwordx4 v{12+i}, {sr(SW,4)}, s45 offen lds')
        if gi + 1 < n: a(f's_add_u32 s45, s45, {step*32*1280}')

def f_load_a(a, s_rt64, s_ct, s_pw, P, ld_flags=''):
    SA = 32
    srd(a, SA, P['ws'], WS_A + 2621440)
    a('v_lshrrev_b32 v2, 3, v1'); a('v_lshlrev_b32 v2, 12, v2'); a('v_and_b32 v3, 7, v1'); a('v_lshl_add_u32 v2, v3, 4, v2')
    a(f's_mul_i32 s45, s{s_ct}, {80*4096}'); a(f's_lshl_b32 s44, s{s_rt64}, 7'); a('s_add_u32 s45, s45, s44')
    a(f's_mul_i32 s44, s{s_pw}, {20*4096}'); a('s_add_u32 s45, s45, s44')
    if WS_A: a(f's_add_u32 s45, s45, {WS_A}')
    a(f's_mul_i32 s44, s{s_pw}, 2560')
    for i in range(3):
        a(f's_add_u32 m0, s44, {AI + 1024*i}')
        if i == 2: a('s_mov_b32 exec_hi, 0')
        a(f'buffer_load_dwordx4 v2, {sr(SA,4)}, s45 offen lds {ld_flags}')
        if i < 2: a(f's_add_u32 s45, s45, {8*4096}')
    a('s_mov_b32 exec_hi, -1')

def f_load_o(a, s_rt64, s_w, P, OF, ld_flags=''):
    li, lg = 2, 3
    a('v_and_b32 v1, 63, v0'); a(f'v_and_b32 v{li}, 15, v0'); a(f'v_bfe_u32 v{lg}, v0, 4, 2')
    a(f's_and_b32 s40, s{s_w}, 1'); a(f's_lshr_b32 s41, s{s_w}, 1')
    a(f's_lshl_b32 s42, s{s_rt64}, 1'); a('s_add_u32 s42, s42, s40'); a('s_lshl_b32 s42, s42, 1'); a('s_add_u32 s42, s42, s41')
    a(f's_mul_i32 s42, s42, {16*1280}'); a(f's_add_u32 s42, s42, {WS_O + 2560}')
    a('v_lshl_add_u32 v4, v1, 4, s42')
    a(f'v_mul_u32_u24 v5, 1280, v{lg}'); a(f'v_lshl_add_u32 v5, v{li}, 4, v5'); a('v_add_u32 v5, s42, v5')
    for h in range(16):
        if h and h % 4 == 0: a('v_add_u32 v4, 5120, v4')
        a(f'global_load_dwordx4 {vr(OF + 4*h, 4)}, v4, {sr(P["ws"],2)} offset:{1280*(h % 4) - 2560} {ld_flags}')
    for k in range(4):
        if k: a('v_add_u32 v5, 5120, v5')
        a(f'global_load_dwordx4 {vr(OF + 64 + 4*k, 4)}, v5, {sr(P["ws"],2)} offset:{1024 - 2560} {ld_flags}')
    a('s_lshl_b32 s43, s40, 1'); a('s_add_u32 s43, s43, s41')
    a(f's_lshl_b32 s44, s{s_rt64}, 2'); a('s_add_u32 s44, s44, s43'); a('s_lshl_b32 s45, s44, 8'); a(f's_add_u32 s45, s45, {WS_G}')
    a(f'v_lshl_add_u32 v6, v{li}, 4, s45')
    a(f'global_load_dwordx4 v[20:23], v6, {sr(P["ws"],2)} {ld_flags}')

def f_addr(a, s_ct, s_w):
    li, lg = 2, 3
    a(f'v_lshrrev_b32 v8, 2, v{li}'); a(f'v_and_b32 v9, 3, v{li}'); a('v_mul_u32_u24 v10, 40, v9')
    a(f's_mul_i32 s45, s41, {320*160}')
    if WOI: a(f's_add_u32 s45, s45, {WOI}')
    a(f'v_lshl_add_u32 v11, v{lg}, 2, v8'); a('v_mul_u32_u24 v11, 160, v11'); a('v_add3_u32 v4, v11, v10, s45')
    a(f'v_mul_u32_u24 v11, 20, v{lg}'); a('v_add_u32 v11, v11, v8'); a('v_mul_u32_u24 v12, 160, v11'); a('v_add3_u32 v5, v12, v10, s45')
    a('v_lshlrev_b32 v11, 7, v11'); a('v_lshrrev_b32 v12, 1, v9'); a('v_lshl_add_u32 v11, v12, 6, v11'); a('v_and_b32 v12, 1, v9'); a('v_lshl_add_u32 v11, v12, 3, v11')
    a('s_lshl_b32 s45, s43, 4'); a(f's_add_u32 s45, s45, {AI}'); a('v_add_u32 v6, s45, v11')
    a(f's_mul_i32 s45, s{s_w}, 5120'); a(f's_add_u32 s45, s45, {XCH}'); a('v_lshl_add_u32 v7, v1, 4, s45')
    a(f's_xor_b32 s45, s{s_w}, 2'); a('s_mul_i32 s45, s45, 5120'); a(f's_add_u32 s45, s45, {XCH}'); a('v_lshl_add_u32 v8, v1, 4, s45')
    a(f's_mul_i32 s45, s44, {16*1280}'); a(f's_mul_i32 s46, s{s_ct}, 160'); a('s_add_u32 s45, s45, s46')
    a(f'v_mul_u32_u24 v9, 1280, v{li}'); a(f'v_mul_u32_u24 v10, 40, v{lg}'); a('v_add3_u32 v9, v9, v10, s45')

def f_main(a, st, OF, P):
    ACC = 24
    WF = 64; NW = 6
    def rdw(n):
        ks, T = divmod(n, 5); r = WF + 4*(n % NW)
        if ks < 8: base, o0, o1 = 4, 40*ks*160, (40*ks + 20)*160
        else: base, o0, o1 = 5, (160*(ks - 8) + 16)*160, (160*(ks - 8) + 96)*160
        return [f'ds_read_b64_tr_b16 {vr(r,2)}, v{base} offset:{o0 + 8*T}', f'ds_read_b64_tr_b16 {vr(r+2,2)}, v{base} offset:{o1 + 8*T}']
    PD = NW - 2
    for n in range(PD):
        for s in rdw(n): a(s)
    def swap(ks):
        x = OF + 8*ks
        a(f'v_swap_b32 v{x+2}, v{x+4}'); a(f'v_swap_b32 v{x+3}, v{x+5}')
    swap(0)
    for n in range(50):
        ks, T = divmod(n, 5)
        rw = rdw(n + PD) if n + PD < 50 else []
        for u in range(2):
            d = ACC + 20*u + 4*T
            a(f'v_mfma_f32_16x16x32_bf16 {vr(d,4)}, {vr(WF + 4*(n % NW), 4)}, {vr(OF + 8*ks + 4*u, 4)}, {vr(d,4) if ks else 0}')
            if rw: a(rw[u])
        if T == 3 and ks < 9: swap(ks + 1)
    st.mark(a)
    a('v_add_f32 v20, v20, v21'); a('v_add_f32 v22, v22, v23'); a('v_add_f32 v20, v20, v22')
    a('v_mul_f32 v20, 0xbfb8aa3b, v20'); a('v_exp_f32 v20, v20'); a('v_add_f32 v20, 1.0, v20'); a('v_rcp_f32 v20, v20')
    AF = 88
    for T in range(5): a(f'ds_read_b64_tr_b16 {vr(AF + 2*T, 2)}, v6 offset:{512*T}')
    L1, L2 = a.newlabel('L_fx'), a.newlabel('L_fx')
    a('s_nop 4')
    a('s_cmp_eq_u32 s41, 0'); a(f's_cbranch_scc1 {L1}')
    for i in range(20): a(f'v_swap_b32 v{ACC+i}, v{ACC+20+i}')
    a.label(L1)
    for T in range(5): a(f'ds_write_b128 v7, {vr(ACC + 20 + 4*T, 4)} offset:{1024*T}')
    a.wait(lg=0); a('s_barrier')
    for T in range(5): a(f'ds_read_b128 {vr(ACC + 20 + 4*T, 4)}, v8 offset:{1024*T}')
    a('s_mov_b32 s45, 0xffff0000')
    O = 100
    for T in range(5):
        for q in range(2):
            b = ACC + 4*T + 2*q; t = 64 + 2*((2*T + q) & 3)
            a(f'v_lshlrev_b32 v{t}, 16, v{AF + 2*T + q}'); a(f'v_and_b32 v{t+1}, s45, v{AF + 2*T + q}')
            a(f'v_pk_add_f32 {vr(b,2)}, {vr(b,2)}, {vr(b+20,2)}')
            a(f'v_pk_add_f32 {vr(t,2)}, {vr(t,2)}, {vr(b,2)} neg_lo:[0,1] neg_hi:[0,1]')
            a(f'v_pk_fma_f32 {vr(b,2)}, {vr(t,2)}, v[20:21], {vr(b,2)} op_sel_hi:[1,0,1]')
            a(f'v_cvt_pk_bf16_f32 v{O + 2*T + q}, v{b}, v{b+1}')
        if T == 1: a(f'global_store_dwordx4 v9, {vr(O,4)}, {sr(P["out"],2)}')
        if T == 3: a(f'global_store_dwordx4 v9, {vr(O+4,4)}, {sr(P["out"],2)} offset:16')
        if T == 4: a(f'global_store_dwordx2 v9, {vr(O+8,2)}, {sr(P["out"],2)} offset:32')
    st.mark(a)

def f_kernel(st):
    a = Asm()
    st.mark(a)
    P = dict(wo=8, out=12, ws=16)
    a('s_load_dwordx2 s[8:9], s[0:1], 80'); a('s_load_dwordx2 s[12:13], s[0:1], 96'); a('s_load_dwordx2 s[16:17], s[0:1], 112')
    a('s_cmp_ge_u32 s2, 256'); a('s_cbranch_scc1 L_fend')
    a('v_lshrrev_b32 v1, 6, v0'); a('v_readfirstlane_b32 s24, v1')
    a('s_and_b32 s22, s2, 7'); a('s_lshl_b32 s22, s22, 2'); a('s_lshr_b32 s25, s2, 6'); a('s_add_u32 s22, s22, s25')
    a('s_bfe_u32 s23, s2, 0x30003')
    a.wait(lg=0)
    a('s_cmp_ge_u32 s24, 4'); a('s_cbranch_scc1 L_fprod')
    OF = 112
    f_load_o(a, 22, 24, P, OF)
    f_addr(a, 23, 24)
    st.mark(a)
    a('s_barrier')
    st.mark(a)
    f_main(a, st, OF, P)
    st.dump(a, 16, 2, 24, 2)
    a('s_endpgm')
    a.label('L_fprod'); a.forget()
    a('s_sub_u32 s26, s24, 4')
    f_load_wo(a, 23, 26, 5, 4, P)
    f_load_a(a, 22, 23, 26, P)
    a.wait(vm=0); a('s_barrier'); a('s_barrier')
    a.label('L_fend'); a('s_endpgm')
    return a, F_LDS
```

```python
from common import *

XS, WSL = 16384, 20480
XR, WR = 0, 4*XS
WPHI = WR + 4*WSL
ZERO = WPHI + 4096
ONES = ZERO + 1024
GATE = ONES + 64
KV_LDS = GATE + 4096
PHI = WR + 2*WSL
VFR = XR + 2*XS
NST = 10

def srd(a, r, ptr, nbytes):
    a(f's_mov_b32 s{r}, s{ptr}'); a(f's_and_b32 s{r+1}, s{ptr+1}, 0xffff'); a(f's_mov_b32 s{r+2}, {nbytes}'); a(f's_mov_b32 s{r+3}, 0x20000')

def kv_producer(a, st, s_j, s_R, s_rot, s_pw, P, store_flags=''):
    SX, SW, SP = 28, 32, 36
    srd(a, SX, P['u'], 2621440); srd(a, SW, P['wqkv'], 2457600)
    a('v_and_b32 v1, 63, v0')
    a('v_lshrrev_b32 v2, 3, v1'); a('v_mul_u32_u24 v2, 1280, v2')
    a('v_lshrrev_b32 v3, 4, v1'); a('v_and_b32 v4, 7, v1'); a('v_xor_b32 v3, v3, v4')
    a('v_lshl_add_u32 v10, v3, 4, v2'); a('v_xor_b32 v11, 64, v10')
    a(f's_lshl_b32 s40, s{s_R}, 2'); a(f's_add_u32 s40, s40, s{s_pw}'); a(f's_mul_i32 s40, s40, {32*1280}')
    a(f's_lshl_b32 s41, s{s_pw}, 12')
    a(f's_mul_i32 s42, s{s_pw}, 5120'); a(f's_add_u32 s42, s42, {WR}')
    a(f's_mov_b32 s43, s{s_rot}')
    a(f's_mov_b32 s44, s{s_rot}')
    def issue_x(t):
        a('s_lshl_b32 s45, s43, 7'); a('s_add_u32 s45, s45, s40')
        for i in range(4):
            a(f's_add_u32 m0, s41, {XR + (t % 4)*XS + 1024*i}')
            if i: a(f's_add_u32 s45, s45, 10240')
            a(f'buffer_load_dwordx4 v{10 + (i & 1)}, {sr(SX,4)}, s45 offen lds')
        a('s_add_u32 s43, s43, 1'); a(f's_cmp_eq_u32 s43, {NST}'); a('s_cselect_b32 s43, 0, s43')
    issue_x(0)
    a(f's_mul_i32 s46, s{s_pw}, {16*3840}'); a(f's_mul_i32 s47, s{s_j}, 160'); a('s_add_u32 s46, s46, s47'); a('s_add_u32 s46, s46, 1280')
    for i in range(5):
        a(f'v_add_u32 v2, {64*i}, v1')
        a('v_mul_u32_u24 v3, 6554, v2'); a('v_lshrrev_b32 v3, 16, v3')
        a('v_mul_u32_u24 v4, 10, v3'); a('v_sub_u32 v4, v2, v4')
        a('v_lshrrev_b32 v5, 1, v3')
        a('v_lshrrev_b32 v6, 4, v3'); a('v_xor_b32 v6, v6, v3'); a('v_and_b32 v6, 1, v6')
        a('v_mul_u32_u24 v5, 3840, v5'); a('v_mul_u32_u24 v6, 1280, v6')
        a('v_lshl_add_u32 v4, v4, 4, v5'); a(f'v_add3_u32 v{12+i}, v4, v6, s46')
    def issue_w(t):
        a(f's_mul_i32 s45, s44, {64*3840}')
        for i in range(5):
            a(f's_add_u32 m0, s42, {(t % 4)*WSL + 1024*i}')
            a(f'buffer_load_dwordx4 v{12+i}, {sr(SW,4)}, s45 offen lds')
        a('s_add_u32 s44, s44, 1'); a(f's_cmp_eq_u32 s44, {NST}'); a('s_cselect_b32 s44, 0, s44')
    order = []
    a.vm = []
    def X(t): issue_x(t); order.extend([('x', t)]*4)
    def Wt(t): issue_w(t); order.extend([('w', t)]*5)
    order.extend([('x', 0)]*4)
    Wt(0)
    srd(a, SP, P['wphi'], 25600)
    a(f's_mul_i32 s45, s{s_j}, 3200'); a(f's_lshl_b32 s47, s{s_pw}, 10'); a('s_add_u32 s45, s45, s47')
    a('v_lshlrev_b32 v2, 4, v1')
    a(f's_add_u32 m0, s47, {WPHI}')
    a(f'buffer_load_dwordx4 v2, {sr(SP,4)}, s45 offen lds'); order.append(('p', 1))
    srd(a, SP, P['gate'], 1280)
    a(f's_add_u32 m0, s47, {GATE}')
    a(f'buffer_load_dwordx4 v2, {sr(SP,4)}, s47 offen lds'); order.append(('g', 0))
    X(1); Wt(1); X(2)
    a('v_and_b32 v4, 15, v1'); a('v_lshrrev_b32 v5, 4, v1')
    a('v_lshrrev_b32 v6, 1, v4'); a('v_xor_b32 v6, v6, v5'); a('v_lshlrev_b32 v6, 4, v6'); a('v_lshl_add_u32 v6, v4, 7, v6')
    a(f's_lshl_b32 s47, s{s_j}, 11'); a('v_add_u32 v30, s47, v6'); a('v_xor_b32 v31, 64, v30')
    a(f'v_lshlrev_b32 v32, 4, v5'); a(f'v_add_u32 v32, {GATE}, v32')
    a(f's_mov_b32 s49, s{s_rot}')
    for k in range(4): a(f'v_mov_b32 v{52+k}, 0')
    for k in range(4): a(f'v_mov_b32 v{20+k}, 0')
    a(f'v_add_u32 v3, {ZERO}, v2'); a(f'ds_write_b128 v3, v[20:23]')
    for k in range(4): a(f'v_mov_b32 v{24+k}, 0x3f803f80')
    a(f'v_mov_b32 v3, {ONES}'); a(f'ds_write_b128 v3, v[24:27]')
    for s in range(NST):
        last = max(i for i, o in enumerate(order) if o[1] <= s)
        a.wait(vm=len(order) - 1 - last, lg=0 if s == 0 else None)
        a('s_barrier')
        L = a.newlabel('L_gate')
        a(f's_cmp_lg_u32 s{s_pw}, {s % 4}'); a(f's_cbranch_scc1 {L}')
        a('s_lshl_b32 s47, s49, 7'); a('v_add_u32 v33, s47, v32')
        for ks in range(2):
            a(f'ds_read_b128 {vr(36 + 8*ks, 4)}, v{30 + ks} offset:{XR + (s % 4)*XS}')
            a(f'ds_read_b128 {vr(40 + 8*ks, 4)}, v33 offset:{64*ks}')
        for ks in range(2): a(f'v_mfma_f32_16x16x32_bf16 v[52:55], {vr(40 + 8*ks, 4)}, {vr(36 + 8*ks, 4)}, v[52:55]')
        a.label(L)
        a('s_add_u32 s49, s49, 1'); a(f's_cmp_eq_u32 s49, {NST}'); a('s_cselect_b32 s49, 0, s49')
        if s + 2 < NST: Wt(s + 2)
        if s + 3 < NST: X(s + 3)
    a.vm = []
    a(f's_lshl_b32 s47, s{s_R}, 3'); a(f's_add_u32 s47, s47, s{s_j}'); a('s_lshl_b32 s47, s47, 8')
    a(f's_lshl_b32 s45, s{s_pw}, 2'); a('s_add_u32 s47, s47, s45'); a(f's_add_u32 s47, s47, {WS_G}')
    a('v_lshl_add_u32 v6, v4, 4, s47')
    a('s_mov_b64 exec, 0xffff')
    a('s_nop 7')
    a(f'global_store_dword v6, v52, {sr(P["ws"],2)} {store_flags}')
    a('s_mov_b64 exec, -1')

def softmax_inlane(a, x, ep, em, t, sL):
    mx, mn, sp, sm = t, t + 2, t + 4, t + 6
    a(f'v_max3_f32 v{mx}, v{x}, v{x+1}, v{x+2}'); a(f'v_min3_f32 v{mn}, v{x}, v{x+1}, v{x+2}')
    for i in range(3, 19, 2):
        a(f'v_max3_f32 v{mx}, v{mx}, v{x+i}, v{x+i+1}'); a(f'v_min3_f32 v{mn}, v{mn}, v{x+i}, v{x+i+1}')
    a(f'v_max_f32 v{mx}, v{mx}, v{x+19}'); a(f'v_min_f32 v{mn}, v{mn}, v{x+19}')
    a(f'v_mul_f32 v{mx}, s{sL}, v{mx}'); a(f'v_mul_f32 v{mn}, s{sL}, v{mn}')
    for i in range(0, 20, 2):
        a(f'v_pk_fma_f32 {vr(em+i,2)}, {vr(x+i,2)}, {sr(sL,2)}, {vr(mn,2)} op_sel_hi:[1,1,0] neg_lo:[1,0,0] neg_hi:[1,0,0]')
        a(f'v_pk_fma_f32 {vr(ep+i,2)}, {vr(x+i,2)}, {sr(sL,2)}, {vr(mx,2)} op_sel_hi:[1,1,0] neg_lo:[0,0,1] neg_hi:[0,0,1]')
    for i in range(20): a(f'v_exp_f32 v{ep+i}, v{ep+i}'); a(f'v_exp_f32 v{em+i}, v{em+i}')
    a(f'v_pk_add_f32 {vr(sp,2)}, {vr(ep,2)}, {vr(ep+2,2)}'); a(f'v_pk_add_f32 {vr(sm,2)}, {vr(em,2)}, {vr(em+2,2)}')
    for i in range(4, 20, 2):
        a(f'v_pk_add_f32 {vr(sp,2)}, {vr(sp,2)}, {vr(ep+i,2)}'); a(f'v_pk_add_f32 {vr(sm,2)}, {vr(sm,2)}, {vr(em+i,2)}')
    a(f'v_add_f32 v{sp}, v{sp}, v{sp+1}'); a(f'v_add_f32 v{sm}, v{sm}, v{sm+1}')
    a(f'v_rcp_f32 v{sp}, v{sp}'); a(f'v_rcp_f32 v{sm}, v{sm}')
    return sp, sm

def kv_consumer(a, st, s_j, s_R, s_w, P, store_flags=''):
    li, lg = 2, 3
    a('v_and_b32 v1, 63, v0'); a(f'v_and_b32 v{li}, 15, v0'); a(f'v_bfe_u32 v{lg}, v0, 4, 2')
    AX = 4
    a(f'v_lshrrev_b32 v16, 1, v{li}'); a(f'v_xor_b32 v16, v16, v{lg}'); a('v_lshlrev_b32 v16, 4, v16')
    a(f'v_lshl_add_u32 v16, v{li}, 7, v16'); a(f's_lshl_b32 s40, s{s_w}, 12'); a(f'v_add_u32 v{AX}, s40, v16'); a(f'v_xor_b32 v{AX+1}, 64, v{AX}')
    AK, AVP, AVS = 6, 8, 10
    a(f'v_lshrrev_b32 v16, 2, v{li}'); a(f'v_lshl_add_u32 v16, v{lg}, 3, v16'); a('v_mul_u32_u24 v16, 320, v16')
    a(f'v_and_b32 v17, 1, v{lg}'); a('v_mul_u32_u24 v17, 160, v17')
    a(f'v_and_b32 v18, 3, v{li}'); a('v_mul_u32_u24 v19, 40, v18')
    a(f'v_add_u32 v16, {WR}, v16')
    a(f'v_add3_u32 v{AK}, v16, v17, v19')
    a('v_sub_u32 v16, v16, v17'); a('v_add_u32 v16, 160, v16')
    a(f'v_lshl_add_u32 v{AVP}, v18, 3, v16')
    a(f'v_add3_u32 v{AVS}, v16, v19, 32')
    for r in (AK, AVP, AVS): a(f'v_add_u32 v{r+1}, {3*WSL}, v{r}')
    KA, VA = 32, 72
    XF = 112
    WF = 128; NW = 6
    WPH = 160
    def rdx(ks, u):
        s = ks >> 1
        return f'ds_read_b128 {vr(XF + 8*(ks & 1) + 4*u, 4)}, v{AX + (ks & 1)} offset:{XR + (s % 4)*XS + 2048*u}'
    def rdw(n):
        ks, T = divmod(n, 10); s = ks >> 1; slot = s % 4
        base, o = (AK, 8*T) if T < 5 else ((AVP, 40*(T - 5)) if T < 9 else (AVS, 0))
        o += (ks & 1)*32*320 + (slot % 3)*WSL; base += slot // 3
        r = WF + 4*(n % NW)
        return [f'ds_read_b64_tr_b16 {vr(r,2)}, v{base} offset:{o}', f'ds_read_b64_tr_b16 {vr(r+2,2)}, v{base} offset:{o + 4*320}']
    a(f'v_lshrrev_b32 v16, 2, v{li}'); a('v_mul_u32_u24 v16, 40, v16'); a(f'v_mul_u32_u24 v17, 800, v{lg}')
    a('s_mov_b32 s41, %d' % WPHI); a('v_add3_u32 v16, v16, v17, s41')
    a(f'v_mov_b32 v17, {ZERO}'); a(f'v_cmp_eq_u32 vcc, v18, v{lg}'); a('v_cndmask_b32 v12, v17, v16, vcc')
    wph = [f'ds_read_b64_tr_b16 {vr(WPH + 10*T + 2*q, 2)}, v12 offset:{160*q + 8*T}' for T in range(5) for q in range(5)]
    PD = NW - 2
    st.mark(a)
    a('s_barrier')
    st.mark(a)
    a(rdx(0, 0)); a(rdx(0, 1))
    for n in range(PD):
        for s in rdw(n): a(s)
    NK = 2*NST
    for n in range(10*NK):
        ks, T = divmod(n, 10)
        m = n + PD
        pre = []
        if m < 10*NK:
            if m % 20 == 0: pre.append('s_barrier')
            if m % 10 == 0: pre += [rdx(m // 10, 0), rdx(m // 10, 1)]
            rw = rdw(m)
        else: rw = []
        if wph and n >= 60 and n % 4 == 1 and not pre: pre.append(wph.pop(0))
        r = WF + 4*(n % NW)
        for u in range(2):
            x = XF + 8*(ks & 1) + 4*u
            if T < 5: d = KA + 20*u + 4*T; ins = f'v_mfma_f32_16x16x32_bf16 {vr(d,4)}, {vr(r,4)}, {vr(x,4)}, {vr(d,4) if ks else 0}'
            else: d = VA + 20*u + 4*(T - 5); ins = f'v_mfma_f32_16x16x32_bf16 {vr(d,4)}, {vr(x,4)}, {vr(r,4)}, {vr(d,4) if ks else 0}'
            a(ins)
            if u == 0:
                for s in pre: a(s)
            if rw: a(rw[u])
    assert not wph
    st.mark(a)
    KO = 112
    for u in range(2):
        for i in range(10): a(f'v_cvt_pk_bf16_f32 v{KO + 12*u + i}, v{KA + 20*u + 2*i}, v{KA + 20*u + 2*i + 1}')
    a(f's_mul_i32 s41, s{s_w}, 5120'); a(f's_add_u32 s41, s41, {VFR}'); a('v_lshl_add_u32 v13, v1, 4, s41')
    VO = 136
    vfill = []
    for T in range(5):
        r = VO + 4*(T & 1)
        for u in range(2):
            for q in range(2): vfill.append(f'v_cvt_pk_bf16_f32 v{r + 2*u + q}, v{VA + 20*u + 4*T + 2*q}, v{VA + 20*u + 4*T + 2*q + 1}')
        vfill.append(f'ds_write_b128 v13, {vr(r,4)} offset:{1024*T}')
    PK = KA
    mm = []
    for u in range(2):
        for t in range(3):
            for T in range(5):
                d = PK + 20*u + 4*T; w = WPH + 10*T + 4*t; k = KO + 12*u + 4*t
                if t < 2: mm.append(f'v_mfma_f32_16x16x32_bf16 {vr(d,4)}, {vr(w,4)}, {vr(k,4)}, {vr(d,4) if t else 0}')
                else: mm.append(f'v_mfma_f32_16x16x16_bf16 {vr(d,4)}, {vr(w,2)}, {vr(k,2)}, {vr(d,4)}')
    for s in interleave(mm, vfill): a(s)
    a(f'v_mul_u32_u24 v14, 10240, v{lg}'); a(f'v_mul_u32_u24 v15, 80, v{li}')
    a(f's_mul_i32 s41, s{s_w}, {32*80}'); a(f's_add_u32 s41, s41, {PHI}'); a('v_add3_u32 v14, v14, v15, s41')
    a('s_mov_b32 s42, %#x' % LOG2E); a('s_mov_b32 s43, %#x' % LOG2E)
    EM, TT, PO = 72, 16, 112
    for u in range(2):
        x = PK + 20*u
        sp, sm = softmax_inlane(a, x, x, EM, TT, 42)
        src = [(x + i, sp) for i in range(0, 16, 2)] + [(EM + i, sm) for i in range(0, 16, 2)] + [(x + 16, sp), (x + 18, sp), (EM + 16, sm), (EM + 18, sm)]
        for c in range(5):
            r = PO + 4*(c & 1)
            for q in range(4):
                e, s = src[4*c + q]
                a(f'v_pk_mul_f32 {vr(e,2)}, {vr(e,2)}, {vr(s,2)} op_sel_hi:[1,0]')
            for q in range(4):
                e, s = src[4*c + q]
                a(f'v_cvt_pk_bf16_f32 v{r+q}, v{e}, v{e+1}')
            a(f'ds_write_b128 v14, {vr(r,4)} offset:{16*80*u + 16*c}')
    a(f'v_lshrrev_b32 v16, 2, v{li}'); a(f'v_lshl_add_u32 v16, v{lg}, 2, v16'); a('v_mul_u32_u24 v16, 80, v16')
    a(f's_mul_i32 s41, s{s_w}, 10240'); a(f's_add_u32 s41, s41, {PHI}')
    a(f'v_and_b32 v17, 3, v{li}'); a('v_lshl_add_u32 v4, v17, 3, v16'); a('v_add_u32 v4, s41, v4')
    a(f'v_and_b32 v17, 1, v{li}'); a('v_lshl_add_u32 v5, v17, 3, v16'); a('v_add3_u32 v5, v5, s41, 64')
    a(f's_lshl_b32 s41, s{s_w}, 10'); a(f's_add_u32 s41, s41, {VFR}'); a('v_lshl_add_u32 v6, v1, 4, s41')
    a(f'v_lshrrev_b32 v17, 2, v{li}'); a(f'v_cmp_eq_u32 vcc, s{s_w}, v17')
    a(f'v_mov_b32 v16, {ONES}'); a('v_lshlrev_b32 v18, 4, v1')
    for k in range(4):
        a(f'v_add_u32 v19, {VFR + 4096 + 5120*k}, v18'); a(f'v_cndmask_b32 v{8+k}, v16, v19, vcc')
    a(f's_lshl_b32 s44, s{s_j}, 2'); a(f's_add_u32 s44, s44, s{s_w}'); a('s_lshl_b32 s44, s44, 4'); a(f's_add_u32 s44, s44, s{s_R}')
    a('s_lshl_b32 s44, s44, 12'); a(f's_add_u32 s44, s44, {WS_KV}')
    a('v_add_u32 v12, s44, v18')
    a(f's_xor_b32 s45, s{s_w}, 1'); a('s_lshl_b32 s45, s45, 2')
    a(f'v_cmp_eq_u32 s[46:47], s45, v{li}')
    a(f'v_and_b32 v16, 3, v{li}'); a('v_lshlrev_b32 v16, 4, v16'); a('v_mov_b32 v17, 192'); a('v_cndmask_b32 v16, v17, v16, vcc')
    a(f'v_lshl_add_u32 v16, v{lg}, 8, v16'); a('v_add_u32 v13, s44, v16')
    a('v_mov_b32 v17, 16'); a('v_mov_b32 v19, 64'); a('v_cndmask_b32 v15, v17, v19, vcc')
    a('s_or_b64 s[46:47], s[46:47], vcc')
    a.wait(lg=0)
    st.mark(a)
    a('s_barrier')
    AFr, BFr, KVA = 32, 80, 112
    for k in range(4):
        a(f'ds_read_b128 {vr(BFr + 8*k, 4)}, v6 offset:{5120*k}')
        for F in range(3):
            r = AFr + 12*k + 4*F
            for h in range(2):
                a(f'ds_read_b64_tr_b16 {vr(r + 2*h, 2)}, v{4 if F < 2 else 5} offset:{(32*k + 16*h)*80 + (32*F if F < 2 else 0)}')
        a(f'ds_read_b128 {vr(BFr + 8*k + 4, 4)}, v{8+k}')
    for k in range(4):
        for dt in range(2):
            for F in range(3):
                d = KVA + 4*(3*dt + F)
                a(f'v_mfma_f32_16x16x32_bf16 {vr(d,4)}, {vr(AFr + 12*k + 4*F, 4)}, {vr(BFr + 8*k + 4*dt, 4)}, {vr(d,4) if k else 0}')
    a('v_add_u32 v14, v13, v15'); a('v_add_u32 v15, v14, v15')
    for F in range(3): a(f'global_store_dwordx4 v12, {vr(KVA + 4*F, 4)}, {sr(P["ws"],2)} offset:{1024*F} {store_flags}')
    a('s_mov_b64 exec, s[46:47]')
    for F in range(3): a(f'global_store_dwordx4 v{13+F}, {vr(KVA + 12 + 4*F, 4)}, {sr(P["ws"],2)} offset:3072 {store_flags}')
    a('s_mov_b64 exec, -1')
    st.mark(a)

if __name__ == '__main__':
    import sys
    stamps = len(sys.argv) > 2
    a = Asm(); st = Stamps(stamps)
    st.mark(a)
    P = dict(u=4, wqkv=8, wphi=10, gate=14, ws=20)
    a('s_load_dwordx2 s[4:5], s[0:1], 0'); a('s_load_dwordx8 s[8:15], s[0:1], 64'); a('s_load_dwordx2 s[20:21], s[0:1], 112')
    a('s_cmp_ge_u32 s2, 128'); a('s_cbranch_scc1 L_end')
    a('v_lshrrev_b32 v1, 6, v0'); a('v_readfirstlane_b32 s24, v1')
    a('s_and_b32 s22, s2, 7'); a('s_lshr_b32 s23, s2, 3')
    a('s_add_u32 s25, s22, s23'); a('s_mul_i32 s26, s25, 26'); a('s_lshr_b32 s26, s26, 8'); a('s_mul_i32 s26, s26, 10'); a('s_sub_u32 s25, s25, s26')
    a.wait(lg=0)
    a('s_cmp_ge_u32 s24, 4'); a('s_cbranch_scc1 L_prod')
    kv_consumer(a, st, 22, 23, 24, P)
    st.dump(a, 20, 2, 24)
    a('s_endpgm')
    a.label('L_prod'); a.forget()
    a('s_sub_u32 s26, s24, 4')
    kv_producer(a, Stamps(False), 22, 23, 25, 26, P)
    a('s_barrier')
    a.label('L_end'); a('s_endpgm')
    open(sys.argv[1], 'w').write(header([('kv_kernel', 128, 512, KV_LDS)]) + kbegin('kv_kernel') + a.text() + kdesc('kv_kernel', 256))
    print('nops', a.nops, 'instructions', len(a.ins), 'lds', KV_LDS)
```

```python
from common import *
from kv import srd

def o_lds(base):
    return dict(WPH=base, ZERO=base + 1024, KVS=base + 2048, END=base + 4096)

def o_pre(a, st, s_j, s_hh, s_pair, s_w, P, L, ld_flags=''):
    li, lg = 2, 3
    a('v_and_b32 v1, 63, v0'); a(f'v_and_b32 v{li}, 15, v0'); a(f'v_bfe_u32 v{lg}, v0, 4, 2')
    a('v_lshlrev_b32 v4, 4, v1')
    SP = 36
    Lw = a.newlabel('L_ow')
    a(f's_cmp_lg_u32 s{s_w}, 0'); a(f's_cbranch_scc1 {Lw}')
    srd(a, SP, P['wphi'], 25600)
    a(f's_lshl_b32 s40, s{s_j}, 2'); a(f's_add_u32 s40, s40, s{s_hh}'); a('s_mul_i32 s40, s40, 800')
    a(f's_mov_b32 m0, {L["WPH"]}')
    a(f'buffer_load_dwordx4 v4, {sr(SP,4)}, s40 offen lds')
    for k in range(4): a(f'v_mov_b32 v{8+k}, 0')
    a(f'v_add_u32 v5, {L["ZERO"]}, v4'); a('ds_write_b128 v5, v[8:11]')
    a.label(Lw); a.vm = []
    QX, QY = 16, 20
    a(f's_lshl_b32 s40, s{s_j}, 6'); a(f's_add_u32 s40, s40, s{s_pair}'); a('s_mul_i32 s40, s40, 5120'); a(f's_add_u32 s40, s40, {WS_Q}')
    a(f's_lshl_b32 s41, s{s_hh}, 10'); a('s_add_u32 s41, s41, s40'); a('s_add_u32 s40, s40, 4096')
    a('v_add_u32 v5, s41, v4'); a('v_add_u32 v6, s40, v4')
    a(f'global_load_dwordx4 {vr(QX,4)}, v5, {sr(P["ws"],2)} {ld_flags}')
    a(f'global_load_dwordx4 {vr(QY,4)}, v6, {sr(P["ws"],2)} {ld_flags}')
    return QX, QY

def o_kvload(a, s_j, s_hh, s_w, P, KP, ld_flags=''):
    a(f's_lshl_b32 s40, s{s_j}, 2'); a(f's_add_u32 s40, s40, s{s_hh}'); a('s_lshl_b32 s40, s40, 16')
    a(f's_and_b32 s41, s{s_w}, 3'); a('s_lshl_b32 s41, s41, 10'); a('s_add_u32 s40, s40, s41')
    a(f's_lshr_b32 s41, s{s_w}, 2'); a('s_lshl_b32 s41, s41, 9'); a('s_add_u32 s40, s40, s41'); a(f's_add_u32 s40, s40, {WS_KV}')
    a('v_and_b32 v7, 31, v1'); a('v_lshlrev_b32 v7, 4, v7'); a('v_lshrrev_b32 v8, 5, v1'); a('v_lshl_add_u32 v7, v8, 12, v7'); a('v_add_u32 v7, s40, v7')
    for k in range(8):
        if k: a('v_add_u32 v7, 8192, v7')
        a(f'global_load_dwordx4 {vr(KP + 4*k, 4)}, v7, {sr(P["ws"],2)} {ld_flags}')

def o_phi(a, s_hh, QX, QY, L):
    li, lg = 2, 3
    WA, WB, WBb = 24, 28, 32
    a(f'v_lshrrev_b32 v8, 2, v{li}'); a(f'v_and_b32 v9, 3, v{li}')
    a(f'v_lshl_add_u32 v10, v{lg}, 2, v8'); a('v_mul_u32_u24 v10, 40, v10'); a(f'v_add_u32 v10, {L["WPH"]}, v10')
    a('v_mul_u32_u24 v11, 40, v8'); a(f'v_add_u32 v11, {L["WPH"] + 640}, v11')
    a(f'v_mov_b32 v12, {L["ZERO"]}'); a(f'v_cmp_eq_u32 vcc, s{s_hh}, v{lg}'); a('v_cndmask_b32 v11, v12, v11, vcc')
    a('v_lshl_add_u32 v12, v9, 3, v10'); a('v_lshl_add_u32 v13, v9, 3, v11')
    a(f'ds_read_b64_tr_b16 {vr(WA,2)}, v12'); a(f'ds_read_b64_tr_b16 {vr(WA+2,2)}, v13')
    a(f'ds_read_b64_tr_b16 {vr(WB,2)}, v10 offset:32'); a(f'ds_read_b64_tr_b16 {vr(WB+2,2)}, v11 offset:32')
    a('v_and_b32 v12, 1, v8'); a('v_mul_u32_u24 v12, 0x8000, v12'); a('v_lshl_or_b32 v12, v12, 16, v12')
    a(f'v_cmp_gt_u32 vcc, 8, v{li}')
    a(f'v_swap_b32 v{QX+2}, v{QY}'); a(f'v_swap_b32 v{QX+3}, v{QY+1}')
    for q in range(4):
        a(f'v_xor_b32 v{WB+q}, v12, v{WB+q}')
        a(f'v_cndmask_b32 v{WBb+q}, v{WB+q}, 0, vcc'); a(f'v_cndmask_b32 v{WB+q}, 0, v{WB+q}, vcc')
    A0, A1, B = 36, 40, 44
    a(f'v_mfma_f32_16x16x32_bf16 {vr(A0,4)}, {vr(WA,4)}, {vr(QX,4)}, 0')
    a(f'v_mfma_f32_16x16x32_bf16 {vr(A1,4)}, {vr(WA,4)}, {vr(QY,4)}, 0')
    a(f'v_mfma_f32_16x16x32_bf16 {vr(B,4)}, {vr(WB,4)}, {vr(QX,4)}, 0')
    a(f'v_mfma_f32_16x16x32_bf16 {vr(B,4)}, {vr(WBb,4)}, {vr(QY,4)}, {vr(B,4)}')
    a('s_mov_b32 s42, %#x' % LOG2E); a('s_mov_b32 s43, %#x' % LOG2E)
    c = [8, 10, 12, 14]; Z = 16
    def spread(op3, op2, zin):
        a(f'v_permlane32_swap_b32 v{c[0]}, v{c[2]}'); a(f'v_permlane32_swap_b32 v{c[1]}, v{c[3]}')
        a(f'{op2} v{c[0]}, v{c[0]}, v{c[2]}'); a(f'{op2} v{c[1]}, v{c[1]}, v{c[3]}')
        a(f'v_permlane16_swap_b32 v{c[0]}, v{c[1]}')
        a(f'{op2} v{Z}, v{Z}, v{c[0]}'); a(f'{op2} v{Z}, v{Z}, v{c[1]}')
        a(zin)
        a(f'v_mov_b32 v{c[0]}, v{Z}'); a(f'v_mov_b32 v{c[1]}, v{Z}')
        a(f'v_permlane16_swap_b32 v{c[0]}, v{c[1]}')
        a(f'v_mov_b32 v{c[2]}, v{c[0]}'); a(f'v_mov_b32 v{c[3]}, v{c[1]}')
        a(f'v_permlane32_swap_b32 v{c[0]}, v{c[2]}'); a(f'v_permlane32_swap_b32 v{c[1]}, v{c[3]}')
    for k, (x, sg) in enumerate([(A0, ''), (A0, '-'), (A1, ''), (A1, '-')]):
        a(f'v_max3_f32 v{c[k]}, {sg}v{x}, {sg}v{x+1}, {sg}v{x+2}'); a(f'v_max_f32 v{c[k]}, {sg}v{x+3}, v{c[k]}')
    a(f'v_max3_f32 v{Z}, v{B}, v{B+1}, v{B+2}'); a(f'v_max_f32 v{Z}, v{B+3}, v{Z}')
    spread(None, 'v_max_f32', f'v_mul_f32 v{Z}, s42, v{Z}')
    E = [48, 52, 56, 60, B]
    for k, (x, neg, m) in enumerate([(A0, 0, c[0]), (A0, 1, c[1]), (A1, 0, c[2]), (A1, 1, c[3]), (B, 0, Z)]):
        for q in (0, 2):
            a(f'v_pk_fma_f32 {vr(E[k]+q,2)}, {vr(x+q,2)}, s[42:43], {vr(m,2)} op_sel_hi:[1,1,0] neg_lo:[{neg},0,1] neg_hi:[{neg},0,1]')
    for k in range(5):
        for q in range(4): a(f'v_exp_f32 v{E[k]+q}, v{E[k]+q}')
    for k, m in enumerate(c + [Z]): a(f'v_pk_add_f32 {vr(m,2)}, {vr(E[k],2)}, {vr(E[k]+2,2)}')
    for k, m in enumerate(c + [Z]): a(f'v_add_f32 v{m}, v{m}, v{m+1}')
    spread(None, 'v_add_f32', f'v_rcp_f32 v{Z}, v{Z}')
    PA = 24
    for k, m in enumerate(c + [Z]):
        for q in (0, 2): a(f'v_pk_mul_f32 {vr(E[k]+q,2)}, {vr(E[k]+q,2)}, {vr(m,2)} op_sel_hi:[1,0]')
    for k in range(5):
        for q in range(2): a(f'v_cvt_pk_bf16_f32 v{PA + 2*k + q}, v{E[k] + 2*q}, v{E[k] + 2*q + 1}')
    return PA

def o_reduce(a, s_w, KP, L):
    for k in range(1, 8):
        for q in (0, 2): a(f'v_pk_add_f32 {vr(KP+q,2)}, {vr(KP+q,2)}, {vr(KP + 4*k + q,2)}')
    a(f's_and_b32 s40, s{s_w}, 3'); a('s_lshl_b32 s40, s40, 9'); a(f's_lshr_b32 s41, s{s_w}, 2'); a('s_lshl_b32 s41, s41, 8')
    a('s_add_u32 s40, s40, s41'); a(f's_add_u32 s40, s40, {L["KVS"]}')
    a(f'v_permlane32_swap_b32 v{KP}, v{KP+2}'); a(f'v_permlane32_swap_b32 v{KP+1}, v{KP+3}')
    a('v_and_b32 v7, 31, v1'); a('v_lshlrev_b32 v7, 3, v7'); a('v_lshrrev_b32 v8, 5, v1'); a('v_lshl_add_u32 v7, v8, 2, v7'); a('v_add_u32 v7, s40, v7')
    a(f'v_pk_add_f32 {vr(KP,2)}, {vr(KP,2)}, {vr(KP+2,2)}')
    a(f'v_cvt_pk_bf16_f32 v{KP}, v{KP}, v{KP+1}')
    a(f'ds_write_b32 v7, v{KP}')

def o_post_addr(a, s_j, s_hh, s_pair, L):
    li, lg = 2, 3
    a(f'v_lshlrev_b32 v4, 3, v1'); a(f'v_add_u32 v4, {L["KVS"]}, v4')
    a(f'v_bfe_u32 v8, v{li}, 2, 1'); a(f'v_and_b32 v9, 1, v{li}'); a('v_lshl_add_u32 v8, v8, 1, v9')
    a(f'v_and_b32 v9, 2, v{li}'); a('v_cmp_eq_u32 vcc, 0, v9')
    a('v_cndmask_b32 v8, 12, v8, vcc'); a(f'v_lshl_add_u32 v8, v{lg}, 4, v8'); a('v_lshlrev_b32 v8, 3, v8'); a(f'v_add_u32 v5, {L["KVS"] + 1536}, v8')
    a('v_mov_b32 v9, 32'); a('v_cndmask_b32 v9, 8, v9, vcc'); a('v_add_u32 v6, v5, v9'); a('v_add_u32 v9, v6, v9')
    a(f's_lshl_b32 s40, s{s_pair}, 3'); a(f's_add_u32 s40, s40, s{s_j}'); a('s_lshl_b32 s40, s40, 2'); a(f's_add_u32 s40, s40, s{s_hh}')
    a('s_mul_i32 s40, s40, 1280'); a(f's_add_u32 s40, s40, {WS_O}')
    a('v_lshl_add_u32 v10, v1, 4, s40')
    a(f'v_lshlrev_b32 v11, 4, v{li}'); a(f'v_lshl_add_u32 v11, v{lg}, 2, v11'); a('v_add_u32 v11, s40, v11')

def o_post(a, PA, P, store_flags=''):
    K0, K1, X0, X1 = 36, 40, 44, 48
    a(f'ds_read_b64 {vr(K0,2)}, v4'); a(f'ds_read_b64 {vr(K0+2,2)}, v4 offset:512')
    a(f'ds_read_b64 {vr(K1,2)}, v5'); a(f'ds_read_b64 {vr(K1+2,2)}, v6')
    a(f'ds_read_b64 {vr(X0,2)}, v4 offset:1024'); a(f'ds_read_b64 {vr(X1,2)}, v9')
    a('v_cmp_gt_u32 vcc, 32, v1')
    D = [52, 56, 60, 64]
    for u in range(2):
        a(f'v_mfma_f32_16x16x32_bf16 {vr(D[2*u],4)}, {vr(K0,4)}, {vr(PA + 4*u,4)}, 0')
        a(f'v_mfma_f32_16x16x32_bf16 {vr(D[2*u+1],4)}, {vr(K1,4)}, {vr(PA + 4*u,4)}, 0')
    for X in (X0, X1):
        for q in range(2):
            a(f'v_cndmask_b32 v{X+2+q}, v{X+q}, 0, vcc'); a(f'v_cndmask_b32 v{X+q}, 0, v{X+q}, vcc')
    for u in range(2):
        a(f'v_mfma_f32_16x16x16_bf16 {vr(D[2*u+1],4)}, {vr(X1 + 2*u,2)}, {vr(PA + 8,2)}, {vr(D[2*u+1],4)}')
    for u in range(2):
        a(f'v_mfma_f32_16x16x16_bf16 {vr(D[2*u],4)}, {vr(X0 + 2*u,2)}, {vr(PA + 8,2)}, {vr(D[2*u],4)}')
    for u in range(2): a(f'v_add_f32 v{D[2*u+1]+2}, 0x358637bd, v{D[2*u+1]+2}')
    for u in range(2): a(f'v_rcp_f32 v{D[2*u+1]+2}, v{D[2*u+1]+2}')
    for u in range(2):
        r = D[2*u+1] + 2
        for x in (D[2*u+1], D[2*u], D[2*u] + 2): a(f'v_pk_mul_f32 {vr(x,2)}, {vr(x,2)}, {vr(r,2)} op_sel_hi:[1,0]')
    O = 36
    for u in range(2):
        for q in range(2): a(f'v_cvt_pk_bf16_f32 v{O + 2*u + q}, v{D[2*u] + 2*q}, v{D[2*u] + 2*q + 1}')
    a(f'global_store_dwordx4 v10, {vr(O,4)}, {sr(P["ws"],2)} {store_flags}')
    for u in range(2): a(f'v_cvt_pk_bf16_f32 v{40+u}, v{D[2*u+1]}, v{D[2*u+1]+1}')
    a('v_cndmask_b32 v40, v41, v40, vcc')
    a(f'global_store_dword v11, v40, {sr(P["ws"],2)} offset:1024 {store_flags}')

def o_kernel(st):
    a = Asm()
    st.mark(a)
    P = dict(wphi=10, ws=20); L = o_lds(0)
    a('s_load_dwordx2 s[10:11], s[0:1], 72'); a('s_load_dwordx2 s[20:21], s[0:1], 112')
    a('s_cmp_ge_u32 s2, 256'); a('s_cbranch_scc1 L_oend')
    a('v_lshrrev_b32 v1, 6, v0'); a('v_readfirstlane_b32 s24, v1')
    a('s_and_b32 s22, s2, 7'); a('s_bfe_u32 s23, s2, 0x20003'); a('s_lshr_b32 s25, s2, 5'); a('s_lshl_b32 s25, s25, 3'); a('s_add_u32 s25, s25, s24')
    a.wait(lg=0)
    QX, QY = o_pre(a, st, 22, 23, 25, 24, P, L)
    KP = 68
    o_kvload(a, 22, 23, 24, P, KP)
    a.wait(vm=10, lg=0); a('s_barrier')
    st.mark(a)
    PA = o_phi(a, 23, QX, QY, L)
    st.mark(a)
    o_reduce(a, 24, KP, L)
    o_post_addr(a, 22, 23, 25, L)
    a.wait(lg=0); a('s_barrier')
    st.mark(a)
    o_post(a, PA, P)
    st.mark(a)
    st.dump(a, 20, 2, 24, 1)
    a.label('L_oend'); a('s_endpgm')
    return a, L['END']
```

```python
from common import *
from kv import srd, NST

QXS, QWS = 45056, 10240
QXR, QWR = 0, 3*QXS
Q_LDS = QWR + 2*QWS

def q_producer(a, s_j, s_p0, s_rot, s_pw, P):
    SX, SW = 28, 32
    srd(a, SX, P['u'], 2621440); srd(a, SW, P['wqkv'], 2457600)
    a('v_and_b32 v1, 63, v0')
    a('v_lshrrev_b32 v2, 3, v1'); a('v_mul_u32_u24 v2, 1280, v2')
    a('v_lshrrev_b32 v3, 4, v1'); a('v_and_b32 v4, 7, v1'); a('v_xor_b32 v3, v3, v4')
    a('v_lshl_add_u32 v10, v3, 4, v2')
    a(f's_and_b32 s45, s{s_pw}, 1'); a('s_lshl_b32 s45, s45, 6')
    a('v_xor_b32 v10, s45, v10'); a('v_xor_b32 v11, 64, v10')
    a(f's_mul_i32 s40, s{s_p0}, {32*1280}'); a(f's_mul_i32 s45, s{s_pw}, {88*1280}'); a('s_add_u32 s40, s40, s45')
    a(f's_mul_i32 s41, s{s_pw}, {11*1024}')
    a(f's_mul_i32 s42, s{s_pw}, 2560'); a(f's_add_u32 s42, s42, {QWR}')
    a(f's_mov_b32 s43, s{s_rot}'); a(f's_mov_b32 s44, s{s_rot}')
    a(f's_mul_i32 s46, s{s_pw}, {16*3840}'); a(f's_mul_i32 s47, s{s_j}, 160'); a('s_add_u32 s46, s46, s47')
    for i in range(3):
        a(f'v_add_u32 v2, {64*i}, v1')
        a('v_mul_u32_u24 v3, 6554, v2'); a('v_lshrrev_b32 v3, 16, v3')
        a('v_mul_u32_u24 v4, 10, v3'); a('v_sub_u32 v4, v2, v4')
        a('v_lshrrev_b32 v5, 1, v3'); a('v_and_b32 v5, 4, v5'); a('v_xor_b32 v5, v5, v3')
        a('v_mul_u32_u24 v5, 3840, v5'); a('v_lshlrev_b32 v4, 4, v4'); a(f'v_add3_u32 v{12+i}, v4, v5, s46')
    order = []
    def X(t, lo=0, hi=11):
        if lo == 0: a('s_lshl_b32 s45, s43, 7'); a('s_add_u32 s45, s45, s40')
        for i in range(lo, hi):
            a(f's_add_u32 m0, s41, {QXR + (t % 3)*QXS + 1024*i}')
            if i: a('s_add_u32 s45, s45, 10240')
            a(f'buffer_load_dwordx4 v{10 + (i & 1)}, {sr(SX,4)}, s45 offen lds'); order.append(t)
        if hi == 11: a('s_add_u32 s43, s43, 1'); a(f's_cmp_eq_u32 s43, {NST}'); a('s_cselect_b32 s43, 0, s43')
    def Wt(t):
        a(f's_mul_i32 s48, s44, {64*3840}')
        for i in range(3):
            a(f's_add_u32 m0, s42, {(t % 2)*QWS + 1024*i}')
            if i == 2: a('s_mov_b32 exec_hi, 0')
            a(f'buffer_load_dwordx4 v{12+i}, {sr(SW,4)}, s48 offen lds'); order.append(t)
        a('s_mov_b32 exec_hi, -1')
        a('s_add_u32 s44, s44, 1'); a(f's_cmp_eq_u32 s44, {NST}'); a('s_cselect_b32 s44, 0, s44')
    a.vm = []
    Wt(0); X(0); X(1, 0, 4)
    for s in range(NST):
        last = max(i for i, o in enumerate(order) if o <= s)
        a.wait(vm=len(order) - 1 - last)
        a('s_barrier')
        if s + 1 < NST: Wt(s + 1)
        if s == 0: X(1, 4, 11)
        if s + 2 < NST: X(s + 2)
    a.vm = []

def q_consumer(a, st, s_j, s_pw0, s_pg, npairs, P, store_flags=''):
    li, lg = 2, 3
    NU = 2*npairs
    a('v_and_b32 v1, 63, v0'); a(f'v_and_b32 v{li}, 15, v0'); a(f'v_bfe_u32 v{lg}, v0, 4, 2')
    AX = 4
    a(f'v_lshrrev_b32 v16, 1, v{li}'); a(f'v_xor_b32 v16, v16, v{lg}'); a('v_lshlrev_b32 v16, 4, v16')
    a(f'v_lshl_add_u32 v16, v{li}, 7, v16'); a(f's_lshl_b32 s40, s{s_pw0}, 12'); a(f'v_add_u32 v{AX}, s40, v16'); a(f'v_xor_b32 v{AX+1}, 64, v{AX}')
    for s in (1, 2):
        for p in range(2): a(f'v_add_u32 v{AX + 2*s + p}, {s*QXS}, v{AX + p}')
    AP, AS = 10, 12
    a(f'v_lshrrev_b32 v16, 2, v{li}'); a(f'v_lshl_add_u32 v16, v{lg}, 3, v16'); a('v_mul_u32_u24 v16, 160, v16')
    a(f'v_and_b32 v17, 1, v{lg}'); a('v_mul_u32_u24 v17, 640, v17')
    a(f'v_and_b32 v18, 3, v{li}'); a('v_mul_u32_u24 v19, 40, v18'); a('v_lshlrev_b32 v18, 3, v18')
    a(f'v_add_u32 v16, {QWR}, v16'); a('v_add_u32 v20, v16, v17'); a('v_sub_u32 v21, v16, v17'); a('v_add_u32 v21, 640, v21')
    for h in range(2):
        a(f'v_add_u32 v{AP+h}, v{20+h}, v18'); a(f'v_add3_u32 v{AS+h}, v{20+h}, v19, 32')
    QA = 32
    XF = 152
    WF = 168
    def rdx(n):
        ks, u = divmod(n, NU); s = ks >> 1
        return f'ds_read_b128 {vr(XF + 4*(n % 4), 4)}, v{AX + 2*(s % 3) + (ks & 1)} offset:{2048*u}'
    def rdw(ks):
        out = []
        for T in range(5):
            base, o = (AP, 40*T) if T < 4 else (AS, 0)
            o += (ks & 1)*32*160 + ((ks >> 1) % 2)*QWS
            r = WF + 20*(ks & 1) + 4*T
            out += [f'ds_read_b64_tr_b16 {vr(r,2)}, v{base} offset:{o}', f'ds_read_b64_tr_b16 {vr(r+2,2)}, v{base+1} offset:{o}']
        return out
    st.mark(a)
    a('s_barrier')
    st.mark(a)
    w0 = rdw(0)
    a(rdx(0))
    for s in w0: a(s)
    a(rdx(1))
    nx = 2
    NK = 2*NST
    for ks in range(NK):
        fills = {u: [] for u in range(NU)}
        last = (ks + 1)*NU
        if ks & 1 == 0:
            w = rdw(ks + 1)
            for u in range(NU):
                fills[u].append(rdx(nx)); nx += 1
                k = -(-10 // (NU - 1))
                fills[u] += w[:k]; w = w[k:]
        else:
            for u in range(NU - 2):
                while nx < last and nx <= ks*NU + u + (2 if u < NU - 4 else 3): fills[u].append(rdx(nx)); nx += 1
            assert nx == last
            if ks + 1 < NK:
                w = rdw(ks + 1)
                fills[NU - 2] = ['BAR', rdx(nx)] + w[:5]; fills[NU - 1] = w[5:] + [rdx(nx + 1)]; nx += 2
        for u in range(NU):
            x = XF + 4*((ks*NU + u) % 4)
            f = fills[u]
            for T in range(5):
                d = QA + 20*u + 4*T
                a(f'v_mfma_f32_16x16x32_bf16 {vr(d,4)}, {vr(WF + 20*(ks & 1) + 4*T, 4)}, {vr(x,4)}, {vr(d,4) if ks else 0}')
                k = -(-len(f) // (5 - T))
                for s in f[:k]:
                    if s == 'BAR': a.wait(lg=0); a('s_barrier')
                    else: a(s)
                f = f[k:]
    st.mark(a)
    a(f's_lshl_b32 s40, s{s_j}, 6'); a(f's_add_u32 s40, s40, s{s_pg}'); a('s_mul_i32 s40, s40, 5120'); a(f's_add_u32 s40, s40, {WS_Q + 2048}')
    a('v_lshl_add_u32 v4, v1, 4, s40')
    n = 0
    for p in range(npairs):
        if p: a('v_add_u32 v4, 5120, v4')
        for T in range(5):
            r = XF + 4*(n % 8); n += 1
            for u in range(2):
                d = QA + 20*(2*p + u) + 4*T
                for q in range(2): a(f'v_cvt_pk_bf16_f32 v{r + 2*u + q}, v{d + 2*q}, v{d + 2*q + 1}')
            a(f'global_store_dwordx4 v4, {vr(r,4)}, {sr(P["ws"],2)} offset:{1024*T - 2048} {store_flags}')
    st.mark(a)

def q_role(a, st, s_j, s_qi, s_rot, s_wave, P, end, store_flags=''):
    a(f's_mul_i32 s50, s{s_qi}, 11'); a(f's_cmp_eq_u32 s{s_qi}, 5'); a('s_subb_u32 s50, s50, 0')
    Lp, L2 = a.newlabel('L_qprod'), a.newlabel('L_q2')
    a(f's_cmp_ge_u32 s{s_wave}, 4'); a(f's_cbranch_scc1 {Lp}')
    a(f's_mul_i32 s51, s{s_wave}, 3')
    a(f's_cmp_ge_u32 s{s_qi}, 4'); a('s_cselect_b32 s52, 2, 3')
    a(f's_cmp_gt_u32 s{s_wave}, s52'); a('s_subb_u32 s51, s51, 0')
    a('s_add_u32 s53, s50, s51')
    a(f's_cmp_ge_u32 s{s_wave}, s52'); a(f's_cbranch_scc1 {L2}')
    n0 = st.n
    q_consumer(a, st, s_j, 51, 53, 3, P, store_flags); end(a, st)
    a.label(L2); a.forget(); st.n = n0
    q_consumer(a, st, s_j, 51, 53, 2, P, store_flags); end(a, st)
    a.label(Lp); a.forget()
    a(f's_sub_u32 s51, s{s_wave}, 4')
    q_producer(a, s_j, 50, s_rot, 51, P); end(a, None)

if __name__ == '__main__':
    import sys
    stamps = len(sys.argv) > 2
    a = Asm(); st = Stamps(stamps)
    st.mark(a)
    P = dict(u=4, wqkv=8, wphi=10, ws=20)
    a('s_load_dwordx2 s[4:5], s[0:1], 0'); a('s_load_dwordx4 s[8:11], s[0:1], 64'); a('s_load_dwordx2 s[20:21], s[0:1], 112')
    a('s_cmp_ge_u32 s2, 48'); a('s_cbranch_scc1 L_end')
    a('v_lshrrev_b32 v1, 6, v0'); a('v_readfirstlane_b32 s24, v1')
    a('s_and_b32 s22, s2, 7'); a('s_lshr_b32 s23, s2, 3')
    a('s_add_u32 s25, s22, s23'); a('s_mul_i32 s26, s25, 26'); a('s_lshr_b32 s26, s26, 8'); a('s_mul_i32 s26, s26, 10'); a('s_sub_u32 s25, s25, s26')
    a.wait(lg=0)
    def end(a, st):
        if st: st.dump(a, 20, 2, 24)
        a('s_endpgm')
    q_role(a, st, 22, 23, 25, 24, P, end)
    a.label('L_end'); a('s_endpgm')
    open(sys.argv[1], 'w').write(header([('q_kernel', 48, 512, Q_LDS)]) + kbegin('q_kernel') + a.text() + kdesc('q_kernel', 256))
    print('nops', a.nops, 'instructions', len(a.ins), 'lds', Q_LDS)
```

```python
import sys
from common import *
import conv, kv, qrole, ostage, final

def a_kernel(st):
    a = Asm()
    st.mark(a)
    P = dict(u=4, logA=6, Aim=8, Cre=10, Cim=12, logdt=14, Dskip=16, wqkv=56, wphi=58, wo=60, gate=62, ws=20)
    a('s_load_dwordx16 s[4:19], s[0:1], 0'); a('s_load_dwordx8 s[56:63], s[0:1], 64'); a('s_load_dwordx2 s[20:21], s[0:1], 112')
    a('s_cmp_ge_u32 s2, 256'); a('s_cbranch_scc1 L_aend')
    a('v_lshrrev_b32 v1, 6, v0'); a('v_readfirstlane_b32 s24, v1')
    a('s_and_b32 s22, s2, 7'); a('s_lshr_b32 s23, s2, 3')
    def end(a, st):
        if st: st.dump(a, 20, 2, 24)
        a('s_endpgm')
    def mod10(r):
        a(f's_mul_i32 s26, s{r}, 26'); a('s_lshr_b32 s26, s26, 8'); a('s_mul_i32 s26, s26, 10'); a(f's_sub_u32 s{r}, s{r}, s26')
    a('s_cmp_ge_u32 s23, 22'); a('s_cbranch_scc1 L_conv')
    a('s_cmp_ge_u32 s23, 16'); a('s_cbranch_scc1 L_q')
    a('s_mul_i32 s25, s23, 93'); a('s_lshr_b32 s25, s25, 8')
    a('s_lshl_b32 s25, s25, 1'); a('s_add_u32 s25, s25, s22'); mod10(25)
    a.wait(lg=0)
    a('s_cmp_ge_u32 s24, 4'); a('s_cbranch_scc1 L_kvprod')
    kv.kv_consumer(a, st, 22, 23, 24, P); end(a, st)
    a.label('L_kvprod'); a.forget()
    a('s_sub_u32 s26, s24, 4')
    kv.kv_producer(a, None, 22, 23, 25, 26, P)
    a('s_barrier'); a('s_endpgm')
    a.label('L_q'); a.forget(); st.n = 1
    a('s_sub_u32 s23, s23, 16')
    a('s_lshl_b32 s25, s23, 1'); a('s_add_u32 s25, s25, s22'); a('s_add_u32 s25, s25, 5'); mod10(25)
    a.wait(lg=0)
    qrole.q_role(a, st, 22, 23, 25, 24, P, end)
    a.label('L_conv'); a.forget(); st.n = 1
    a('s_sub_u32 s23, s23, 22'); a('s_mul_i32 s22, s22, 10'); a('s_add_u32 s22, s22, s23'); a('s_lshl_b32 s23, s23, 1')
    a.wait(lg=0)
    conv.conv_role(a, st, 22, 23, 24, P); end(a, st)
    a.label('L_aend'); a('s_endpgm')
    return a, max(conv.CONV_LDS, kv.KV_LDS, qrole.Q_LDS)

if __name__ == '__main__':
    stamps = len(sys.argv) > 2 and sys.argv[2] == '1'
    extra = int(sys.argv[3]) if len(sys.argv) > 3 else 0
    ks = [('a_kernel', *a_kernel(Stamps(stamps)), 256), ('o_kernel', *ostage.o_kernel(Stamps(stamps)), 104), ('f_kernel', *final.f_kernel(Stamps(stamps)), 192)]
    L = [(n, 256, 512, lds) for n, a, lds, v in ks] + [('nop_kernel', 256, 64, 0)]*extra
    s = header(L)
    for n, a, lds, v in ks:
        a.uidfix = None
        s += kbegin(n) + a.text()
        print(n, 'nops', a.nops, 'instructions', len(a.ins), 'lds', lds)
    if extra: s += kbegin('nop_kernel') + '    s_endpgm\n'
    for n, a, lds, v in ks: s += kdesc(n, v)
    if extra: s += kdesc('nop_kernel', 8)
    open(sys.argv[1], 'w').write(s)
```

```python
from asmgen import *
import os
NAME = 'gated_mix__ssm_conv_s4d__linear_kernel_hedgehog__prompt'
WS_A   = 0x000000
WS_Q   = 0x400000
WS_KV  = 0x800000
WS_O   = 0xC00000
WS_G   = 0xF80000
WS_FL  = 0xF90000
WS_FA  = 0xFA0000
WS_FO  = 0xFB0000
FOS = 128
WS_STAMP = 0x1000000
LOG2E = 0x3fb8aa3b
INV2PI = 0x3e22f983
NST = 10
def env(k, d): return int(os.environ.get(k, d))

P = dict(u=4, logA=6, Aim=8, Cre=10, Cim=12, logdt=14, Dskip=16, ws=20, wqkv=56, wphi=58, wo=60, gate=62, out=64, dbg=66)
S_J, S_IDX, S_WAVE, S_ROT, S_PW = 22, 23, 24, 25, 26
S_MODE, S_RT, S_CT, S_AI, S_PAT = 68, 69, 70, 71, 72

def srd(a, r, ptr, nbytes):
    a(f's_mov_b32 s{r}, s{ptr}'); a(f's_and_b32 s{r+1}, s{ptr+1}, 0xffff'); a(f's_mov_b32 s{r+2}, {nbytes}'); a(f's_mov_b32 s{r+3}, 0x20000')

def poll(a, vaddr, vdst, base, check):
    L, D = a.newlabel('L_poll'), a.newlabel('L_polled')
    a('s_mov_b32 s27, 0')
    a.label(L)
    a(f'global_load_dword v{vdst}, v{vaddr}, {sr(base,2)} sc1')
    a.wait(vm=0)
    for s in check: a(s)
    a(f's_cbranch_vccz {D}')
    a('s_add_u32 s27, s27, 1'); a('s_cmp_lt_u32 s27, 0x40000'); a(f's_cbranch_scc1 {L}')
    a.label(D)

def poll_flag(a, vaddr, vdst): poll(a, vaddr, vdst, P['ws'], [f'v_cmp_ne_u32 vcc, 1, v{vdst}'])

def announce(a, vt, wait=True):
    if wait: a.wait(vm=0)
    a(f's_lshl_b32 s40, s{S_J}, 5'); a(f's_add_u32 s40, s40, s{S_IDX}')
    a('s_and_b32 s41, s40, 3'); a('s_lshl_b32 s41, s41, 3'); a(f's_and_b32 s42, s{S_PAT}, 0xff'); a('s_lshl_b32 s42, s42, s41')
    a('s_andn2_b32 s40, s40, 3')
    a(f'v_mov_b32 v{vt}, s40'); a(f'v_mov_b32 v{vt+1}, s42')
    a('s_mov_b64 exec, 1')
    a(f'global_atomic_or v{vt}, v{vt+1}, {sr(P["dbg"],2)} sc1')
    a('s_mov_b64 exec, -1')

def check_ann(a, vaddr, vdst, preloaded=False):
    chk = [f'v_and_b32 v{vdst+1}, 0x80808080, v{vdst}', f'v_cmp_ne_u32 vcc, 0x80808080, v{vdst+1}']
    D = a.newlabel('L_ann')
    if preloaded:
        for s in chk: a(s)
        a(f's_cbranch_vccz {D}')
    vm = list(a.vm)
    poll(a, vaddr, vdst, P['dbg'], chk)
    a.label(D)
    if preloaded: a.vm = vm
    a(f'v_cmp_eq_u32 vcc, s{S_PAT}, v{vdst}')
    a(f's_lshl_b32 s40, s{S_J}, 3'); a('s_lshr_b64 s[40:41], vcc, s40'); a('s_and_b32 s40, s40, 0xff')
    a('s_cmp_eq_u32 s40, 0xff'); a(f's_cselect_b32 s{S_MODE}, 1, 0')

def by_mode(a, body):
    G, D = a.newlabel('L_glob'), a.newlabel('L_mode')
    a(f's_cmp_eq_u32 s{S_MODE}, 0'); a(f's_cbranch_scc1 {G}')
    lg, vm = list(a.lg), list(a.vm)
    body('')
    a(f's_branch {D}')
    a.label(G); a.lg, a.vm = lg, vm
    a('s_nop 7')
    body('sc1')
    a.label(D)

class Stamps:
    def __init__(self, on): self.on = on; self.n = 0
    def mark(self, a, k=None):
        if not self.on: return
        if k is None: k = self.n
        assert k < 12
        a.raw(f'    s_memrealtime s[{76+2*k}:{77+2*k}]')
        a.lg.append(('smem', [('s', 76+2*k), ('s', 77+2*k)]))
        self.n = max(self.n, k + 1)
    def dump(self, a, s_ws, s_wg, s_wave, kidx=0, n=None):
        if not self.on: return
        a.wait(vm=0, lg=0)
        a(f's_lshl_b32 s75, s{s_wg}, 3')
        a(f's_add_u32 s75, s75, s{s_wave}')
        a(f's_lshl_b32 s75, s75, 6')
        a(f's_add_u32 s75, s75, {WS_STAMP + kidx*0x40000}')
        a('v_mov_b32 v1, s75')
        for k in range(n or self.n):
            a(f'v_mov_b32 v2, s{76+2*k}')
            a(f'global_store_dword v1, v2, s[{s_ws}:{s_ws+1}] offset:{4*k}')
```

```python
from common import *

STG, TAB, UPAD = 0, 8704, 8704 + 3200
UDAT = UPAD + 496
CW = UDAT + 4096
RS = 544
DA, DB, T2, T3 = TAB, TAB + 1216, TAB + 2368, TAB + 2880
CONV_LDS = 8 * CW

def cmul(z, x, y, t):
    return [f'v_pk_mul_f32 {vr(t,2)}, {vr(x,2)}, {vr(y,2)} op_sel:[0,0] op_sel_hi:[0,1]',
            f'v_pk_fma_f32 {vr(z,2)}, {vr(x,2)}, {vr(y,2)}, {vr(t,2)} op_sel:[1,1,0] op_sel_hi:[1,0,1] neg_lo:[1,0,0]']

def touch_early(a, s_wave):
    n = 0
    a(f's_sub_u32 s50, s{S_IDX}, 22'); a('s_lshl_b32 s51, s50, 3'); a(f's_add_u32 s51, s51, s{s_wave}')
    if env('PF_W', 1):
        a('v_and_b32 v6, 7, v1'); a('v_mul_u32_u24 v6, 3840, v6')
        a('v_lshrrev_b32 v7, 3, v1'); a('v_min_u32 v7, 5, v7'); a('v_lshrrev_b32 v16, 1, v7'); a('v_mul_u32_u24 v16, 1024, v16'); a('v_lshl_add_u32 v7, v7, 7, v16')
        a(f's_mul_i32 s43, s51, {8*3840}'); a(f's_mul_i32 s44, s{S_J}, 160'); a('s_andn2_b32 s44, s44, 127'); a('s_add_u32 s43, s43, s44')
        a('v_add3_u32 v6, v6, v7, s43')
        a(f'global_load_dword v254, v6, {sr(P["wqkv"],2)}'); n += 1
    if env('PF_CODE', 1):
        a('s_getpc_b64 s[44:45]')
        a.label('L_pc')
        a(f's_sub_u32 s44, s44, L_pc - {NAME}_kernel'); a('s_subb_u32 s45, s45, 0')
        a('s_lshl_b32 s43, s51, 10'); a('v_and_b32 v6, 7, v1'); a('v_lshl_add_u32 v6, v6, 7, s43')
        a(f'v_min_u32 v6, L_codeend - {NAME}_kernel - 4, v6')
        a('global_load_dword v255, v6, s[44:45]'); n += 1
    return n

def touch_mid(a, s_wave):
    if env('PF_MID', 1):
        a(f's_mul_i32 s43, s{S_J}, {64*5120}'); a('s_lshl_b32 s44, s51, 12'); a('s_add_u32 s43, s43, s44'); a(f's_add_u32 s43, s43, {WS_Q}')
        a('v_lshl_add_u32 v4, v1, 7, s43')
        a('s_mul_i32 s44, s51, 26'); a('s_sub_u32 s44, s44, 32'); a('v_add_u32 v5, s44, v1'); a('v_min_u32 v5, 2047, v5')
        a(f's_lshl_b32 s43, s{S_J}, 18'); a(f's_add_u32 s43, s43, {WS_KV}'); a('v_lshl_add_u32 v5, v5, 7, s43')
        a('v_cmp_gt_u32 vcc, 32, v1'); a('v_cndmask_b32 v4, v5, v4, vcc')
        a(f'global_load_dword v254, v4, {sr(P["ws"],2)} sc1')
        a(f's_lshl_b32 s43, s{S_J}, 9'); a(f's_add_u32 s43, s43, {WS_FL}'); a('v_and_b32 v5, 3, v1'); a('v_lshl_add_u32 v5, v5, 7, s43')
        a(f'global_load_dword v253, v5, {sr(P["ws"],2)} sc1')
    if env('PF_WO', 1):
        a(f's_mul_i32 s43, s51, {80*128}'); a('v_lshl_add_u32 v4, v1, 7, s43')
        a(f'global_load_dword v255, v4, {sr(P["wo"],2)}')
        a('v_and_b32 v5, 15, v1'); a('v_lshlrev_b32 v5, 7, v5'); a('v_add_u32 v5, 8192, v5'); a('v_add_u32 v5, s43, v5')
        a(f'global_load_dword v252, v5, {sr(P["wo"],2)}')

def conv_role(a, st, s_cg, s_rot, s_wave, store_flags='sc1'):
    lane, li, lg = 1, 2, 3
    sT, sT2, sLB = 52, 53, 55
    a(f'v_and_b32 v{lane}, 63, v0')
    a(f's_lshl_b32 s{sT}, s{s_cg}, 3')
    a(f's_add_u32 s{sT}, s{sT}, s{s_wave}')
    a(f's_lshl_b32 s{sT2}, s{sT}, 8')
    a(f'v_lshl_add_u32 v4, v{lane}, 2, s{sT2}')
    a(f's_lshl_b32 s{sT2}, s{sT}, 1')
    a(f'v_mov_b32 v5, s{sT2}')
    pl = dict(dt=8, logA=9, Aim=10, Cre=11, Cim=12, Dsk=13)
    a(f's_lshl_b32 s43, s{s_cg}, 7'); a(f's_add_u32 s43, s43, {WS_FA}'); a('v_mov_b32 v250, s43'); a('v_mov_b32 v251, 0')
    a.wait(lg=0)
    Lc = a.newlabel('L_cclr')
    a(f's_cmp_lg_u32 s{s_wave}, 7'); a(f's_cbranch_scc1 {Lc}')
    a('s_mov_b64 exec, 1')
    a(f'global_store_dword v250, v251, {sr(P["ws"],2)} sc1')
    a('s_mov_b64 exec, -1')
    a.label(Lc)
    a(f'global_load_ushort v{pl["dt"]}, v5, {sr(P["logdt"],2)}')
    a(f'global_load_dword v{pl["logA"]}, v4, {sr(P["logA"],2)}')
    a(f'global_load_dword v{pl["Aim"]}, v4, {sr(P["Aim"],2)}')
    a(f'global_load_dword v{pl["Cre"]}, v4, {sr(P["Cre"],2)}')
    a(f'global_load_dword v{pl["Cim"]}, v4, {sr(P["Cim"],2)}')
    a(f'global_load_ushort v{pl["Dsk"]}, v5, {sr(P["Dskip"],2)}')
    nearly = touch_early(a, s_wave)
    a(f'v_and_b32 v{li}, 15, v0')
    a(f'v_bfe_u32 v{lg}, v0, 4, 2')
    a(f's_mul_i32 s{sLB}, s{s_wave}, {CW}')
    Z = 16
    for k in range(4): a(f'v_mov_b32 v{Z+k}, 0')
    a(f'v_lshl_add_u32 v6, v{lane}, 4, s{sLB}')
    for k in range(4): a(f'ds_write_b128 v6, {vr(Z,4)} offset:{UDAT - 4096 + 1024*k}')
    BAND = 224
    bands = dict(w9=(8, 4), w7=(8, 3), w5=(8, 2), w3a=(4, 1), w3b=(12, 1))
    breg = {k: BAND + 4*i for i, k in enumerate(bands)}; breg['bd'] = BAND + 20
    a(f'v_lshlrev_b32 v7, 3, v{lg}')
    a('s_mov_b32 s43, 0x3f803f80')
    a('s_mov_b32 s44, 0xffff')
    def band(reg, bits, shift, val):
        a(f's_mov_b32 s45, {((1 << bits) - 1) << shift}')
        a(f'v_lshlrev_b32 v20, v{li}, s45')
        a(f'v_lshrrev_b32 v20, v7, v20')
        for q in range(4):
            a(f'v_bfe_i32 v21, v20, {2*q}, 1')
            a(f'v_bfe_i32 v22, v20, {2*q+1}, 1')
            a(f'v_bfi_b32 v{reg+q}, s44, v21, v22')
            if val: a(f'v_and_b32 v{reg+q}, s43, v{reg+q}')
    keys = list(bands)
    for k in keys[:2]: band(breg[k], 2*bands[k][1] + 1, bands[k][0] - bands[k][1], True)
    UL = 208
    a(f's_add_u32 s{sT2}, s{s_wave}, s{s_rot}')
    a(f's_and_b32 s46, s{sT2}, 7')
    a(f's_mul_i32 s{sT2}, s46, {256*1280}')
    a(f's_lshl_b32 s47, s{s_cg}, 4')
    a(f's_add_u32 s{sT2}, s{sT2}, s47')
    a(f'v_mul_u32_u24 v15, {4*1280}, v{lane}')
    a(f'v_add_u32 v15, s{sT2}, v15')
    a(f's_lshr_b32 s49, s{s_wave}, 1')
    def usite(k):
        L = a.newlabel('L_us')
        a(f's_cmp_lg_u32 s49, {k}'); a(f's_cbranch_scc1 {L}')
        for j in range(4): a.raw(f'    global_load_dwordx4 {vr(UL+4*j,4)}, v15, {sr(P["u"],2)} offset:{1280*j}')
        a.label(L)
    usite(0)
    for k in keys[2:]: band(breg[k], 2*bands[k][1] + 1, bands[k][0] - bands[k][1], True)
    band(breg['bd'], 2, 12, False)
    st.mark(a, 1)
    L1, L2 = a.newlabel('L_pw'), a.newlabel('L_pw')
    a('s_cmp_eq_u32 s49, 0'); a(f's_cbranch_scc1 {L1}')
    a.raw(f'    s_waitcnt vmcnt({nearly})'); a.label(L1); a.raw(f'    s_waitcnt vmcnt({nearly + 4})'); a.vm = []
    st.mark(a, 2)
    La = a.newlabel('L_cann')
    a(f's_cmp_lg_u32 s{s_wave}, 7'); a(f's_cbranch_scc1 {La}')
    announce(a, 252, wait=False)
    a.label(La); a.vm = []
    usite(1)
    a('s_mov_b32 s43, %#x' % LOG2E)
    a('s_mov_b32 s44, 0xffff0000')
    a('s_mov_b32 s45, %#x' % INV2PI)
    dt = 14
    a(f'v_lshlrev_b32 v{dt}, 16, v{pl["dt"]}')
    a(f'v_mul_f32 v{dt}, s43, v{dt}')
    a(f'v_exp_f32 v{dt}, v{dt}')
    al = [16, 17]; be = [18, 19]
    a(f'v_lshlrev_b32 v{al[0]}, 16, v{pl["logA"]}')
    a(f'v_and_b32 v{al[1]}, s44, v{pl["logA"]}')
    a(f'v_cvt_pk_bf16_f32 v{dt}, v{dt}, v{dt}')
    for n in range(2): a(f'v_mul_f32 v{al[n]}, s43, v{al[n]}')
    a(f'v_and_b32 v{dt}, s44, v{dt}')
    for n in range(2): a(f'v_exp_f32 v{al[n]}, v{al[n]}')
    a(f'v_lshlrev_b32 v{be[0]}, 16, v{pl["Aim"]}')
    a(f'v_and_b32 v{be[1]}, s44, v{pl["Aim"]}')
    a(f'v_cvt_pk_bf16_f32 v{al[1]}, v{al[0]}, v{al[1]}')
    for n in range(2): a(f'v_mul_f32 v{be[n]}, v{dt}, v{be[n]}')
    a(f'v_lshlrev_b32 v{al[0]}, 16, v{al[1]}')
    a(f'v_and_b32 v{al[1]}, s44, v{al[1]}')
    for n in range(2): a(f'v_mul_f32 v{be[n]}, s45, v{be[n]}')
    for n in range(2): a(f'v_mul_f32 v{al[n]}, v{dt}, v{al[n]}')
    for n in range(2): a(f'v_mul_f32 v{al[n]}, s43, v{al[n]}')
    w1 = [20, 22]; W = [24, 26]; C = [28, 30]; w8 = [32, 34]; tmp = [36, 38]
    a('s_mov_b32 s47, 0x43000000')
    def direct(dst, scale):
        for n in range(2):
            if scale:
                a(f'v_mul_f32 v{40+n}, s47, v{al[n]}'); a(f'v_mul_f32 v{42+n}, s47, v{be[n]}')
        ms = [40, 41] if scale else al; ps = [42, 43] if scale else be
        for n in range(2): a(f'v_fract_f32 v{42+n}, v{ps[n]}')
        for n in range(2): a(f'v_exp_f32 v{40+n}, -v{ms[n]}')
        for n in range(2):
            a(f'v_cos_f32 v{dst[n]}, v{42+n}'); a(f'v_sin_f32 v{dst[n]+1}, v{42+n}')
        for n in range(2):
            a(f'v_mul_f32 v{dst[n]}, v{40+n}, v{dst[n]}'); a(f'v_mul_f32 v{dst[n]+1}, v{40+n}, v{dst[n]+1}')
    direct(w1, False)
    def cm2(z, x, y):
        i0 = cmul(z[0], x[0], y[0], tmp[0]); i1 = cmul(z[1], x[1], y[1], tmp[1])
        for s in (i0[0], i1[0], i0[1], i1[1]): a(s)
    cm2(w8, w1, w1); cm2(w8, w8, w8); cm2(w8, w8, w8)
    direct(W, True)
    a(f'v_add_f32 v{dt}, v{dt}, v{dt}')
    a(f'v_lshlrev_b32 v{C[0]}, 16, v{pl["Cre"]}'); a(f'v_and_b32 v{C[1]}, s44, v{pl["Cre"]}')
    a(f'v_lshlrev_b32 v{C[0]+1}, 16, v{pl["Cim"]}'); a(f'v_and_b32 v{C[1]+1}, s44, v{pl["Cim"]}')
    for n in range(2):
        a(f'v_mul_f32 v{C[n]}, v{dt}, v{C[n]}'); a(f'v_mul_f32 v{C[n]+1}, v{dt}, v{C[n]+1}')
    aw, ar = 4, 5
    a(f'v_lshl_add_u32 v{aw}, v{lane}, 3, s{sLB}')
    a(f'v_mul_u32_u24 v{ar}, {RS}, v{li}')
    a(f'v_lshl_add_u32 v{ar}, v{lg}, 4, v{ar}')
    a(f'v_add_u32 v{ar}, s{sLB}, v{ar}')
    pk = [44, 46]; pkn = [0]
    def put(row, x, conj=False):
        r = pk[pkn[0] & 1]; pkn[0] += 1
        for n in range(2): a(f'v_cvt_pk_bf16_f32 v{r+n}, v{x[n]}, {"-" if conj else ""}v{x[n]+1}')
        a(f'ds_write_b64 v{aw}, {vr(r,2)} offset:{STG + row*RS}')
    def cx(i): return [48 + 4*i, 50 + 4*i]
    F2 = 128
    F1 = 160
    a(f'v_mov_b32 v{pk[0]}, 0x3f80'); a(f'v_mov_b32 v{pk[0]+1}, 0x3f80')
    a(f'ds_write_b64 v{aw}, {vr(pk[0],2)} offset:{STG}'); pkn[0] = 1
    put(1, w8, True)
    w16 = cx(0); cm2(w16, w8, w8); put(2, w16, True)
    ev, od = cx(1), cx(2)
    cm2(od, w8, w16); cm2(ev, w16, w16); put(3, od, True); put(4, ev, True)
    for j in range(5, 16):
        x = od if j & 1 else ev
        cm2(x, x, w16); put(j, x, True)
    for t in range(8): a(f'ds_read_b128 {vr(F2+4*t,4)}, v{ar} offset:{STG + 64*t}')
    usite(2)
    KT = [192, 196, 200]
    t0 = [cx(i) for i in range(8)]
    put(0, C)
    prev = C
    for i in range(8):
        if i < 7:
            nx = cx(8 + (i & 1)); cm2(nx, prev, w1)
        cm2(t0[i], prev, W)
        if i < 7: put(i + 1, nx); prev = nx
        put(8 + i, t0[i])
    def tile(k, swap=False):
        for t in range(8): a(f'ds_read_b128 {vr(F1+4*t,4)}, v{ar} offset:{STG + 64*t}')
    def tile_mfma(k, swap=False):
        for t in range(8):
            x, y = (F2, F1) if swap else (F1, F2)
            a(f'v_mfma_f32_16x16x32_bf16 {vr(KT[k],4)}, {vr(x+4*t,4)}, {vr(y+4*t,4)}, {vr(KT[k],4) if t else 0}')
    tile(0)
    usite(3)
    e = [t0[0], t0[2], t0[4], t0[6]]
    for k in range(4): cm2(e[k], e[k], W); put(k, e[k])
    tile_mfma(0)
    for k in range(4): cm2(e[k], e[k], W); put(4 + k, e[k])
    p512, pa, pb = e[0], e[2], e[1]
    cm2(p512, p512, W); cm2(pa, pa, W); cm2(pb, p512, w8)
    for k in range(4):
        if k: cm2(pa, pa, W); cm2(pb, pb, W)
        put(8 + 2*k, pa); put(9 + 2*k, pb)
    tile(1)
    W2 = e[3]; cm2(W2, W, W); cm2(pa, pb, W); cm2(pb, pb, W2)
    put(8, p512); put(0, pa); put(1, pb)
    tile_mfma(1)
    for i in range(2, 8):
        x = pb if i & 1 else pa
        cm2(x, x, W2); put(i, x)
    tile(2)
    st.mark(a, 3)
    a.wait(vm=0)
    a('s_mov_b32 s43, 0x05040100'); a('s_mov_b32 s45, 0x07060302')
    a(f's_lshl_b32 s47, s46, 9')
    a(f'v_lshl_add_u32 v6, v{lane}, 3, s47')
    a(f'v_add_u32 v7, {4*CW}, v6')
    for ch in range(8):
        r = 48 + 2*(ch & 3); sel = 's45' if ch & 1 else 's43'; q = ch >> 1
        a(f'v_perm_b32 v{r}, v{UL+4+q}, v{UL+q}, {sel}')
        a(f'v_perm_b32 v{r+1}, v{UL+12+q}, v{UL+8+q}, {sel}')
        a(f'ds_write_b64 v{6 if ch < 4 else 7}, {vr(r,2)} offset:{(ch & 3)*CW + UDAT}')
    tile_mfma(2, swap=True)
    k0, k1, k2 = KT
    a(f'v_lshlrev_b32 v{pl["Dsk"]}, 16, v{pl["Dsk"]}')
    a('s_mov_b64 exec, 1')
    a(f'v_add_f32 v{k0}, v{k0}, v{pl["Dsk"]}')
    a('s_mov_b64 exec, -1')
    a(f's_add_u32 s48, s{sLB}, 2048')
    a(f'v_lshlrev_b32 v8, 8, v{lg}'); a(f'v_lshl_add_u32 v8, v{li}, 4, v8'); a(f'v_sub_u32 v8, s48, v8')
    a(f'v_cvt_pk_bf16_f32 v48, v{k1+3}, v{k1+2}')
    a(f'v_cvt_pk_bf16_f32 v49, v{k1+2}, v{k1+2}')
    a(f'v_cvt_pk_bf16_f32 v50, v{k1+1}, v{k1}')
    a(f'v_cvt_pk_bf16_f32 v51, v{k1}, v{k1}')
    a(f'v_cvt_pk_bf16_f32 v52, v{k1+2}, v{k1+1}')
    a('s_mov_b32 exec_hi, 0')
    a(f'ds_write_b128 v8, {vr(48,4)} offset:{DA - 2048 + 2*(542-256-6)}')
    a(f'ds_write_b16 v8, v48 offset:{DB - 2048 + 2*(543-256-6)}')
    a(f'ds_write_b32 v8, v49 offset:{DB - 2048 + 2*(543-256-5)}')
    a(f'ds_write_b32 v8, v52 offset:{DB - 2048 + 2*(543-256-3)}')
    a(f'ds_write_b32 v8, v51 offset:{DB - 2048 + 2*(543-256-1)}')
    a(f'ds_write_b16 v8, v51 offset:{DB - 2048 + 2*(543-256+1)}')
    a('s_mov_b64 exec, -1')
    a(f'v_lshlrev_b32 v9, 7, v{lg}'); a(f'v_lshl_add_u32 v9, v{li}, 2, v9'); a(f'v_sub_u32 v9, s48, v9')
    a(f'v_readlane_b32 s47, v48, 63')
    a('s_mov_b32 exec_lo, 0')
    a(f'ds_write_b32 v9, v50 offset:{T2 - 2048 + 2*(320-130+128)}')
    a(f'ds_write_b32 v9, v48 offset:{T2 - 2048 + 2*(320-162+128)}')
    a('s_mov_b64 exec, -1')
    a('s_pack_ll_b32_b16 s47, s47, s47')
    a(f'v_and_b32 v8, 1, v{lg}'); a(f'v_lshlrev_b32 v8, 3, v8'); a(f'v_lshl_add_u32 v8, v{li}, 4, v8')
    a(f'v_lshrrev_b32 v9, 1, v{lg}'); a(f'v_lshl_add_u32 v8, v9, 8, v8'); a(f'v_sub_u32 v8, s48, v8')
    a(f'v_cvt_pk_bf16_f32 v54, v{k0+3}, v{k0+2}')
    a(f'v_cvt_pk_bf16_f32 v55, v{k0+1}, v{k0}')
    a(f'v_cvt_pk_bf16_f32 v56, v{k0+2}, v{k0+1}')
    a(f'ds_write_b64 v8, {vr(54,2)} offset:{DB - 2048 + 2*(543-3)}')
    a(f'ds_write_b16 v8, v54 offset:{DA - 2048 + 2*(542-3)}')
    a(f'ds_write_b32 v8, v56 offset:{DA - 2048 + 2*(542-2)}')
    a(f'ds_write_b16_d16_hi v8, v55 offset:{DA - 2048 + 2*542}')
    for q in range(4): a(f'v_and_b32 v{breg["bd"]+q}, s47, v{breg["bd"]+q}')
    a(f'v_lshlrev_b32 v9, 5, v{li}'); a(f'v_lshl_add_u32 v9, v{lg}, 3, v9'); a(f'v_sub_u32 v9, s48, v9')
    a(f'v_cvt_pk_bf16_f32 v58, v{k2+3}, v{k2+2}')
    a(f'v_cvt_pk_bf16_f32 v59, v{k2+1}, v{k2}')
    a(f'v_cvt_pk_bf16_f32 v60, v{k2}, v{k2}')
    a(f'v_mov_b32 v10, s{sLB}')
    a(f'v_mov_b32 v61, v60')
    a('s_mov_b32 exec_lo, 0x00ff00ff'); a('s_mov_b32 exec_hi, 0x00ff00ff')
    a(f'ds_write_b64 v9, {vr(58,2)} offset:{T3 - 2048 + 2*124}')
    a('s_mov_b64 exec, 0x100')
    a(f'ds_write_b64 v10, {vr(60,2)} offset:{DA + 2*28}')
    a(f'ds_write_b16 v10, v60 offset:{DB + 2*29}')
    a(f'ds_write_b32 v10, v60 offset:{DB + 2*30}')
    a(f'ds_write_b16 v10, v60 offset:{DB + 2*32}')
    a('s_mov_b64 exec, -1')
    AF = 48
    K2 = 116
    K3 = 140
    D = 156
    UF = 188
    WT = 16
    WF = [208, 212, 216]
    OUT = 40
    a(f'v_and_b32 v8, 1, v{li}'); a(f'v_mul_u32_u24 v8, {DB - DA}, v8')
    a(f'v_and_b32 v9, 14, v{li}'); a(f'v_lshlrev_b32 v9, 1, v9'); a(f'v_sub_u32 v8, v8, v9')
    a(f'v_lshl_add_u32 v8, v{lg}, 4, v8')
    a(f'v_add_u32 v8, s{sLB}, v8')
    a(f'v_add_u32 v9, {DA + 2*(526 - 512)}, v8')
    a(f'v_add_u32 v8, {DA + 2*(526 - 480)}, v8')
    a(f'v_lshlrev_b32 v10, 3, v{li}'); a(f'v_lshlrev_b32 v11, 5, v{lg}'); a(f'v_sub_u32 v10, v11, v10'); a(f'v_add_u32 v10, s48, v10')
    a(f'v_lshlrev_b32 v11, 2, v{li}'); a(f'v_lshlrev_b32 v12, 4, v{lg}'); a(f'v_sub_u32 v11, v12, v11'); a(f'v_add_u32 v11, s{sLB}, v11')
    a(f'v_add_u32 v11, {T3 + 2*(254 - 224)}, v11')
    a(f'v_lshlrev_b32 v12, 5, v{li}'); a(f'v_lshl_add_u32 v12, v{lg}, 4, v12'); a(f'v_add_u32 v12, s{sLB}, v12')
    def rdA(k):
        if k == 16: return [f'ds_read2_b32 {vr(AF+64,2)}, v9 offset0:0 offset1:1', f'ds_read2_b32 {vr(AF+66,2)}, v9 offset0:2 offset1:3']
        o = 16*(15 - k)
        return [f'ds_read2_b32 {vr(AF+4*k,2)}, v8 offset0:{o} offset1:{o+1}', f'ds_read2_b32 {vr(AF+4*k+2,2)}, v8 offset0:{o+2} offset1:{o+3}']
    for k in (0, 8, 16, 1, 9, 2, 10, 3, 11, 4, 12, 5, 13, 6, 14, 7, 15):
        for s in rdA(k): a(s)
    for dl in (2, 3, 4):
        for h in range(2):
            r = K2 + 4*((dl-2)*2 + h); o = T2 - 2048 + 2*(316 - 64*dl + 8*h)
            a(f'ds_read_b64 {vr(r,2)}, v10 offset:{o}'); a(f'ds_read_b64 {vr(r+2,2)}, v10 offset:{o+8}')
    for dl in (4, 5, 6, 7):
        r = K3 + 4*(dl-4); o = 16*(7 - dl)
        a(f'ds_read2_b32 {vr(r,2)}, v11 offset0:{o} offset1:{o+1}'); a(f'ds_read2_b32 {vr(r+2,2)}, v11 offset0:{o+2} offset1:{o+3}')
    a(f'v_and_b32 v13, 1, v{lg}'); a(f'v_lshlrev_b32 v13, 9, v13')
    a(f'v_lshrrev_b32 v14, 2, v{li}'); a(f'v_lshl_add_u32 v13, v14, 7, v13')
    a(f'v_lshrrev_b32 v14, 1, v{lg}'); a(f'v_lshl_add_u32 v13, v14, 6, v13')
    a(f'v_and_b32 v14, 3, v{li}'); a(f'v_lshl_add_u32 v13, v14, 4, v13')
    a(f's_lshl_b32 s{sT2}, s{sT}, 12')
    if WS_A: a(f's_add_u32 s{sT2}, s{sT2}, {WS_A}')
    a(f'v_add_u32 v13, s{sT2}, v13')
    a.wait(lg=0)
    a('s_barrier')
    st.mark(a, 4)
    touch_mid(a, s_wave)
    seq = []
    for m in range(8):
        if m <= 5: seq.append((m, -1))
        seq += [(m, b) for b in range(8)]
    NR = 5
    slot = {f: UF + 4*(i % NR) for i, f in enumerate(seq)}
    issued = [0]
    def fetch(upto):
        while issued[0] <= min(upto, len(seq) - 1):
            m, b = seq[issued[0]]
            off = 256*m - 24 if b < 0 else 256*m - 16 - 32*b
            a(f'ds_read_b128 {vr(slot[(m,b)],4)}, v12 offset:{UDAT + 2*off}')
            issued[0] += 1
    touched = set()
    def acc(n, A, B):
        a(f'v_mfma_f32_16x16x32_bf16 {vr(D+4*n,4)}, {vr(A,4)}, {vr(B,4)}, {vr(D+4*n,4) if n in touched else 0}')
        touched.add(n)
    def wt(i, U, band): a(f'v_mfma_f32_16x16x32_bf16 {vr(WT+4*i,4)}, {vr(U,4)}, {vr(breg[band],4)}, 0')
    fetch(NR - 2)
    pend_out = []
    for m in range(8):
        fill = list(pend_out); pend_out = []
        if m <= 5:
            i = seq.index((m, -1)); fetch(i + NR - 2)
            U = slot[(m, -1)]
            wt(0, U, 'w5')
            if m <= 3: wt(4, U, 'w9')
            fetch(i + NR - 1)
            U = slot[(m, 0)]
            wt(1, U, 'w3a'); wt(2, U, 'w5'); wt(3, U, 'w3b')
            if m <= 3: wt(5, U, 'w7')
            cv = []
            for h in range(2):
                for jj in range(2):
                    j = 2*h + jj
                    cv.append(f'v_cvt_pk_bf16_f32 v{WF[h]+2*jj}, v{WT+j}, v{WT+4+j}')
                    cv.append(f'v_cvt_pk_bf16_f32 v{WF[h]+2*jj+1}, v{WT+8+j}, v{WT+12+j}')
            if m <= 3:
                for j in range(4): cv.append(f'v_cvt_pk_bf16_f32 v{WF[2]+j}, v{WT+16+j}, v{WT+20+j}')
            fill = fill + cv
        for b in range(8):
            i = seq.index((m, b)); fetch(i + NR - 2)
            U = slot[(m, b)]
            acc(m, AF + 4*b, U)
            if b >= 2 or m > 5:
                for _ in range(2):
                    if fill: a(fill.pop(0))
            if m + 1 < 8: acc(m + 1, AF + 4*(8 + b), U)
            if b >= 2 or m > 5:
                for _ in range(2):
                    if fill: a(fill.pop(0))
            if b == 0:
                if m + 2 < 8: acc(m + 2, AF + 64, U)
                if m + 4 < 8: acc(m + 4, breg['bd'], U)
        assert not fill, fill
        if m <= 5:
            for dl in (2, 3, 4):
                if m + dl < 8:
                    for h in range(2): acc(m + dl, WF[h], K2 + 4*((dl-2)*2 + h))
        if m <= 3:
            for dl in range(4, 8 - m): acc(m + dl, WF[2], K3 + 4*(dl - 4))
        if m & 1:
            o = OUT + 4*((m >> 1) & 1); d0 = D + 4*(m - 1); d1 = D + 4*m
            pend_out = [f'v_cvt_pk_bf16_f32 v{o}, v{d0}, v{d0+1}', f'v_cvt_pk_bf16_f32 v{o+1}, v{d0+2}, v{d0+3}',
                        f'v_cvt_pk_bf16_f32 v{o+2}, v{d1}, v{d1+1}', f'v_cvt_pk_bf16_f32 v{o+3}, v{d1+2}, v{d1+3}',
                        f'v_permlane16_swap_b32 v{o}, v{o+2}', f'v_permlane16_swap_b32 v{o+1}, v{o+3}',
                        f'global_store_dwordx4 v13, {vr(o,4)}, {sr(P["ws"],2)} offset:{512*(m-1)} {store_flags}']
    for s in pend_out: a(s)
    st.mark(a, 5)
    a(f'v_lshlrev_b32 v4, 2, v{lane}')
    check_ann(a, 4, 6)
```

```python
from common import *

WOI = 0
XCH = 143360

def wo_addr(a):
    srd(a, 28, P['wo'], 819200)
    a(f's_mul_i32 s46, s{S_CT}, 160')
    for i in range(5):
        a(f'v_add_u32 v4, {64*i}, v1')
        a('v_mul_u32_u24 v5, 6554, v4'); a('v_lshrrev_b32 v5, 16, v5')
        a('v_mul_u32_u24 v6, 10, v5'); a('v_sub_u32 v6, v4, v6')
        a('v_mul_u32_u24 v5, 1280, v5'); a('v_lshlrev_b32 v6, 4, v6'); a(f'v_add3_u32 v{12+i}, v6, v5, s46')

def wo_issue(a, s_i, n, step):
    a(f's_mul_i32 s45, s{s_i}, {32*1280}'); a(f's_mul_i32 s44, s{s_i}, 5120')
    for gi in range(n):
        for i in range(5):
            a(f's_add_u32 m0, s44, {WOI + gi*step*5120 + 1024*i}')
            a(f'buffer_load_dwordx4 v{12+i}, s[28:31], s45 offen lds')
        if gi + 1 < n: a(f's_add_u32 s45, s45, {step*32*1280}')

def f_loader(a, st):
    SA = 32
    srd(a, SA, P['ws'], WS_A + 2621440)
    a(f's_mul_i32 s45, s{S_CT}, 1280'); a(f's_add_u32 s45, s45, {WS_FA}')
    a('v_min_u32 v4, 9, v1'); a('v_lshl_add_u32 v4, v4, 7, s45')
    a('v_lshrrev_b32 v2, 3, v1'); a('v_lshlrev_b32 v2, 12, v2'); a('v_and_b32 v3, 7, v1'); a('v_lshl_add_u32 v2, v3, 4, v2')
    a(f's_mul_i32 s45, s{S_CT}, {80*4096}'); a(f's_lshl_b32 s44, s{S_RT}, 7'); a('s_add_u32 s45, s45, s44')
    a(f's_mul_i32 s44, s{S_PW}, {20*4096}'); a('s_add_u32 s45, s45, s44')
    if WS_A: a(f's_add_u32 s45, s45, {WS_A}')
    a(f's_mul_i32 s44, s{S_PW}, 2560'); a(f's_add_u32 s44, s44, s{S_AI}')
    poll_flag(a, 4, 5)
    st.mark(a, 9)
    for i in range(3):
        a(f's_add_u32 m0, s44, {1024*i}')
        if i == 2: a('s_mov_b32 exec_hi, 0')
        a(f'buffer_load_dwordx4 v2, {sr(SA,4)}, s45 offen sc1 lds')
        if i < 2: a(f's_add_u32 s45, s45, {8*4096}')
    a('s_mov_b32 exec_hi, -1')
    a.wait(vm=0)
    st.mark(a, 10)
    a('s_barrier')

def f_compute(a, st):
    li, lg = 2, 3
    s_w = S_WAVE
    OF = 112
    a('v_and_b32 v1, 63, v0'); a(f'v_and_b32 v{li}, 15, v0'); a(f'v_bfe_u32 v{lg}, v0, 4, 2')
    a(f's_and_b32 s40, s{s_w}, 1'); a(f's_lshr_b32 s41, s{s_w}, 1')
    a(f's_lshl_b32 s42, s{S_RT}, 1'); a('s_add_u32 s42, s42, s40'); a('s_lshl_b32 s42, s42, 1'); a('s_add_u32 s42, s42, s41')
    a(f's_mul_i32 s42, s42, {16*1280}'); a(f's_add_u32 s42, s42, {WS_O + 2560}')
    a('v_lshl_add_u32 v14, v1, 4, s42')
    a(f'v_mul_u32_u24 v15, 1280, v{lg}'); a(f'v_lshl_add_u32 v15, v{li}, 4, v15'); a('v_add_u32 v15, s42, v15')
    a('s_lshl_b32 s43, s40, 1'); a('s_add_u32 s43, s43, s41')
    a(f's_lshl_b32 s44, s{S_RT}, 2'); a('s_add_u32 s44, s44, s43'); a('s_lshl_b32 s45, s44, 8'); a(f's_add_u32 s45, s45, {WS_G}')
    a(f'v_lshl_add_u32 v16, v{li}, 4, s45')
    a(f's_mul_i32 s45, s{S_RT}, {32*FOS}'); a(f's_add_u32 s45, s45, {WS_FO}')
    a('v_and_b32 v17, 31, v1'); a(f'v_mul_u32_u24 v17, {FOS}, v17'); a('v_add_u32 v17, s45, v17')
    a(f'v_lshrrev_b32 v8, 2, v{li}'); a(f'v_and_b32 v9, 3, v{li}'); a('v_mul_u32_u24 v10, 40, v9')
    a(f's_mul_i32 s45, s41, {320*160}')
    a(f'v_lshl_add_u32 v11, v{lg}, 2, v8'); a('v_mul_u32_u24 v11, 160, v11'); a('v_add3_u32 v4, v11, v10, s45')
    a(f'v_mul_u32_u24 v11, 20, v{lg}'); a('v_add_u32 v11, v11, v8'); a('v_mul_u32_u24 v12, 160, v11'); a('v_add3_u32 v5, v12, v10, s45')
    a('v_lshlrev_b32 v11, 7, v11'); a('v_lshrrev_b32 v12, 1, v9'); a('v_lshl_add_u32 v11, v12, 6, v11'); a('v_and_b32 v12, 1, v9'); a('v_lshl_add_u32 v11, v12, 3, v11')
    a('s_lshl_b32 s45, s43, 4'); a(f's_add_u32 s45, s45, s{S_AI}'); a('v_add_u32 v6, s45, v11')
    a(f's_mul_i32 s45, s{s_w}, 5120'); a(f's_add_u32 s45, s45, {XCH}'); a('v_lshl_add_u32 v7, v1, 4, s45')
    a(f's_xor_b32 s45, s{s_w}, 2'); a('s_mul_i32 s45, s45, 5120'); a(f's_add_u32 s45, s45, {XCH}'); a('v_lshl_add_u32 v8, v1, 4, s45')
    a(f's_mul_i32 s45, s44, {16*1280}'); a(f's_mul_i32 s46, s{S_CT}, 160'); a('s_add_u32 s45, s45, s46')
    a(f'v_mul_u32_u24 v9, 1280, v{li}'); a(f'v_mul_u32_u24 v10, 40, v{lg}'); a('v_add3_u32 v9, v9, v10, s45')
    ACC = 24
    WF = 64; NW = 6
    def rdw(n):
        ks, T = divmod(n, 5); r = WF + 4*(n % NW)
        if ks < 8: base, o0, o1 = 4, 40*ks*160, (40*ks + 20)*160
        else: base, o0, o1 = 5, (160*(ks - 8) + 16)*160, (160*(ks - 8) + 96)*160
        return [f'ds_read_b64_tr_b16 {vr(r,2)}, v{base} offset:{o0 + 8*T}', f'ds_read_b64_tr_b16 {vr(r+2,2)}, v{base} offset:{o1 + 8*T}']
    PD = NW - 2
    for n in range(PD):
        for s in rdw(n): a(s)
    poll_flag(a, 17, 18)
    st.mark(a, 8)
    for h in range(16):
        if h and h % 4 == 0: a('v_add_u32 v14, 5120, v14')
        a(f'global_load_dwordx4 {vr(OF + 4*h, 4)}, v14, {sr(P["ws"],2)} offset:{1280*(h % 4) - 2560} sc1')
    for k in range(4):
        if k: a('v_add_u32 v15, 5120, v15')
        a(f'global_load_dwordx4 {vr(OF + 64 + 4*k, 4)}, v15, {sr(P["ws"],2)} offset:{1024 - 2560} sc1')
    a(f'global_load_dwordx4 v[20:23], v16, {sr(P["ws"],2)} sc1')
    def swap(ks):
        x = OF + 8*ks
        a(f'v_swap_b32 v{x+2}, v{x+4}'); a(f'v_swap_b32 v{x+3}, v{x+5}')
    swap(0)
    for n in range(50):
        ks, T = divmod(n, 5)
        rw = rdw(n + PD) if n + PD < 50 else []
        for u in range(2):
            d = ACC + 20*u + 4*T
            a(f'v_mfma_f32_16x16x32_bf16 {vr(d,4)}, {vr(WF + 4*(n % NW), 4)}, {vr(OF + 8*ks + 4*u, 4)}, {vr(d,4) if ks else 0}')
            if rw: a(rw[u])
        if T == 3 and ks < 9: swap(ks + 1)
    st.mark(a, 9)
    a('v_add_f32 v20, v20, v21'); a('v_add_f32 v22, v22, v23'); a('v_add_f32 v20, v20, v22')
    a('v_mul_f32 v20, 0xbfb8aa3b, v20'); a('v_exp_f32 v20, v20'); a('v_add_f32 v20, 1.0, v20'); a('v_rcp_f32 v20, v20')
    L1, L2 = a.newlabel('L_fx'), a.newlabel('L_fx')
    AF, RX, O = 88, 64, 100
    def tail(keep, give):
        for T in range(5): a(f'ds_write_b128 v7, {vr(give + 4*T, 4)} offset:{1024*T}')
        a.wait(lg=0); a('s_barrier')
        for T in range(5):
            a(f'ds_read_b128 {vr(RX + 4*T, 4)}, v8 offset:{1024*T}'); a(f'ds_read_b64_tr_b16 {vr(AF + 2*T, 2)}, v6 offset:{512*T}')
        a('s_mov_b32 s45, 0xffff0000')
        for T in range(5):
            for q in range(2):
                b = keep + 4*T + 2*q; t = give + 2*((2*T + q) & 3)
                a(f'v_pk_add_f32 {vr(b,2)}, {vr(b,2)}, {vr(RX + 4*T + 2*q,2)}')
                a(f'v_lshlrev_b32 v{t}, 16, v{AF + 2*T + q}'); a(f'v_and_b32 v{t+1}, s45, v{AF + 2*T + q}')
                a(f'v_pk_add_f32 {vr(t,2)}, {vr(t,2)}, {vr(b,2)} neg_lo:[0,1] neg_hi:[0,1]')
                a(f'v_pk_fma_f32 {vr(b,2)}, {vr(t,2)}, v[20:21], {vr(b,2)} op_sel_hi:[1,0,1]')
                a(f'v_cvt_pk_bf16_f32 v{O + 2*T + q}, v{b}, v{b+1}')
            if T == 1: a(f'global_store_dwordx4 v9, {vr(O,4)}, {sr(P["out"],2)}')
            if T == 3: a(f'global_store_dwordx4 v9, {vr(O+4,4)}, {sr(P["out"],2)} offset:16')
            if T == 4: a(f'global_store_dwordx2 v9, {vr(O+8,2)}, {sr(P["out"],2)} offset:32')
    a('s_cmp_eq_u32 s41, 0'); a(f's_cbranch_scc1 {L1}')
    tail(ACC + 20, ACC)
    a(f's_branch {L2}')
    a.label(L1); a.forget()
    tail(ACC, ACC + 20)
    a.label(L2)
    st.mark(a, 10)
```

```python
from common import *
import final

XS, WSL = 16384, 20480
XR, WR = 0, 4*XS
WPHI = WR + 4*WSL
ZERO = WPHI + 4096
GATE = ZERO + 1024
PHI = 102400
VFR = PHI + 40960

def kv_producer(a, st):
    s_j, s_R, s_rot, s_pw = S_J, S_IDX, S_ROT, S_PW
    SX, SW, SP = 28, 32, 36
    a('v_and_b32 v1, 63, v0')
    a('v_lshrrev_b32 v2, 3, v1'); a('v_mul_u32_u24 v2, 1280, v2')
    a('v_lshrrev_b32 v3, 4, v1'); a('v_and_b32 v4, 7, v1'); a('v_xor_b32 v3, v3, v4')
    a('v_lshl_add_u32 v10, v3, 4, v2'); a('v_xor_b32 v11, 64, v10')
    a(f's_lshl_b32 s40, s{s_R}, 2'); a(f's_add_u32 s40, s40, s{s_pw}'); a(f's_mul_i32 s40, s40, {32*1280}')
    a(f's_lshl_b32 s41, s{s_pw}, 12')
    a(f's_mul_i32 s42, s{s_pw}, 5120'); a(f's_add_u32 s42, s42, {WR}')
    a(f's_mov_b32 s43, s{s_rot}'); a(f's_mov_b32 s44, s{s_rot}')
    a(f's_mul_i32 s46, s{s_pw}, {16*3840}'); a(f's_mul_i32 s47, s{s_j}, 160'); a('s_add_u32 s46, s46, s47'); a('s_add_u32 s46, s46, 1280')
    for i in range(5):
        a(f'v_add_u32 v2, {64*i}, v1')
        a('v_mul_u32_u24 v3, 6554, v2'); a('v_lshrrev_b32 v3, 16, v3')
        a('v_mul_u32_u24 v4, 10, v3'); a('v_sub_u32 v4, v2, v4')
        a('v_lshrrev_b32 v5, 1, v3')
        a('v_lshrrev_b32 v6, 4, v3'); a('v_xor_b32 v6, v6, v3'); a('v_and_b32 v6, 1, v6')
        a('v_mul_u32_u24 v5, 3840, v5'); a('v_mul_u32_u24 v6, 1280, v6')
        a('v_lshl_add_u32 v4, v4, 4, v5'); a(f'v_add3_u32 v{12+i}, v4, v6, s46')
    a.wait(lg=0)
    srd(a, SX, P['u'], 2621440); srd(a, SW, P['wqkv'], 2457600)
    st.mark(a, 1)
    order = []
    def X(t):
        a('s_lshl_b32 s45, s43, 7'); a('s_add_u32 s45, s45, s40')
        for i in range(4):
            a(f's_add_u32 m0, s41, {XR + (t % 4)*XS + 1024*i}')
            if i: a(f's_add_u32 s45, s45, 10240')
            a(f'buffer_load_dwordx4 v{10 + (i & 1)}, {sr(SX,4)}, s45 offen lds'); order.append(t)
        a('s_add_u32 s43, s43, 1'); a(f's_cmp_eq_u32 s43, {NST}'); a('s_cselect_b32 s43, 0, s43')
    def Wt(t):
        a(f's_mul_i32 s45, s44, {64*3840}')
        for i in range(5):
            a(f's_add_u32 m0, s42, {(t % 4)*WSL + 1024*i}')
            a(f'buffer_load_dwordx4 v{12+i}, {sr(SW,4)}, s45 offen lds'); order.append(t)
        a('s_add_u32 s44, s44, 1'); a(f's_cmp_eq_u32 s44, {NST}'); a('s_cselect_b32 s44, 0, s44')
    X(0); Wt(0)
    srd(a, SP, P['gate'], 1280)
    a('v_lshlrev_b32 v2, 4, v1'); a(f's_lshl_b32 s47, s{s_pw}, 10')
    a(f's_add_u32 m0, s47, {GATE}')
    a(f'buffer_load_dwordx4 v2, {sr(SP,4)}, s47 offen lds'); order.append(0)
    PRO = env('PRO', 1)
    X(1)
    if PRO == 0: Wt(1); X(2)
    if PRO == 2: Wt(1)
    a('v_and_b32 v4, 15, v1'); a('v_lshrrev_b32 v5, 4, v1')
    a('v_lshrrev_b32 v6, 1, v4'); a('v_xor_b32 v6, v6, v5'); a('v_lshlrev_b32 v6, 4, v6'); a('v_lshl_add_u32 v6, v4, 7, v6')
    a(f's_lshl_b32 s48, s{s_j}, 11'); a('v_add_u32 v30, s48, v6'); a('v_xor_b32 v31, 64, v30')
    a(f'v_lshlrev_b32 v32, 4, v5'); a(f'v_add_u32 v32, {GATE}, v32')
    a(f's_mov_b32 s49, s{s_rot}')
    for k in range(4): a(f'v_mov_b32 v{52+k}, 0')
    a(f'v_add_u32 v3, {ZERO}, v2'); a(f'ds_write_b128 v3, v[52:55]')
    nx, nw = (3, 2) if PRO == 0 else ((2, 1) if PRO == 1 else (2, 2))
    for s in range(NST):
        last = max(i for i, o in enumerate(order) if o <= s)
        a.wait(vm=len(order) - 1 - last, lg=0 if s == 0 else None)
        a('s_barrier')
        if s == 0: st.mark(a, 2)
        budget = env('RAMP', 3)
        while budget > 0:
            cw = nw < NST and nw <= s + 2; cx = nx < NST and nx <= s + 3
            if cw and (nw < nx or not cx): Wt(nw); nw += 1
            elif cx: X(nx); nx += 1
            else: break
            budget -= 1
        if s == 1:
            srd(a, SP, P['wphi'], 25600)
            a(f's_mul_i32 s45, s{s_j}, 3200'); a('s_add_u32 s45, s45, s47')
            a(f's_add_u32 m0, s47, {WPHI}')
            a(f'buffer_load_dwordx4 v2, {sr(SP,4)}, s45 offen lds'); order.append(4)
        L = a.newlabel('L_gate')
        a(f's_cmp_lg_u32 s{s_pw}, {s % 4}'); a(f's_cbranch_scc1 {L}')
        a('s_lshl_b32 s48, s49, 7'); a('v_add_u32 v33, s48, v32')
        for ks in range(2):
            a(f'ds_read_b128 {vr(36 + 8*ks, 4)}, v{30 + ks} offset:{XR + (s % 4)*XS}')
            a(f'ds_read_b128 {vr(40 + 8*ks, 4)}, v33 offset:{64*ks}')
        for ks in range(2): a(f'v_mfma_f32_16x16x32_bf16 v[52:55], {vr(40 + 8*ks, 4)}, {vr(36 + 8*ks, 4)}, v[52:55]')
        a.label(L)
        a('s_add_u32 s49, s49, 1'); a(f's_cmp_eq_u32 s49, {NST}'); a('s_cselect_b32 s49, 0, s49')
        if s == NST - 2: W3 = o_weights(a)
    assert nx == NST and nw == NST
    a.vm = []
    a(f's_lshl_b32 s47, s{s_R}, 3'); a(f's_add_u32 s47, s47, s{s_j}'); a('s_lshl_b32 s47, s47, 8')
    a(f's_lshl_b32 s45, s{s_pw}, 2'); a('s_add_u32 s47, s47, s45'); a(f's_add_u32 s47, s47, {WS_G}')
    a('v_and_b32 v4, 15, v1'); a('v_lshl_add_u32 v6, v4, 4, s47')
    a('s_mov_b64 exec, 0xffff')
    a('s_nop 7')
    a(f'global_store_dword v6, v52, {sr(P["ws"],2)} sc1')
    a('s_mov_b64 exec, -1')
    final.wo_addr(a)
    a.wait(lg=0); a('s_barrier')
    st.mark(a, 3)
    final.wo_issue(a, S_PW, 5, 4)
    a.wait(vm=25); a('s_barrier')
    st.mark(a, 4)
    o_stage(a, st, W3)

def o_weights(a):
    li, lg = 2, 3
    WA, WB, WBb = 60, 64, 68
    a(f'v_and_b32 v{li}, 15, v0'); a(f'v_bfe_u32 v{lg}, v0, 4, 2')
    a(f's_and_b32 s50, s{S_IDX}, 3'); a('s_mul_i32 s48, s50, 800'); a(f's_add_u32 s48, s48, {WPHI}')
    a(f'v_lshrrev_b32 v20, 2, v{li}'); a(f'v_and_b32 v21, 3, v{li}')
    a(f'v_lshl_add_u32 v22, v{lg}, 2, v20'); a('v_mul_u32_u24 v22, 40, v22'); a('v_add_u32 v22, s48, v22')
    a('v_mul_u32_u24 v23, 40, v20'); a('v_add_u32 v23, s48, v23'); a('v_add_u32 v23, 640, v23')
    a(f'v_mov_b32 v24, {ZERO}'); a(f'v_cmp_eq_u32 vcc, s50, v{lg}'); a('v_cndmask_b32 v23, v24, v23, vcc')
    a('v_lshl_add_u32 v24, v21, 3, v22'); a('v_lshl_add_u32 v25, v21, 3, v23')
    a(f'ds_read_b64_tr_b16 {vr(WA,2)}, v24'); a(f'ds_read_b64_tr_b16 {vr(WA+2,2)}, v25')
    a(f'ds_read_b64_tr_b16 {vr(WB,2)}, v22 offset:32'); a(f'ds_read_b64_tr_b16 {vr(WB+2,2)}, v23 offset:32')
    a('v_and_b32 v24, 1, v20'); a('v_mul_u32_u24 v24, 0x8000, v24'); a('v_lshl_or_b32 v24, v24, 16, v24')
    a(f'v_cmp_gt_u32 vcc, 8, v{li}')
    for q in range(4):
        a(f'v_xor_b32 v{WB+q}, v24, v{WB+q}')
        a(f'v_cndmask_b32 v{WBb+q}, v{WB+q}, 0, vcc'); a(f'v_cndmask_b32 v{WB+q}, 0, v{WB+q}, vcc')
    return WA, WB, WBb

def phi_pair(W3, QX, T, PA):
    WA, WB, WBb = W3; QY = QX + 4
    A0, A1, B = T, T + 4, T + 8
    E = [T + 12, T + 16, T + 20, T + 24, B]
    c = [T + 28, T + 30, T + 32, T + 34]; Z = T + 36
    o = []
    o += [f'v_swap_b32 v{QX+2}, v{QY}', f'v_swap_b32 v{QX+3}, v{QY+1}']
    o += [f'v_mfma_f32_16x16x32_bf16 {vr(A0,4)}, {vr(WA,4)}, {vr(QX,4)}, 0', f'v_mfma_f32_16x16x32_bf16 {vr(A1,4)}, {vr(WA,4)}, {vr(QY,4)}, 0',
          f'v_mfma_f32_16x16x32_bf16 {vr(B,4)}, {vr(WB,4)}, {vr(QX,4)}, 0', f'v_mfma_f32_16x16x32_bf16 {vr(B,4)}, {vr(WBb,4)}, {vr(QY,4)}, {vr(B,4)}']
    def spread(op2, zin):
        return [f'v_permlane32_swap_b32 v{c[0]}, v{c[2]}', f'v_permlane32_swap_b32 v{c[1]}, v{c[3]}',
                f'{op2} v{c[0]}, v{c[0]}, v{c[2]}', f'{op2} v{c[1]}, v{c[1]}, v{c[3]}',
                f'v_permlane16_swap_b32 v{c[0]}, v{c[1]}',
                f'{op2} v{Z}, v{Z}, v{c[0]}', f'{op2} v{Z}, v{Z}, v{c[1]}', zin,
                f'v_mov_b32 v{c[0]}, v{Z}', f'v_mov_b32 v{c[1]}, v{Z}',
                f'v_permlane16_swap_b32 v{c[0]}, v{c[1]}',
                f'v_mov_b32 v{c[2]}, v{c[0]}', f'v_mov_b32 v{c[3]}, v{c[1]}',
                f'v_permlane32_swap_b32 v{c[0]}, v{c[2]}', f'v_permlane32_swap_b32 v{c[1]}, v{c[3]}']
    for k, (x, sg) in enumerate([(A0, ''), (A0, '-'), (A1, ''), (A1, '-')]):
        o += [f'v_max3_f32 v{c[k]}, {sg}v{x}, {sg}v{x+1}, {sg}v{x+2}', f'v_max_f32 v{c[k]}, {sg}v{x+3}, v{c[k]}']
    o += [f'v_max3_f32 v{Z}, v{B}, v{B+1}, v{B+2}', f'v_max_f32 v{Z}, v{B+3}, v{Z}']
    o += spread('v_max_f32', f'v_mul_f32 v{Z}, s42, v{Z}')
    for k, (x, neg, m) in enumerate([(A0, 0, c[0]), (A0, 1, c[1]), (A1, 0, c[2]), (A1, 1, c[3]), (B, 0, Z)]):
        for q in (0, 2):
            o.append(f'v_pk_fma_f32 {vr(E[k]+q,2)}, {vr(x+q,2)}, s[42:43], {vr(m,2)} op_sel_hi:[1,1,0] neg_lo:[{neg},0,1] neg_hi:[{neg},0,1]')
    for k in range(5):
        for q in range(4): o.append(f'v_exp_f32 v{E[k]+q}, v{E[k]+q}')
    for k, m in enumerate(c + [Z]): o.append(f'v_pk_add_f32 {vr(m,2)}, {vr(E[k],2)}, {vr(E[k]+2,2)}')
    for k, m in enumerate(c + [Z]): o.append(f'v_add_f32 v{m}, v{m}, v{m+1}')
    o += spread('v_add_f32', f'v_rcp_f32 v{Z}, v{Z}')
    for k, m in enumerate(c + [Z]):
        for q in (0, 2): o.append(f'v_pk_mul_f32 {vr(E[k]+q,2)}, {vr(E[k]+q,2)}, {vr(m,2)} op_sel_hi:[1,0]')
    for k in range(5):
        for q in range(2): o.append(f'v_cvt_pk_bf16_f32 v{PA + 2*k + q}, v{E[k] + 2*q}, v{E[k] + 2*q + 1}')
    return o

def o_stage(a, st, W3):
    li, lg = 2, 3
    a(f'v_and_b32 v{li}, 15, v0'); a(f'v_bfe_u32 v{lg}, v0, 4, 2')
    a(f's_and_b32 s50, s{S_IDX}, 3')
    a(f's_andn2_b32 s51, s{S_IDX}, 3'); a(f's_add_u32 s51, s51, s{S_PW}'); a('s_lshl_b32 s51, s51, 2')
    a(f's_lshl_b32 s40, s{S_J}, 9'); a(f's_add_u32 s40, s40, {WS_FL + 256}')
    a('v_min_u32 v4, 23, v1'); a('v_lshl_add_u32 v4, v4, 2, s40')
    a(f's_lshl_b32 s40, s{S_J}, 6'); a('s_add_u32 s40, s40, s51'); a('s_mul_i32 s40, s40, 5120'); a(f's_add_u32 s40, s40, {WS_Q}')
    a('s_lshl_b32 s41, s50, 10'); a('s_add_u32 s41, s41, s40'); a('s_add_u32 s40, s40, 4096')
    a('v_lshl_add_u32 v5, v1, 4, s41'); a('v_lshl_add_u32 v6, v1, 4, s40')
    poll_flag(a, 4, 7)
    st.mark(a, 5)
    QF, PA, T = 72, 104, 144
    for p in range(4):
        a(f'global_load_dwordx4 {vr(QF + 8*p, 4)}, v5, {sr(P["ws"],2)} sc1'); a(f'global_load_dwordx4 {vr(QF + 8*p + 4, 4)}, v6, {sr(P["ws"],2)} sc1')
        if p < 3: a('v_add_u32 v5, 5120, v5'); a('v_add_u32 v6, 5120, v6')
    a('s_mul_i32 s52, s50, 10240'); a(f's_add_u32 s52, s52, {PHI}')
    a('v_lshl_add_u32 v4, v1, 3, s52')
    a(f'v_bfe_u32 v8, v{li}, 2, 1'); a(f'v_and_b32 v9, 1, v{li}'); a('v_lshl_add_u32 v8, v8, 1, v9')
    a(f'v_and_b32 v9, 2, v{li}'); a('v_cmp_eq_u32 vcc, 0, v9')
    a('v_cndmask_b32 v8, 12, v8, vcc'); a(f'v_lshl_add_u32 v8, v{lg}, 4, v8'); a('v_lshl_add_u32 v5, v8, 3, s52')
    a('v_mov_b32 v9, 32'); a('v_cndmask_b32 v9, 8, v9, vcc'); a('v_add_u32 v6, v5, v9'); a('v_add_u32 v9, v6, v9')
    a(f's_lshl_b32 s53, s{S_J}, 2'); a('s_add_u32 s53, s53, s50')
    a('s_lshl_b32 s40, s51, 5'); a('s_add_u32 s40, s40, s53'); a('s_mul_i32 s40, s40, 1280'); a(f's_add_u32 s40, s40, {WS_O}')
    a('v_lshl_add_u32 v10, v1, 4, s40')
    a(f'v_lshlrev_b32 v11, 4, v{li}'); a(f'v_lshl_add_u32 v11, v{lg}, 2, v11'); a('v_add_u32 v11, s40, v11')
    a('s_lshl_b32 s40, s51, 4'); a('s_add_u32 s40, s40, s53'); a(f's_mul_i32 s40, s40, {FOS}'); a(f's_add_u32 s40, s40, {WS_FO}')
    a(f'v_mul_u32_u24 v12, {32*FOS}, v1'); a('v_add_u32 v12, s40, v12'); a('v_mov_b32 v13, 1')
    a('s_mov_b32 s42, %#x' % LOG2E); a('s_mov_b32 s43, %#x' % LOG2E)
    for p in (0, 2):
        for s in interleave(phi_pair(W3, QF + 8*p, T, PA + 10*p), phi_pair(W3, QF + 8*p + 8, T + 40, PA + 10*p + 10)): a(s)
    st.mark(a, 6)
    a('v_cmp_gt_u32 vcc, 32, v1')
    a('s_barrier')
    st.mark(a, 7)
    K0, K1, X0, X1 = 16, 20, 24, 28
    a(f'ds_read_b64 {vr(K1,2)}, v5 offset:1536'); a(f'ds_read_b64 {vr(K1+2,2)}, v6 offset:1536')
    a(f'ds_read_b64 {vr(X1,2)}, v9 offset:1536')
    a(f'ds_read_b64 {vr(K0,2)}, v4'); a(f'ds_read_b64 {vr(K0+2,2)}, v4 offset:512')
    a(f'ds_read_b64 {vr(X0,2)}, v4 offset:1024')
    D = lambda p, u, t: T + 16*p + 8*u + 4*t
    def mm(p, t):
        K, X = (K0, X0) if t == 0 else (K1, X1)
        return [f'v_mfma_f32_16x16x32_bf16 {vr(D(p,u,t),4)}, {vr(K,4)}, {vr(PA + 10*p + 4*u,4)}, 0' for u in range(2)] + \
               [f'v_mfma_f32_16x16x16_bf16 {vr(D(p,u,t),4)}, {vr(X + 2*u,2)}, {vr(PA + 10*p + 8,2)}, {vr(D(p,u,t),4)}' for u in range(2)]
    def mask(X): return [s for q in range(2) for s in (f'v_cndmask_b32 v{X+2+q}, v{X+q}, 0, vcc', f'v_cndmask_b32 v{X+q}, 0, v{X+q}, vcc')]
    def fin(p):
        o = []
        O = 32 + 8*(p & 1)
        for u in range(2): o.append(f'v_add_f32 v{D(p,u,1)+2}, 0x358637bd, v{D(p,u,1)+2}')
        for u in range(2): o.append(f'v_rcp_f32 v{D(p,u,1)+2}, v{D(p,u,1)+2}')
        for u in range(2):
            r = D(p,u,1) + 2
            for x in (D(p,u,1), D(p,u,1) + 1, D(p,u,0), D(p,u,0) + 1, D(p,u,0) + 2, D(p,u,0) + 3): o.append(f'v_mul_f32 v{x}, v{r}, v{x}')
        for u in range(2):
            for q in range(2): o.append(f'v_cvt_pk_bf16_f32 v{O + 2*u + q}, v{D(p,u,0) + 2*q}, v{D(p,u,0) + 2*q + 1}')
        o.append(f'global_store_dwordx4 v10, {vr(O,4)}, {sr(P["ws"],2)} sc1')
        for u in range(2): o.append(f'v_cvt_pk_bf16_f32 v{O+4+u}, v{D(p,u,1)}, v{D(p,u,1)+1}')
        o.append(f'v_cndmask_b32 v{O+4}, v{O+5}, v{O+4}, vcc')
        o.append(f'global_store_dword v11, v{O+4}, {sr(P["ws"],2)} offset:1024 sc1')
        if p < 3: o += [f'v_add_u32 v10, {32*1280}, v10', f'v_add_u32 v11, {32*1280}, v11']
        return o
    m = mm(0, 1)
    for s in m[:2] + mask(X1) + m[2:]: a(s)
    m = mm(0, 0)
    for s in m[:2] + mask(X0) + m[2:]: a(s)
    for s in mm(1, 1): a(s)
    for s in interleave(mm(1, 0) + mm(2, 1), fin(0)): a(s)
    for s in interleave(mm(2, 0) + mm(3, 1), fin(1)): a(s)
    for s in interleave(mm(3, 0), fin(2)): a(s)
    for s in fin(3): a(s)
    a.wait(vm=0)
    a('s_mov_b64 exec, 3')
    a(f'global_store_dword v12, v13, {sr(P["ws"],2)} sc1')
    a('s_mov_b64 exec, -1')
    st.mark(a, 8)

def softmax_inlane(a, x, ep, em, t, sL):
    mx, mn, sp, sm = t, t + 2, t + 4, t + 6
    a(f'v_max3_f32 v{mx}, v{x}, v{x+1}, v{x+2}'); a(f'v_min3_f32 v{mn}, v{x}, v{x+1}, v{x+2}')
    for i in range(3, 19, 2):
        a(f'v_max3_f32 v{mx}, v{mx}, v{x+i}, v{x+i+1}'); a(f'v_min3_f32 v{mn}, v{mn}, v{x+i}, v{x+i+1}')
    a(f'v_max_f32 v{mx}, v{mx}, v{x+19}'); a(f'v_min_f32 v{mn}, v{mn}, v{x+19}')
    a(f'v_mul_f32 v{mx}, s{sL}, v{mx}'); a(f'v_mul_f32 v{mn}, s{sL}, v{mn}')
    for i in range(0, 20, 2):
        a(f'v_pk_fma_f32 {vr(em+i,2)}, {vr(x+i,2)}, {sr(sL,2)}, {vr(mn,2)} op_sel_hi:[1,1,0] neg_lo:[1,0,0] neg_hi:[1,0,0]')
        a(f'v_pk_fma_f32 {vr(ep+i,2)}, {vr(x+i,2)}, {sr(sL,2)}, {vr(mx,2)} op_sel_hi:[1,1,0] neg_lo:[0,0,1] neg_hi:[0,0,1]')
    for i in range(20): a(f'v_exp_f32 v{ep+i}, v{ep+i}'); a(f'v_exp_f32 v{em+i}, v{em+i}')
    a(f'v_pk_add_f32 {vr(sp,2)}, {vr(ep,2)}, {vr(ep+2,2)}'); a(f'v_pk_add_f32 {vr(sm,2)}, {vr(em,2)}, {vr(em+2,2)}')
    for i in range(4, 20, 2):
        a(f'v_pk_add_f32 {vr(sp,2)}, {vr(sp,2)}, {vr(ep+i,2)}'); a(f'v_pk_add_f32 {vr(sm,2)}, {vr(sm,2)}, {vr(em+i,2)}')
    a(f'v_add_f32 v{sp}, v{sp}, v{sp+1}'); a(f'v_add_f32 v{sm}, v{sm}, v{sm+1}')
    a(f'v_rcp_f32 v{sp}, v{sp}'); a(f'v_rcp_f32 v{sm}, v{sm}')
    return sp, sm

def kv_consumer(a, st):
    s_j, s_R, s_w = S_J, S_IDX, S_WAVE
    li, lg = 2, 3
    a('v_and_b32 v1, 63, v0'); a(f'v_and_b32 v{li}, 15, v0'); a(f'v_bfe_u32 v{lg}, v0, 4, 2')
    L = a.newlabel('L_clr')
    a(f's_cmp_lg_u32 s{s_w}, 0'); a(f's_cbranch_scc1 {L}')
    a(f's_lshl_b32 s40, s{s_j}, 9'); a(f's_lshl_b32 s41, s{s_R}, 2'); a('s_add_u32 s40, s40, s41'); a(f's_add_u32 s40, s40, {WS_FL - 8*64}')
    a('v_lshl_add_u32 v16, v1, 6, s40')
    a(f's_lshr_b32 s40, s{s_R}, 2'); a('s_lshl_b32 s40, s40, 8'); a(f's_lshl_b32 s41, s{s_j}, 2'); a('s_add_u32 s40, s40, s41')
    a(f's_and_b32 s41, s{s_R}, 3'); a('s_add_u32 s40, s40, s41'); a(f's_mul_i32 s40, s40, {FOS}'); a(f's_add_u32 s40, s40, {WS_FO}')
    a(f'v_mul_u32_u24 v17, {32*FOS}, v1'); a('v_add_u32 v17, s40, v17')
    a('v_cmp_gt_u32 vcc, 8, v1'); a('v_cndmask_b32 v16, v16, v17, vcc'); a('v_mov_b32 v17, 0')
    a.wait(lg=0)
    a('s_mov_b64 exec, 0xfff')
    a(f'global_store_dword v16, v17, {sr(P["ws"],2)} sc1')
    a('s_mov_b64 exec, -1')
    a.label(L); a.vm = []
    AX = 4
    a(f'v_lshrrev_b32 v16, 1, v{li}'); a(f'v_xor_b32 v16, v16, v{lg}'); a('v_lshlrev_b32 v16, 4, v16')
    a(f'v_lshl_add_u32 v16, v{li}, 7, v16'); a(f's_lshl_b32 s40, s{s_w}, 12'); a(f'v_add_u32 v{AX}, s40, v16'); a(f'v_xor_b32 v{AX+1}, 64, v{AX}')
    AK, AVP, AVS = 6, 8, 10
    a(f'v_lshrrev_b32 v16, 2, v{li}'); a(f'v_lshl_add_u32 v16, v{lg}, 3, v16'); a('v_mul_u32_u24 v16, 320, v16')
    a(f'v_and_b32 v17, 1, v{lg}'); a('v_mul_u32_u24 v17, 160, v17')
    a(f'v_and_b32 v18, 3, v{li}'); a('v_mul_u32_u24 v19, 40, v18')
    a(f'v_add_u32 v16, {WR}, v16')
    a(f'v_add3_u32 v{AK}, v16, v17, v19')
    a('v_sub_u32 v16, v16, v17'); a('v_add_u32 v16, 160, v16')
    a(f'v_lshl_add_u32 v{AVP}, v18, 3, v16')
    a(f'v_add3_u32 v{AVS}, v16, v19, 32')
    for r in (AK, AVP, AVS): a(f'v_add_u32 v{r+1}, {3*WSL}, v{r}')
    KA, VA = 32, 72
    XF = 112
    WF = 128; NW = 6
    WPH = 160
    def rdx(ks, u):
        s = ks >> 1
        return f'ds_read_b128 {vr(XF + 8*(ks & 1) + 4*u, 4)}, v{AX + (ks & 1)} offset:{XR + (s % 4)*XS + 2048*u}'
    def rdw(n):
        ks, T = divmod(n, 10); s = ks >> 1; slot = s % 4
        base, o = (AK, 8*T) if T < 5 else ((AVP, 40*(T - 5)) if T < 9 else (AVS, 0))
        o += (ks & 1)*32*320 + (slot % 3)*WSL; base += slot // 3
        r = WF + 4*(n % NW)
        return [f'ds_read_b64_tr_b16 {vr(r,2)}, v{base} offset:{o}', f'ds_read_b64_tr_b16 {vr(r+2,2)}, v{base} offset:{o + 4*320}']
    a(f'v_lshrrev_b32 v16, 2, v{li}'); a('v_mul_u32_u24 v16, 40, v16'); a(f'v_mul_u32_u24 v17, 800, v{lg}')
    a('s_mov_b32 s41, %d' % WPHI); a('v_add3_u32 v16, v16, v17, s41')
    a(f'v_mov_b32 v17, {ZERO}'); a(f'v_cmp_eq_u32 vcc, v18, v{lg}'); a('v_cndmask_b32 v12, v17, v16, vcc')
    wph = [f'ds_read_b64_tr_b16 {vr(WPH + 10*T + 2*q, 2)}, v12 offset:{160*q + 8*T}' for T in range(5) for q in range(5)]
    E_V, E_P, E_A, E_A2, E_B, E_B4, E_O, E_M, E_F, E_KF, E_KP, E_KS, E_DBG = 212, 213, 214, 215, 216, 217, 218, 219, 222, 223, 224, 225, 226
    a(f's_mul_i32 s41, s{s_w}, 5120'); a(f's_add_u32 s41, s41, {VFR}'); a(f'v_lshl_add_u32 v{E_V}, v1, 4, s41')
    a(f'v_mul_u32_u24 v14, 10240, v{lg}'); a(f'v_mul_u32_u24 v15, 80, v{li}')
    a(f's_mul_i32 s41, s{s_w}, {32*80}'); a(f's_add_u32 s41, s41, {PHI}'); a(f'v_add3_u32 v{E_P}, v14, v15, s41')
    a(f'v_lshrrev_b32 v16, 2, v{li}'); a(f'v_lshl_add_u32 v16, v{lg}, 2, v16'); a('v_mul_u32_u24 v16, 80, v16')
    a(f's_mul_i32 s41, s{s_w}, 10240'); a(f's_add_u32 s41, s41, {PHI}')
    a(f'v_lshl_add_u32 v17, v18, 3, v16'); a(f'v_add_u32 v{E_A}, s41, v17')
    a(f'v_and_b32 v17, 1, v{li}'); a('v_lshl_add_u32 v17, v17, 3, v16'); a(f'v_add3_u32 v{E_A2}, v17, s41, 64')
    a(f's_lshl_b32 s41, s{s_w}, 10'); a(f's_add_u32 s41, s41, {VFR}'); a(f'v_lshl_add_u32 v{E_B}, v1, 4, s41')
    a('v_lshlrev_b32 v19, 4, v1'); a(f'v_add_u32 v{E_B4}, {VFR + 4096}, v19')
    a(f's_lshl_b32 s44, s{s_j}, 2'); a(f's_add_u32 s44, s44, s{s_w}'); a('s_lshl_b32 s44, s44, 4'); a(f's_add_u32 s44, s44, s{s_R}')
    a('s_lshl_b32 s44, s44, 12'); a(f's_add_u32 s44, s44, {WS_KV}')
    a(f'v_add_u32 v{E_O}, s44, v19')
    a(f'v_lshrrev_b32 v17, 2, v{li}'); a(f'v_cmp_eq_u32 s[48:49], s{s_w}, v17')
    a(f's_xor_b32 s45, s{s_w}, 1'); a('s_lshl_b32 s45, s45, 2')
    a(f'v_cmp_eq_u32 s[46:47], s45, v{li}')
    a('v_lshlrev_b32 v16, 4, v18'); a('v_mov_b32 v17, 192'); a('v_cndmask_b32 v16, v17, v16, s[48:49]')
    a(f'v_lshl_add_u32 v16, v{lg}, 8, v16'); a(f'v_add_u32 v{E_M}, s44, v16')
    a('v_cndmask_b32 v15, 16, 64, s[48:49]'); a(f'v_add_u32 v{E_M+1}, v{E_M}, v15'); a(f'v_add_u32 v{E_M+2}, v{E_M+1}, v15')
    a('s_or_b64 s[46:47], s[46:47], s[48:49]')
    a(f's_lshl_b32 s40, s{s_j}, 9'); a(f's_add_u32 s40, s40, {WS_FL}')
    a(f's_lshl_b32 s41, s{s_w}, 4'); a(f's_add_u32 s41, s41, s{s_R}'); a('s_lshl_b32 s41, s41, 2'); a('s_add_u32 s41, s41, s40'); a(f'v_mov_b32 v{E_F}, s41')
    a(f's_and_b32 s50, s{s_R}, 3'); a('s_lshl_b32 s41, s50, 6'); a('s_add_u32 s41, s41, s40'); a(f'v_lshl_add_u32 v{E_KF}, v{li}, 2, s41')
    a(f's_lshl_b32 s41, s{s_j}, 2'); a('s_add_u32 s41, s41, s50'); a('s_lshl_b32 s41, s41, 16'); a(f's_lshl_b32 s40, s{s_w}, 10'); a('s_add_u32 s41, s41, s40')
    a(f's_add_u32 s41, s41, {WS_KV + 4096}'); a(f'v_add_u32 v{E_KP}, s41, v19')
    a('s_mul_i32 s41, s50, 10240'); a(f's_lshl_b32 s40, s{s_w}, 9'); a('s_add_u32 s41, s41, s40'); a(f's_add_u32 s41, s41, {PHI}'); a(f'v_lshl_add_u32 v{E_KS}, v1, 3, s41')
    a(f'v_lshlrev_b32 v{E_DBG}, 2, v1')
    L = a.newlabel('L_ann0')
    a(f's_cmp_lg_u32 s{s_w}, 0'); a(f's_cbranch_scc1 {L}')
    announce(a, 16)
    a.label(L); a.vm = []
    a.wait(lg=0)
    PD = NW - 2
    st.mark(a, 1)
    a('s_barrier')
    st.mark(a, 2)
    a(rdx(0, 0)); a(rdx(0, 1))
    for n in range(PD):
        for s in rdw(n): a(s)
    NK = 2*NST
    for n in range(10*NK):
        ks, T = divmod(n, 10)
        m = n + PD
        pre = []
        if m < 10*NK:
            if m % 20 == 0: pre.append('s_barrier')
            if m % 10 == 0: pre += [rdx(m // 10, 0), rdx(m // 10, 1)]
            rw = rdw(m)
        else: rw = []
        if wph and n >= 80 and n % 4 == 1 and not pre: pre.append(wph.pop(0))
        if n == 171: pre.append(f'global_load_dword v{E_DBG+2}, v{E_DBG}, {sr(P["dbg"],2)} sc1')
        if n == 10*NK - 2: pre += ['s_waitcnt lgkmcnt(0)', 's_barrier']
        r = WF + 4*(n % NW)
        for u in range(2):
            x = XF + 8*(ks & 1) + 4*u
            if T < 5: d = KA + 20*u + 4*T; ins = f'v_mfma_f32_16x16x32_bf16 {vr(d,4)}, {vr(r,4)}, {vr(x,4)}, {vr(d,4) if ks else 0}'
            else: d = VA + 20*u + 4*(T - 5); ins = f'v_mfma_f32_16x16x32_bf16 {vr(d,4)}, {vr(x,4)}, {vr(r,4)}, {vr(d,4) if ks else 0}'
            a(ins)
            if u == 0:
                for s in pre: a(s)
            if rw: a(rw[u])
    assert not wph
    st.mark(a, 3)
    KO = 232
    for u in range(2):
        for i in range(10): a(f'v_cvt_pk_bf16_f32 v{KO + 12*u + i}, v{KA + 20*u + 2*i}, v{KA + 20*u + 2*i + 1}')
    VO = 136
    vfill = []
    for T in range(5):
        r = VO + 4*(T & 1)
        for u in range(2):
            for q in range(2): vfill.append(f'v_cvt_pk_bf16_f32 v{r + 2*u + q}, v{VA + 20*u + 4*T + 2*q}, v{VA + 20*u + 4*T + 2*q + 1}')
        vfill.append(f'ds_write_b128 v{E_V}, {vr(r,4)} offset:{1024*T}')
    PK = KA
    mm = []
    for u in range(2):
        for t in range(3):
            for T in range(5):
                d = PK + 20*u + 4*T; w = WPH + 10*T + 4*t; k = KO + 12*u + 4*t
                if t < 2: mm.append(f'v_mfma_f32_16x16x32_bf16 {vr(d,4)}, {vr(w,4)}, {vr(k,4)}, {vr(d,4) if t else 0}')
                else: mm.append(f'v_mfma_f32_16x16x16_bf16 {vr(d,4)}, {vr(w,2)}, {vr(k,2)}, {vr(d,4)}')
    for s in interleave(mm, vfill): a(s)
    a.wait(vm=0)
    check_ann(a, E_DBG, E_DBG + 2, preloaded=True)
    a('s_mov_b32 s42, %#x' % LOG2E); a('s_mov_b32 s43, %#x' % LOG2E)
    EM, TT, PO = 72, 16, 112
    for u in range(2):
        x = PK + 20*u
        sp, sm = softmax_inlane(a, x, x, EM, TT, 42)
        src = [(x + i, sp) for i in range(0, 16, 2)] + [(EM + i, sm) for i in range(0, 16, 2)] + [(x + 16, sp), (x + 18, sp), (EM + 16, sm), (EM + 18, sm)]
        for c in range(5):
            r = PO + 4*(c & 1)
            for q in range(4):
                e, s = src[4*c + q]
                a(f'v_pk_mul_f32 {vr(e,2)}, {vr(e,2)}, {vr(s,2)} op_sel_hi:[1,0]')
            for q in range(4):
                e, s = src[4*c + q]
                a(f'v_cvt_pk_bf16_f32 v{r+q}, v{e}, v{e+1}')
            a(f'ds_write_b128 v{E_P}, {vr(r,4)} offset:{16*80*u + 16*c}')
    a('v_mov_b32 v16, 0x3f803f80'); a('v_mov_b32 v17, 1')
    a.wait(lg=0)
    st.mark(a, 4)
    a('s_barrier')
    AFr, BFr, KVA = 32, 80, 112
    def rd(k):
        o = [f'ds_read_b128 {vr(BFr + 8*k, 4)}, v{E_B} offset:{5120*k}']
        for F in range(3):
            r = AFr + 12*k + 4*F
            for h in range(2):
                o.append(f'ds_read_b64_tr_b16 {vr(r + 2*h, 2)}, v{E_A if F < 2 else E_A2} offset:{(32*k + 16*h)*80 + (32*F if F < 2 else 0)}')
            if F == 0: o.append(f'ds_read_b128 {vr(BFr + 8*k + 4, 4)}, v{E_B4} offset:{5120*k}')
        return o
    def ml(k):
        o = []
        for dt in range(2):
            for F in range(3):
                d = KVA + 4*(3*dt + F)
                o.append(f'v_mfma_f32_16x16x32_bf16 {vr(d,4)}, {vr(AFr + 12*k + 4*F, 4)}, {vr(BFr + 8*k + 4*dt, 4)}, {vr(d,4) if k else 0}')
                if dt == 0 and F < 2:
                    o += [f'v_cndmask_b32 v{BFr + 8*k + 4 + q}, v16, v{BFr + 8*k + 4 + q}, s[48:49]' for q in (2*F, 2*F + 1)]
        return o
    for s in rd(0) + rd(1)[:4]: a(s)
    for s in interleave(ml(0), rd(1)[4:] + rd(2)[:4]): a(s)
    for s in interleave(ml(1), rd(2)[4:] + rd(3)[:4]): a(s)
    for s in interleave(ml(2), rd(3)[4:]): a(s)
    for s in ml(3): a(s)
    def stores(fl):
        for F in range(3): a(f'global_store_dwordx4 v{E_O}, {vr(KVA + 4*F, 4)}, {sr(P["ws"],2)} offset:{1024*F} {fl}')
        a('s_mov_b64 exec, s[46:47]')
        for F in range(3): a(f'global_store_dwordx4 v{E_M+F}, {vr(KVA + 12 + 4*F, 4)}, {sr(P["ws"],2)} offset:3072 {fl}')
        a('s_mov_b64 exec, 1')
        a.wait(vm=0)
        a(f'global_store_dword v{E_F}, v17, {sr(P["ws"],2)} {fl}')
        a('s_mov_b64 exec, -1')
    by_mode(a, stores)
    st.mark(a, 5)
    poll_flag(a, E_KF, 18)
    st.mark(a, 6)
    KP = 32
    for k in range(16):
        if k and k % 2 == 0: a(f'v_add_u32 v{E_KP}, 8192, v{E_KP}')
        a(f'global_load_dwordx4 {vr(KP + 4*k, 4)}, v{E_KP}, {sr(P["ws"],2)} offset:{-4096 if k % 2 == 0 else 0} sc1')
    for k in range(1, 16):
        for q in (0, 2): a(f'v_pk_add_f32 {vr(KP+q,2)}, {vr(KP+q,2)}, {vr(KP + 4*k + q,2)}')
    a(f'v_cvt_pk_bf16_f32 v{KP}, v{KP}, v{KP+1}'); a(f'v_cvt_pk_bf16_f32 v{KP+1}, v{KP+2}, v{KP+3}')
    a(f'ds_write_b64 v{E_KS}, {vr(KP,2)}')
    a.wait(lg=0)
    a('s_barrier')
    st.mark(a, 7)
```

```python
from common import *
import os

XS, WSL = 16384, 20480
XR, WR = 0, 4*XS
WPHI = WR + 4*WSL
ZERO = WPHI + 4096
ONES = ZERO + 1024
GATE = ONES + 64
KV_LDS = GATE + 4096
PHI = WR + 2*WSL
VFR = XR + 2*XS
NST = 10

def srd(a, r, ptr, nbytes):
    a(f's_mov_b32 s{r}, s{ptr}'); a(f's_and_b32 s{r+1}, s{ptr+1}, 0xffff'); a(f's_mov_b32 s{r+2}, {nbytes}'); a(f's_mov_b32 s{r+3}, 0x20000')

def kv_producer(a, st, s_j, s_R, s_rot, s_pw, P, store_flags=''):
    SX, SW, SP = 28, 32, 36
    srd(a, SX, P['u'], 2621440); srd(a, SW, P['wqkv'], 2457600)
    a('v_and_b32 v1, 63, v0')
    a('v_lshrrev_b32 v2, 3, v1'); a('v_mul_u32_u24 v2, 1280, v2')
    a('v_lshrrev_b32 v3, 4, v1'); a('v_and_b32 v4, 7, v1'); a('v_xor_b32 v3, v3, v4')
    a('v_lshl_add_u32 v10, v3, 4, v2'); a('v_xor_b32 v11, 64, v10')
    a(f's_lshl_b32 s40, s{s_R}, 2'); a(f's_add_u32 s40, s40, s{s_pw}'); a(f's_mul_i32 s40, s40, {32*1280}')
    a(f's_lshl_b32 s41, s{s_pw}, 12')
    a(f's_mul_i32 s42, s{s_pw}, 5120'); a(f's_add_u32 s42, s42, {WR}')
    a(f's_mov_b32 s43, s{s_rot}')
    a(f's_mov_b32 s44, s{s_rot}')
    def issue_x(t):
        a('s_lshl_b32 s45, s43, 7'); a('s_add_u32 s45, s45, s40')
        for i in range(4):
            a(f's_add_u32 m0, s41, {XR + (t % 4)*XS + 1024*i}')
            if i: a(f's_add_u32 s45, s45, 10240')
            a(f'buffer_load_dwordx4 v{10 + (i & 1)}, {sr(SX,4)}, s45 offen lds')
        a('s_add_u32 s43, s43, 1'); a(f's_cmp_eq_u32 s43, {NST}'); a('s_cselect_b32 s43, 0, s43')
    issue_x(0)
    a(f's_mul_i32 s46, s{s_pw}, {16*3840}'); a(f's_mul_i32 s47, s{s_j}, 160'); a('s_add_u32 s46, s46, s47'); a('s_add_u32 s46, s46, 1280')
    for i in range(5):
        a(f'v_add_u32 v2, {64*i}, v1')
        a('v_mul_u32_u24 v3, 6554, v2'); a('v_lshrrev_b32 v3, 16, v3')
        a('v_mul_u32_u24 v4, 10, v3'); a('v_sub_u32 v4, v2, v4')
        a('v_lshrrev_b32 v5, 1, v3')
        a('v_lshrrev_b32 v6, 4, v3'); a('v_xor_b32 v6, v6, v3'); a('v_and_b32 v6, 1, v6')
        a('v_mul_u32_u24 v5, 3840, v5'); a('v_mul_u32_u24 v6, 1280, v6')
        a('v_lshl_add_u32 v4, v4, 4, v5'); a(f'v_add3_u32 v{12+i}, v4, v6, s46')
    def issue_w(t):
        a(f's_mul_i32 s45, s44, {64*3840}')
        for i in range(5):
            a(f's_add_u32 m0, s42, {(t % 4)*WSL + 1024*i}')
            a(f'buffer_load_dwordx4 v{12+i}, {sr(SW,4)}, s45 offen lds')
        a('s_add_u32 s44, s44, 1'); a(f's_cmp_eq_u32 s44, {NST}'); a('s_cselect_b32 s44, 0, s44')
    order = []
    a.vm = []
    def X(t): issue_x(t); order.extend([('x', t)]*4)
    def Wt(t): issue_w(t); order.extend([('w', t)]*5)
    order.extend([('x', 0)]*4)
    Wt(0)
    srd(a, SP, P['wphi'], 25600)
    a(f's_mul_i32 s45, s{s_j}, 3200'); a(f's_lshl_b32 s47, s{s_pw}, 10'); a('s_add_u32 s45, s45, s47')
    a('v_lshlrev_b32 v2, 4, v1')
    a(f's_add_u32 m0, s47, {WPHI}')
    a(f'buffer_load_dwordx4 v2, {sr(SP,4)}, s45 offen lds'); order.append(('p', 1))
    srd(a, SP, P['gate'], 1280)
    a(f's_add_u32 m0, s47, {GATE}')
    a(f'buffer_load_dwordx4 v2, {sr(SP,4)}, s47 offen lds'); order.append(('g', 0))
    PRO = int(os.environ.get('PRO', 0))
    if PRO == 0: X(1); Wt(1); X(2)
    elif PRO == 1: X(1)
    a('v_and_b32 v4, 15, v1'); a('v_lshrrev_b32 v5, 4, v1')
    a('v_lshrrev_b32 v6, 1, v4'); a('v_xor_b32 v6, v6, v5'); a('v_lshlrev_b32 v6, 4, v6'); a('v_lshl_add_u32 v6, v4, 7, v6')
    a(f's_lshl_b32 s47, s{s_j}, 11'); a('v_add_u32 v30, s47, v6'); a('v_xor_b32 v31, 64, v30')
    a(f'v_lshlrev_b32 v32, 4, v5'); a(f'v_add_u32 v32, {GATE}, v32')
    a(f's_mov_b32 s49, s{s_rot}')
    for k in range(4): a(f'v_mov_b32 v{52+k}, 0')
    for k in range(4): a(f'v_mov_b32 v{20+k}, 0')
    a(f'v_add_u32 v3, {ZERO}, v2'); a(f'ds_write_b128 v3, v[20:23]')
    for k in range(4): a(f'v_mov_b32 v{24+k}, 0x3f803f80')
    a(f'v_mov_b32 v3, {ONES}'); a(f'ds_write_b128 v3, v[24:27]')
    for s in range(NST):
        last = max(i for i, o in enumerate(order) if o[1] <= s)
        a.wait(vm=len(order) - 1 - last, lg=0 if s == 0 else None)
        a('s_barrier')
        L = a.newlabel('L_gate')
        a(f's_cmp_lg_u32 s{s_pw}, {s % 4}'); a(f's_cbranch_scc1 {L}')
        a('s_lshl_b32 s47, s49, 7'); a('v_add_u32 v33, s47, v32')
        for ks in range(2):
            a(f'ds_read_b128 {vr(36 + 8*ks, 4)}, v{30 + ks} offset:{XR + (s % 4)*XS}')
            a(f'ds_read_b128 {vr(40 + 8*ks, 4)}, v33 offset:{64*ks}')
        for ks in range(2): a(f'v_mfma_f32_16x16x32_bf16 v[52:55], {vr(40 + 8*ks, 4)}, {vr(36 + 8*ks, 4)}, v[52:55]')
        a.label(L)
        a('s_add_u32 s49, s49, 1'); a(f's_cmp_eq_u32 s49, {NST}'); a('s_cselect_b32 s49, 0, s49')
        if PRO == 0:
            if s + 2 < NST: Wt(s + 2)
            if s + 3 < NST: X(s + 3)
        else:
            if s == 0: Wt(1); X(2)
            if s == 1: Wt(2); X(3)
            if s >= 1 and s + 2 < NST: Wt(s + 2)
            if s >= 1 and s + 3 < NST: X(s + 3)
    a.vm = []
    a(f's_lshl_b32 s47, s{s_R}, 3'); a(f's_add_u32 s47, s47, s{s_j}'); a('s_lshl_b32 s47, s47, 8')
    a(f's_lshl_b32 s45, s{s_pw}, 2'); a('s_add_u32 s47, s47, s45'); a(f's_add_u32 s47, s47, {WS_G}')
    a('v_lshl_add_u32 v6, v4, 4, s47')
    a('s_mov_b64 exec, 0xffff')
    a('s_nop 7')
    a(f'global_store_dword v6, v52, {sr(P["ws"],2)} {store_flags}')
    a('s_mov_b64 exec, -1')

def softmax_inlane(a, x, ep, em, t, sL):
    mx, mn, sp, sm = t, t + 2, t + 4, t + 6
    a(f'v_max3_f32 v{mx}, v{x}, v{x+1}, v{x+2}'); a(f'v_min3_f32 v{mn}, v{x}, v{x+1}, v{x+2}')
    for i in range(3, 19, 2):
        a(f'v_max3_f32 v{mx}, v{mx}, v{x+i}, v{x+i+1}'); a(f'v_min3_f32 v{mn}, v{mn}, v{x+i}, v{x+i+1}')
    a(f'v_max_f32 v{mx}, v{mx}, v{x+19}'); a(f'v_min_f32 v{mn}, v{mn}, v{x+19}')
    a(f'v_mul_f32 v{mx}, s{sL}, v{mx}'); a(f'v_mul_f32 v{mn}, s{sL}, v{mn}')
    for i in range(0, 20, 2):
        a(f'v_pk_fma_f32 {vr(em+i,2)}, {vr(x+i,2)}, {sr(sL,2)}, {vr(mn,2)} op_sel_hi:[1,1,0] neg_lo:[1,0,0] neg_hi:[1,0,0]')
        a(f'v_pk_fma_f32 {vr(ep+i,2)}, {vr(x+i,2)}, {sr(sL,2)}, {vr(mx,2)} op_sel_hi:[1,1,0] neg_lo:[0,0,1] neg_hi:[0,0,1]')
    for i in range(20): a(f'v_exp_f32 v{ep+i}, v{ep+i}'); a(f'v_exp_f32 v{em+i}, v{em+i}')
    a(f'v_pk_add_f32 {vr(sp,2)}, {vr(ep,2)}, {vr(ep+2,2)}'); a(f'v_pk_add_f32 {vr(sm,2)}, {vr(em,2)}, {vr(em+2,2)}')
    for i in range(4, 20, 2):
        a(f'v_pk_add_f32 {vr(sp,2)}, {vr(sp,2)}, {vr(ep+i,2)}'); a(f'v_pk_add_f32 {vr(sm,2)}, {vr(sm,2)}, {vr(em+i,2)}')
    a(f'v_add_f32 v{sp}, v{sp}, v{sp+1}'); a(f'v_add_f32 v{sm}, v{sm}, v{sm+1}')
    a(f'v_rcp_f32 v{sp}, v{sp}'); a(f'v_rcp_f32 v{sm}, v{sm}')
    return sp, sm

def kv_consumer(a, st, s_j, s_R, s_w, P, store_flags=''):
    li, lg = 2, 3
    a('v_and_b32 v1, 63, v0'); a(f'v_and_b32 v{li}, 15, v0'); a(f'v_bfe_u32 v{lg}, v0, 4, 2')
    AX = 4
    a(f'v_lshrrev_b32 v16, 1, v{li}'); a(f'v_xor_b32 v16, v16, v{lg}'); a('v_lshlrev_b32 v16, 4, v16')
    a(f'v_lshl_add_u32 v16, v{li}, 7, v16'); a(f's_lshl_b32 s40, s{s_w}, 12'); a(f'v_add_u32 v{AX}, s40, v16'); a(f'v_xor_b32 v{AX+1}, 64, v{AX}')
    AK, AVP, AVS = 6, 8, 10
    a(f'v_lshrrev_b32 v16, 2, v{li}'); a(f'v_lshl_add_u32 v16, v{lg}, 3, v16'); a('v_mul_u32_u24 v16, 320, v16')
    a(f'v_and_b32 v17, 1, v{lg}'); a('v_mul_u32_u24 v17, 160, v17')
    a(f'v_and_b32 v18, 3, v{li}'); a('v_mul_u32_u24 v19, 40, v18')
    a(f'v_add_u32 v16, {WR}, v16')
    a(f'v_add3_u32 v{AK}, v16, v17, v19')
    a('v_sub_u32 v16, v16, v17'); a('v_add_u32 v16, 160, v16')
    a(f'v_lshl_add_u32 v{AVP}, v18, 3, v16')
    a(f'v_add3_u32 v{AVS}, v16, v19, 32')
    for r in (AK, AVP, AVS): a(f'v_add_u32 v{r+1}, {3*WSL}, v{r}')
    KA, VA = 32, 72
    XF = 112
    WF = 128; NW = 6
    WPH = 160
    def rdx(ks, u):
        s = ks >> 1
        return f'ds_read_b128 {vr(XF + 8*(ks & 1) + 4*u, 4)}, v{AX + (ks & 1)} offset:{XR + (s % 4)*XS + 2048*u}'
    def rdw(n):
        ks, T = divmod(n, 10); s = ks >> 1; slot = s % 4
        base, o = (AK, 8*T) if T < 5 else ((AVP, 40*(T - 5)) if T < 9 else (AVS, 0))
        o += (ks & 1)*32*320 + (slot % 3)*WSL; base += slot // 3
        r = WF + 4*(n % NW)
        return [f'ds_read_b64_tr_b16 {vr(r,2)}, v{base} offset:{o}', f'ds_read_b64_tr_b16 {vr(r+2,2)}, v{base} offset:{o + 4*320}']
    a(f'v_lshrrev_b32 v16, 2, v{li}'); a('v_mul_u32_u24 v16, 40, v16'); a(f'v_mul_u32_u24 v17, 800, v{lg}')
    a('s_mov_b32 s41, %d' % WPHI); a('v_add3_u32 v16, v16, v17, s41')
    a(f'v_mov_b32 v17, {ZERO}'); a(f'v_cmp_eq_u32 vcc, v18, v{lg}'); a('v_cndmask_b32 v12, v17, v16, vcc')
    wph = [f'ds_read_b64_tr_b16 {vr(WPH + 10*T + 2*q, 2)}, v12 offset:{160*q + 8*T}' for T in range(5) for q in range(5)]
    PD = NW - 2
    st.mark(a)
    a('s_barrier')
    st.mark(a)
    a(rdx(0, 0)); a(rdx(0, 1))
    for n in range(PD):
        for s in rdw(n): a(s)
    NK = 2*NST
    for n in range(10*NK):
        ks, T = divmod(n, 10)
        m = n + PD
        pre = []
        if m < 10*NK:
            if m % 20 == 0: pre.append('s_barrier')
            if m % 10 == 0: pre += [rdx(m // 10, 0), rdx(m // 10, 1)]
            rw = rdw(m)
        else: rw = []
        if wph and n >= 60 and n % 4 == 1 and not pre: pre.append(wph.pop(0))
        r = WF + 4*(n % NW)
        for u in range(2):
            x = XF + 8*(ks & 1) + 4*u
            if T < 5: d = KA + 20*u + 4*T; ins = f'v_mfma_f32_16x16x32_bf16 {vr(d,4)}, {vr(r,4)}, {vr(x,4)}, {vr(d,4) if ks else 0}'
            else: d = VA + 20*u + 4*(T - 5); ins = f'v_mfma_f32_16x16x32_bf16 {vr(d,4)}, {vr(x,4)}, {vr(r,4)}, {vr(d,4) if ks else 0}'
            a(ins)
            if u == 0:
                for s in pre: a(s)
            if rw: a(rw[u])
    assert not wph
    st.mark(a)
    KO = 112
    for u in range(2):
        for i in range(10): a(f'v_cvt_pk_bf16_f32 v{KO + 12*u + i}, v{KA + 20*u + 2*i}, v{KA + 20*u + 2*i + 1}')
    a(f's_mul_i32 s41, s{s_w}, 5120'); a(f's_add_u32 s41, s41, {VFR}'); a('v_lshl_add_u32 v13, v1, 4, s41')
    VO = 136
    vfill = []
    for T in range(5):
        r = VO + 4*(T & 1)
        for u in range(2):
            for q in range(2): vfill.append(f'v_cvt_pk_bf16_f32 v{r + 2*u + q}, v{VA + 20*u + 4*T + 2*q}, v{VA + 20*u + 4*T + 2*q + 1}')
        vfill.append(f'ds_write_b128 v13, {vr(r,4)} offset:{1024*T}')
    PK = KA
    mm = []
    for u in range(2):
        for t in range(3):
            for T in range(5):
                d = PK + 20*u + 4*T; w = WPH + 10*T + 4*t; k = KO + 12*u + 4*t
                if t < 2: mm.append(f'v_mfma_f32_16x16x32_bf16 {vr(d,4)}, {vr(w,4)}, {vr(k,4)}, {vr(d,4) if t else 0}')
                else: mm.append(f'v_mfma_f32_16x16x16_bf16 {vr(d,4)}, {vr(w,2)}, {vr(k,2)}, {vr(d,4)}')
    for s in interleave(mm, vfill): a(s)
    a(f'v_mul_u32_u24 v14, 10240, v{lg}'); a(f'v_mul_u32_u24 v15, 80, v{li}')
    a(f's_mul_i32 s41, s{s_w}, {32*80}'); a(f's_add_u32 s41, s41, {PHI}'); a('v_add3_u32 v14, v14, v15, s41')
    a('s_mov_b32 s42, %#x' % LOG2E); a('s_mov_b32 s43, %#x' % LOG2E)
    EM, TT, PO = 72, 16, 112
    for u in range(2):
        x = PK + 20*u
        sp, sm = softmax_inlane(a, x, x, EM, TT, 42)
        src = [(x + i, sp) for i in range(0, 16, 2)] + [(EM + i, sm) for i in range(0, 16, 2)] + [(x + 16, sp), (x + 18, sp), (EM + 16, sm), (EM + 18, sm)]
        for c in range(5):
            r = PO + 4*(c & 1)
            for q in range(4):
                e, s = src[4*c + q]
                a(f'v_pk_mul_f32 {vr(e,2)}, {vr(e,2)}, {vr(s,2)} op_sel_hi:[1,0]')
            for q in range(4):
                e, s = src[4*c + q]
                a(f'v_cvt_pk_bf16_f32 v{r+q}, v{e}, v{e+1}')
            a(f'ds_write_b128 v14, {vr(r,4)} offset:{16*80*u + 16*c}')
    a(f'v_lshrrev_b32 v16, 2, v{li}'); a(f'v_lshl_add_u32 v16, v{lg}, 2, v16'); a('v_mul_u32_u24 v16, 80, v16')
    a(f's_mul_i32 s41, s{s_w}, 10240'); a(f's_add_u32 s41, s41, {PHI}')
    a(f'v_and_b32 v17, 3, v{li}'); a('v_lshl_add_u32 v4, v17, 3, v16'); a('v_add_u32 v4, s41, v4')
    a(f'v_and_b32 v17, 1, v{li}'); a('v_lshl_add_u32 v5, v17, 3, v16'); a('v_add3_u32 v5, v5, s41, 64')
    a(f's_lshl_b32 s41, s{s_w}, 10'); a(f's_add_u32 s41, s41, {VFR}'); a('v_lshl_add_u32 v6, v1, 4, s41')
    a(f'v_lshrrev_b32 v17, 2, v{li}'); a(f'v_cmp_eq_u32 vcc, s{s_w}, v17')
    a(f'v_mov_b32 v16, {ONES}'); a('v_lshlrev_b32 v18, 4, v1')
    for k in range(4):
        a(f'v_add_u32 v19, {VFR + 4096 + 5120*k}, v18'); a(f'v_cndmask_b32 v{8+k}, v16, v19, vcc')
    a(f's_lshl_b32 s44, s{s_j}, 2'); a(f's_add_u32 s44, s44, s{s_w}'); a('s_lshl_b32 s44, s44, 4'); a(f's_add_u32 s44, s44, s{s_R}')
    a('s_lshl_b32 s44, s44, 12'); a(f's_add_u32 s44, s44, {WS_KV}')
    a('v_add_u32 v12, s44, v18')
    a(f's_xor_b32 s45, s{s_w}, 1'); a('s_lshl_b32 s45, s45, 2')
    a(f'v_cmp_eq_u32 s[46:47], s45, v{li}')
    a(f'v_and_b32 v16, 3, v{li}'); a('v_lshlrev_b32 v16, 4, v16'); a('v_mov_b32 v17, 192'); a('v_cndmask_b32 v16, v17, v16, vcc')
    a(f'v_lshl_add_u32 v16, v{lg}, 8, v16'); a('v_add_u32 v13, s44, v16')
    a('v_mov_b32 v17, 16'); a('v_mov_b32 v19, 64'); a('v_cndmask_b32 v15, v17, v19, vcc')
    a('s_or_b64 s[46:47], s[46:47], vcc')
    a.wait(lg=0)
    st.mark(a)
    a('s_barrier')
    AFr, BFr, KVA = 32, 80, 112
    for k in range(4):
        a(f'ds_read_b128 {vr(BFr + 8*k, 4)}, v6 offset:{5120*k}')
        for F in range(3):
            r = AFr + 12*k + 4*F
            for h in range(2):
                a(f'ds_read_b64_tr_b16 {vr(r + 2*h, 2)}, v{4 if F < 2 else 5} offset:{(32*k + 16*h)*80 + (32*F if F < 2 else 0)}')
        a(f'ds_read_b128 {vr(BFr + 8*k + 4, 4)}, v{8+k}')
    for k in range(4):
        for dt in range(2):
            for F in range(3):
                d = KVA + 4*(3*dt + F)
                a(f'v_mfma_f32_16x16x32_bf16 {vr(d,4)}, {vr(AFr + 12*k + 4*F, 4)}, {vr(BFr + 8*k + 4*dt, 4)}, {vr(d,4) if k else 0}')
    a('v_add_u32 v14, v13, v15'); a('v_add_u32 v15, v14, v15')
    for F in range(3): a(f'global_store_dwordx4 v12, {vr(KVA + 4*F, 4)}, {sr(P["ws"],2)} offset:{1024*F} {store_flags}')
    a('s_mov_b64 exec, s[46:47]')
    for F in range(3): a(f'global_store_dwordx4 v{13+F}, {vr(KVA + 12 + 4*F, 4)}, {sr(P["ws"],2)} offset:3072 {store_flags}')
    a('s_mov_b64 exec, -1')
    st.mark(a)

if __name__ == '__main__':
    import sys
    stamps = len(sys.argv) > 2
    a = Asm(); st = Stamps(stamps)
    st.mark(a)
    P = dict(u=4, wqkv=8, wphi=10, gate=14, ws=20)
    a('s_load_dwordx2 s[4:5], s[0:1], 0'); a('s_load_dwordx8 s[8:15], s[0:1], 64'); a('s_load_dwordx2 s[20:21], s[0:1], 112')
    a('s_cmp_ge_u32 s2, 128'); a('s_cbranch_scc1 L_end')
    a('v_lshrrev_b32 v1, 6, v0'); a('v_readfirstlane_b32 s24, v1')
    a('s_and_b32 s22, s2, 7'); a('s_lshr_b32 s23, s2, 3')
    a('s_add_u32 s25, s22, s23'); a('s_mul_i32 s26, s25, 26'); a('s_lshr_b32 s26, s26, 8'); a('s_mul_i32 s26, s26, 10'); a('s_sub_u32 s25, s25, s26')
    a.wait(lg=0)
    a('s_cmp_ge_u32 s24, 4'); a('s_cbranch_scc1 L_prod')
    kv_consumer(a, st, 22, 23, 24, P)
    st.dump(a, 20, 2, 24)
    a('s_endpgm')
    a.label('L_prod'); a.forget()
    a('s_sub_u32 s26, s24, 4')
    kv_producer(a, Stamps(False), 22, 23, 25, 26, P)
    a('s_barrier')
    a.label('L_end'); a('s_endpgm')
    open(sys.argv[1], 'w').write(header([('kv_kernel', 128, 512, KV_LDS)]) + kbegin('kv_kernel') + a.text() + kdesc('kv_kernel', 256))
    print('nops', a.nops, 'instructions', len(a.ins), 'lds', KV_LDS)
```

```python
from common import *

QXS, QWS = 45056, 10240
QXR, QWR = 0, 3*QXS
Q_LDS = QWR + 2*QWS

def q_producer(a, s_j, s_p0, s_rot, s_pw):
    SX, SW = 28, 32
    a('v_and_b32 v1, 63, v0')
    a('v_lshrrev_b32 v2, 3, v1'); a('v_mul_u32_u24 v2, 1280, v2')
    a('v_lshrrev_b32 v3, 4, v1'); a('v_and_b32 v4, 7, v1'); a('v_xor_b32 v3, v3, v4')
    a('v_lshl_add_u32 v10, v3, 4, v2')
    a(f's_and_b32 s45, s{s_pw}, 1'); a('s_lshl_b32 s45, s45, 6')
    a('v_xor_b32 v10, s45, v10'); a('v_xor_b32 v11, 64, v10')
    a(f's_mul_i32 s40, s{s_p0}, {32*1280}'); a(f's_mul_i32 s45, s{s_pw}, {88*1280}'); a('s_add_u32 s40, s40, s45')
    a(f's_mul_i32 s41, s{s_pw}, {11*1024}')
    a(f's_mul_i32 s42, s{s_pw}, 2560'); a(f's_add_u32 s42, s42, {QWR}')
    a(f's_mov_b32 s43, s{s_rot}'); a(f's_mov_b32 s44, s{s_rot}')
    a(f's_mul_i32 s46, s{s_pw}, {16*3840}'); a(f's_mul_i32 s47, s{s_j}, 160'); a('s_add_u32 s46, s46, s47')
    for i in range(3):
        a(f'v_add_u32 v2, {64*i}, v1')
        a('v_mul_u32_u24 v3, 6554, v2'); a('v_lshrrev_b32 v3, 16, v3')
        a('v_mul_u32_u24 v4, 10, v3'); a('v_sub_u32 v4, v2, v4')
        a('v_lshrrev_b32 v5, 1, v3'); a('v_and_b32 v5, 4, v5'); a('v_xor_b32 v5, v5, v3')
        a('v_mul_u32_u24 v5, 3840, v5'); a('v_lshlrev_b32 v4, 4, v4'); a(f'v_add3_u32 v{12+i}, v4, v5, s46')
    a.wait(lg=0)
    srd(a, SX, P['u'], 2621440); srd(a, SW, P['wqkv'], 2457600)
    order = []
    def X(t, lo=0, hi=11):
        if lo == 0: a('s_lshl_b32 s45, s43, 7'); a('s_add_u32 s45, s45, s40')
        for i in range(lo, hi):
            a(f's_add_u32 m0, s41, {QXR + (t % 3)*QXS + 1024*i}')
            if i: a('s_add_u32 s45, s45, 10240')
            a(f'buffer_load_dwordx4 v{10 + (i & 1)}, {sr(SX,4)}, s45 offen lds'); order.append(t)
        if hi == 11: a('s_add_u32 s43, s43, 1'); a(f's_cmp_eq_u32 s43, {NST}'); a('s_cselect_b32 s43, 0, s43')
    def Wt(t):
        a(f's_mul_i32 s48, s44, {64*3840}')
        for i in range(3):
            a(f's_add_u32 m0, s42, {(t % 2)*QWS + 1024*i}')
            if i == 2: a('s_mov_b32 exec_hi, 0')
            a(f'buffer_load_dwordx4 v{12+i}, {sr(SW,4)}, s48 offen lds'); order.append(t)
        a('s_mov_b32 exec_hi, -1')
        a('s_add_u32 s44, s44, 1'); a(f's_cmp_eq_u32 s44, {NST}'); a('s_cselect_b32 s44, 0, s44')
    a.vm = []
    Wt(0); X(0); X(1, 0, 4)
    for s in range(NST):
        last = max(i for i, o in enumerate(order) if o <= s)
        a.wait(vm=len(order) - 1 - last)
        a('s_barrier')
        if s + 1 < NST: Wt(s + 1)
        if s == 0: X(1, 4, 11)
        if s + 2 < NST: X(s + 2)
    a.vm = []

def q_pre(a, s_j, s_pw0):
    li, lg = 2, 3
    a('v_and_b32 v1, 63, v0'); a(f'v_and_b32 v{li}, 15, v0'); a(f'v_bfe_u32 v{lg}, v0, 4, 2')
    AX = 4
    a(f'v_lshrrev_b32 v16, 1, v{li}'); a(f'v_xor_b32 v16, v16, v{lg}'); a('v_lshlrev_b32 v16, 4, v16')
    a(f'v_lshl_add_u32 v16, v{li}, 7, v16'); a(f's_lshl_b32 s40, s{s_pw0}, 12'); a(f'v_add_u32 v{AX}, s40, v16'); a(f'v_xor_b32 v{AX+1}, 64, v{AX}')
    for s in (1, 2):
        for p in range(2): a(f'v_add_u32 v{AX + 2*s + p}, {s*QXS}, v{AX + p}')
    AP, AS = 10, 12
    a(f'v_lshrrev_b32 v16, 2, v{li}'); a(f'v_lshl_add_u32 v16, v{lg}, 3, v16'); a('v_mul_u32_u24 v16, 160, v16')
    a(f'v_and_b32 v17, 1, v{lg}'); a('v_mul_u32_u24 v17, 640, v17')
    a(f'v_and_b32 v18, 3, v{li}'); a('v_mul_u32_u24 v19, 40, v18'); a('v_lshlrev_b32 v18, 3, v18')
    a(f'v_add_u32 v16, {QWR}, v16'); a('v_add_u32 v20, v16, v17'); a('v_sub_u32 v21, v16, v17'); a('v_add_u32 v21, 640, v21')
    for h in range(2):
        a(f'v_add_u32 v{AP+h}, v{20+h}, v18'); a(f'v_add3_u32 v{AS+h}, v{20+h}, v19, 32')
    a('v_lshlrev_b32 v14, 2, v1')

def q_consumer(a, st, s_j, s_pg, npairs):
    NU = 2*npairs
    AX, AP, AS = 4, 10, 12
    QA = 32
    XF = 152
    WF = 168
    def rdx(n):
        ks, u = divmod(n, NU); s = ks >> 1
        return f'ds_read_b128 {vr(XF + 4*(n % 4), 4)}, v{AX + 2*(s % 3) + (ks & 1)} offset:{2048*u}'
    def rdw(ks):
        out = []
        for T in range(5):
            base, o = (AP, 40*T) if T < 4 else (AS, 0)
            o += (ks & 1)*32*160 + ((ks >> 1) % 2)*QWS
            r = WF + 20*(ks & 1) + 4*T
            out += [f'ds_read_b64_tr_b16 {vr(r,2)}, v{base} offset:{o}', f'ds_read_b64_tr_b16 {vr(r+2,2)}, v{base+1} offset:{o}']
        return out
    st.mark(a, 1)
    a('s_barrier')
    st.mark(a, 2)
    w0 = rdw(0)
    a(rdx(0))
    for s in w0: a(s)
    a(rdx(1))
    nx = 2
    NK = 2*NST
    for ks in range(NK):
        fills = {u: [] for u in range(NU)}
        last = (ks + 1)*NU
        if ks & 1 == 0:
            w = rdw(ks + 1)
            for u in range(NU):
                fills[u].append(rdx(nx)); nx += 1
                k = -(-10 // (NU - 1))
                fills[u] += w[:k]; w = w[k:]
        else:
            for u in range(NU - 2):
                while nx < last and nx <= ks*NU + u + (2 if u < NU - 4 else 3): fills[u].append(rdx(nx)); nx += 1
            assert nx == last
            if ks + 1 < NK:
                w = rdw(ks + 1)
                fills[NU - 2] = ['BAR', rdx(nx)] + w[:5]; fills[NU - 1] = w[5:] + [rdx(nx + 1)]; nx += 2
        if ks == NK - 2: fills[NU - 1].append(f'global_load_dword v16, v14, {sr(P["dbg"],2)} sc1')
        for u in range(NU):
            x = XF + 4*((ks*NU + u) % 4)
            f = fills[u]
            for T in range(5):
                d = QA + 20*u + 4*T
                a(f'v_mfma_f32_16x16x32_bf16 {vr(d,4)}, {vr(WF + 20*(ks & 1) + 4*T, 4)}, {vr(x,4)}, {vr(d,4) if ks else 0}')
                k = -(-len(f) // (5 - T))
                for s in f[:k]:
                    if s == 'BAR': a.wait(lg=0); a('s_barrier')
                    else: a(s)
                f = f[k:]
    st.mark(a, 3)
    a.wait(vm=0)
    check_ann(a, 14, 16, preloaded=True)
    a(f's_lshl_b32 s40, s{s_j}, 6'); a(f's_add_u32 s40, s40, s{s_pg}'); a('s_mul_i32 s40, s40, 5120'); a(f's_add_u32 s40, s40, {WS_Q + 2048}')
    a('v_lshl_add_u32 v4, v1, 4, s40'); a('v_mov_b32 v5, 1')
    def stores(fl):
        n = 0
        for p in range(npairs):
            if p: a('v_add_u32 v4, 5120, v4')
            for T in range(5):
                r = XF + 4*(n % 8); n += 1
                for u in range(2):
                    d = QA + 20*(2*p + u) + 4*T
                    for q in range(2): a(f'v_cvt_pk_bf16_f32 v{r + 2*u + q}, v{d + 2*q}, v{d + 2*q + 1}')
                a(f'global_store_dwordx4 v4, {vr(r,4)}, {sr(P["ws"],2)} offset:{1024*T - 2048} {fl}')
        a.wait(vm=0)
        a('s_mov_b64 exec, 1')
        a(f'global_store_dword v15, v5, {sr(P["ws"],2)} {fl}')
        a('s_mov_b64 exec, -1')
    by_mode(a, stores)
    st.mark(a, 5)

def q_role(a, st, tail):
    s_j, s_wave = S_J, S_WAVE
    a(f's_sub_u32 s54, s{S_IDX}, 16')
    a('s_mul_i32 s50, s54, 11'); a('s_cmp_eq_u32 s54, 5'); a('s_subb_u32 s50, s50, 0')
    Lc, L2, L3 = a.newlabel('L_qcons'), a.newlabel('L_q2'), a.newlabel('L_q3')
    a(f's_cmp_lt_u32 s{s_wave}, 4'); a(f's_cbranch_scc1 {Lc}')
    lg0 = list(a.lg)
    q_producer(a, s_j, 50, S_ROT, S_PW)
    a(f's_branch {tail}')
    a.label(Lc); a.forget(); a.lg = lg0
    a(f's_mul_i32 s51, s{s_wave}, 3')
    a('s_cmp_ge_u32 s54, 4'); a('s_cselect_b32 s52, 2, 3')
    a(f's_cmp_gt_u32 s{s_wave}, s52'); a('s_subb_u32 s51, s51, 0')
    a('s_add_u32 s53, s50, s51')
    q_pre(a, s_j, 51)
    a(f's_lshl_b32 s40, s{s_j}, 9'); a('s_lshl_b32 s41, s54, 4'); a('s_add_u32 s40, s40, s41'); a(f's_add_u32 s40, s40, {WS_FL + 256}')
    a('v_add_u32 v16, s40, v14'); a('v_mov_b32 v17, 0')
    a(f's_lshl_b32 s41, s{s_wave}, 2'); a('s_add_u32 s40, s40, s41'); a('v_mov_b32 v15, s40')
    a.wait(lg=0)
    a(f's_cmp_lg_u32 s{s_wave}, 0'); a(f's_cbranch_scc1 {L3}')
    a('s_mov_b64 exec, 15')
    a(f'global_store_dword v16, v17, {sr(P["ws"],2)} sc1')
    a('s_mov_b64 exec, -1')
    announce(a, 16)
    a.label(L3); a.vm = []
    a(f's_cmp_ge_u32 s{s_wave}, s52'); a(f's_cbranch_scc1 {L2}')
    q_consumer(a, st, s_j, 53, 3)
    a(f's_branch {tail}')
    a.label(L2); a.forget()
    q_consumer(a, st, s_j, 53, 2)
    a(f's_branch {tail}')
```

```python
import sys
from common import *
import conv, kv, qrole, final

def build(st):
    a = Asm()
    st.mark(a, 0)
    a('s_load_dwordx16 s[4:19], s[0:1], 0'); a('s_load_dwordx8 s[56:63], s[0:1], 64'); a('s_load_dwordx4 s[64:67], s[0:1], 96'); a('s_load_dwordx2 s[20:21], s[0:1], 112')
    a('s_cmp_ge_u32 s2, 256'); a('s_cbranch_scc1 L_end')
    a('v_lshrrev_b32 v1, 6, v0'); a(f'v_readfirstlane_b32 s{S_WAVE}, v1')
    a(f's_and_b32 s{S_J}, s2, 7'); a(f's_lshr_b32 s{S_IDX}, s2, 3')
    a(f's_getreg_b32 s{S_PAT}, hwreg(HW_REG_XCC_ID, 0, 4)'); a(f's_or_b32 s{S_PAT}, s{S_PAT}, 0x80'); a(f's_mul_i32 s{S_PAT}, s{S_PAT}, 0x01010101')
    a(f's_lshl_b32 s{S_RT}, s{S_J}, 2'); a(f's_lshr_b32 s40, s{S_IDX}, 3'); a(f's_add_u32 s{S_RT}, s{S_RT}, s40'); a(f's_and_b32 s{S_CT}, s{S_IDX}, 7')
    a(f's_add_u32 s40, s{S_IDX}, 1'); a('s_and_b32 s40, s40, 3'); a('s_mul_i32 s40, s40, 10240'); a(f's_add_u32 s{S_AI}, s40, {kv.PHI}')
    a(f's_and_b32 s{S_PW}, s{S_WAVE}, 3')
    def mod10(r):
        a(f's_mul_i32 s40, s{r}, 26'); a('s_lshr_b32 s40, s40, 8'); a('s_mul_i32 s40, s40, 10'); a(f's_sub_u32 s{r}, s{r}, s40')
    ROT = env('ROT', 1)
    r = S_ROT
    lg0 = list(a.lg)
    a(f's_cmp_ge_u32 s{S_IDX}, 22'); a('s_cbranch_scc1 L_conv')
    a(f's_cmp_ge_u32 s{S_IDX}, 16'); a('s_cbranch_scc1 L_q')
    a(f's_cmp_lt_u32 s{S_WAVE}, 4'); a('s_cbranch_scc1 L_kvc')
    if ROT == 0:
        a(f's_mul_i32 s{r}, s{S_IDX}, 93'); a(f's_lshr_b32 s{r}, s{r}, 8'); a(f's_lshl_b32 s{r}, s{r}, 1'); a(f's_add_u32 s{r}, s{r}, s{S_J}'); mod10(r)
    else:
        a(f's_mul_i32 s{r}, s{S_J}, 5'); a(f's_lshr_b32 s{r}, s{r}, 2')
    kv.kv_producer(a, st)
    a.label('L_floader'); a.forget()
    final.f_loader(a, st)
    st.dump(a, 20, 2, S_WAVE, n=11)
    a.label('L_end'); a('s_endpgm')
    a.label('L_kvc'); a.forget(); a.lg = list(lg0)
    kv.kv_consumer(a, st)
    a.label('L_fcompute'); a.forget()
    final.f_compute(a, st)
    st.dump(a, 20, 2, S_WAVE, n=11)
    a('s_endpgm')
    a.label('L_q'); a.forget(); a.lg = list(lg0)
    if ROT == 0:
        a(f's_lshl_b32 s{r}, s{S_IDX}, 1'); a(f's_add_u32 s{r}, s{r}, s{S_J}'); a(f's_sub_u32 s{r}, s{r}, 27'); mod10(r)
    else:
        a(f's_mul_i32 s{r}, s{S_J}, 5'); a(f's_lshr_b32 s{r}, s{r}, 2'); a(f's_add_u32 s{r}, s{r}, {ROT-1}'); mod10(r)
    qrole.q_role(a, st, 'L_tail')
    a.label('L_conv'); a.forget(); a.lg = list(lg0)
    a(f's_sub_u32 s{r}, s{S_IDX}, 22'); a(f's_mul_i32 s54, s{S_J}, 10'); a(f's_add_u32 s54, s54, s{r}'); a(f's_lshl_b32 s{r}, s{r}, 1')
    conv.conv_role(a, st, 54, r, S_WAVE)
    a('s_barrier')
    a(f's_cmp_lg_u32 s{S_WAVE}, 0'); a('s_cbranch_scc1 L_tail2')
    a('v_mov_b32 v251, 1'); a('s_mov_b64 exec, 1')
    a(f'global_store_dword v250, v251, {sr(P["ws"],2)} sc1')
    a('s_mov_b64 exec, -1')
    a('s_branch L_tail2')
    a.label('L_tail'); a.forget()
    a('s_barrier')
    a.label('L_tail2')
    st.mark(a, 6)
    a(f's_cmp_lt_u32 s{S_WAVE}, 4'); a('s_cbranch_scc1 L_tail3')
    final.wo_addr(a); final.wo_issue(a, S_PW, 5, 4)
    a.wait(vm=0); a('s_barrier')
    st.mark(a, 7)
    a('s_branch L_floader')
    a.label('L_tail3')
    a('s_barrier')
    st.mark(a, 7)
    a('s_branch L_fcompute')
    a.label('L_codeend')
    return a

if __name__ == '__main__':
    stamps = len(sys.argv) > 2 and sys.argv[2] == '1'
    a = build(Stamps(stamps))
    n = NAME + '_kernel'
    ref = open('cdna_kernels/' + NAME + '.s.ref').read()
    head = ref[:ref.index('; @launch')]
    if len(sys.argv) > 3: s = header([(n, 256, 512, 163840)])
    else: s = head + '; @launch grid=(256,1,1) block=(512,1,1) lds=163840\n.amdgcn_target "amdgcn-amd-amdhsa--gfx950"\n.text\n'
    s += kbegin(n) + a.text() + kdesc(n, 256)
    open(sys.argv[1], 'w').write(s)
    print('nops', a.nops, 'instructions', len(a.ins))
```

```python
import re

TRANS = ('v_exp_f32','v_log_f32','v_rcp_f32','v_rsq_f32','v_sqrt_f32','v_sin_f32','v_cos_f32','v_rcp_iflag_f32')

def regs_of(tok):
    tok = tok.strip()
    neg = tok.lstrip('-')
    m = re.fullmatch(r'(?:abs\()?\|?([vsa])(\d+)\|?\)?', neg)
    if m: return [(m.group(1), int(m.group(2)))]
    m = re.fullmatch(r'([vsa])\[(\d+):(\d+)\]', neg)
    if m: return [(m.group(1), i) for i in range(int(m.group(2)), int(m.group(3)) + 1)]
    if neg == 'vcc': return [('s', 'vcc_lo'), ('s', 'vcc_hi')]
    if neg in ('vcc_lo', 'vcc_hi', 'exec_lo', 'exec_hi', 'm0'): return [('s', neg)]
    if neg == 'exec': return [('s', 'exec_lo'), ('s', 'exec_hi')]
    return []

def split_ops(s):
    out = []; depth = 0; cur = ''
    for ch in s:
        if ch in '[(': depth += 1
        if ch in '])': depth -= 1
        if ch == ',' and depth == 0: out.append(cur.strip()); cur = ''
        else: cur += ch
    if cur.strip(): out.append(cur.strip())
    return out

class Ins:
    def __init__(self, text):
        self.text = text
        t = text.split(';')[0].strip()
        self.label = t.endswith(':')
        self.directive = t.startswith('.')
        self.op = t.split()[0] if t and not self.label else ''
        self.dst = []; self.src = []; self.srcC = []; self.mods = ''
        self.kind = 'other'
        if self.label or self.directive or not t: return
        rest = t[len(self.op):].strip()
        ops = split_ops(rest)
        if ops:
            parts = ops[-1].split()
            ops[-1] = parts[0]; self.mods = ' '.join(parts[1:])
        R = [regs_of(o) for o in ops]
        op = self.op
        flat = lambda L: [r for x in L for r in x]
        if op.startswith('v_mfma'):
            self.kind = 'mfma'; self.dst = R[0]; self.src = R[1] + R[2]; self.srcC = R[3]
            self.passes = 8 if '32x32' in op else (2 if '4x4' in op else 4)
        elif op.startswith('v_'):
            self.kind = 'valu'
            base = op.replace('_e32','').replace('_e64','').replace('_dpp','').replace('_sdwa','')
            self.trans = base in TRANS
            self.dpp = ('_dpp' in op) or any(k in self.mods for k in ('quad_perm','row_','wave_'))
            self.perml = base.startswith('v_permlane')
            self.rdl = base.startswith('v_readfirstlane') or base.startswith('v_readlane')
            self.dst = R[0]; self.src = flat(R[1:])
            if self.perml or base == 'v_swap_b32': self.dst = R[0] + R[1]; self.src = R[0] + R[1]
            if base in ('v_fmac_f32','v_dot2c_f32_bf16','v_pk_fmac_f16','v_writelane_b32') or self.dpp or 'sdwa' in op: self.src = self.src + R[0]
            if base in ('v_add_co_u32','v_sub_co_u32','v_addc_co_u32','v_subb_co_u32','v_mad_u64_u32'): self.dst = R[0] + R[1]; self.src = flat(R[2:])
            if base.startswith('v_cndmask') and len(ops) == 3: self.src += regs_of('vcc')
            self.opsel_dst = ('dst_sel' in self.mods and 'dst_sel:DWORD' not in self.mods)
        elif op.startswith('ds_'):
            self.kind = 'ds'
            if op.startswith('ds_read') or op.startswith('ds_bpermute') or op.startswith('ds_swizzle') or '_rtn' in op:
                self.dst = R[0]; self.src = flat(R[1:])
                if 'd16' in op: self.src += R[0]
            else: self.src = flat(R)
        elif op.startswith('buffer_') or op.startswith('global_'):
            self.kind = 'vmem'
            self.lds = ' lds' in (' ' + self.mods) or '_lds_' in op
            if op in ('buffer_wbl2','buffer_inv'): pass
            elif 'load' in op and not self.lds:
                self.dst = R[0]; self.src = flat(R[1:])
                if 'd16' in op: self.src += R[0]
            elif 'atomic' in op and 'sc0' in self.mods: self.dst = R[0]; self.src = flat(R)
            else: self.src = flat(R)
            if self.lds: self.src += [('s', 'm0')]
            self.wide_store = ('store' in op) and ('x4' in op or 'x3' in op)
            self.sdata = (R[0] if op.startswith('buffer_') else R[1]) if 'store' in op else []
        elif op.startswith('s_load') or op.startswith('s_buffer_load') or op.startswith('s_memtime') or op.startswith('s_memrealtime'):
            self.kind = 'smem'; self.dst = R[0]; self.src = flat(R[1:])
        elif op.startswith('s_'):
            self.kind = 'salu'
            if op.startswith('s_cmp') or op.startswith('s_cbranch') or op in ('s_branch','s_waitcnt','s_nop','s_barrier','s_endpgm','s_sleep','s_setprio','s_setpc_b64'):
                self.src = flat(R)
                if 'vcc' in op: self.src += regs_of('vcc')
            else:
                self.dst = R[0] if R else []; self.src = flat(R[1:])
                if 'saveexec' in op: self.dst = self.dst + regs_of('exec')
    def states(self):
        if self.label or self.directive or not self.op: return 0
        if self.op == 's_nop': return int(self.text.split()[1]) + 1
        return 1

def need(prod, cons):
    n = 0
    ov = lambda a, b: bool(set(a) & set(b))
    vg = lambda L: [r for r in L if r[0] in 'va']
    sg = lambda L: [r for r in L if r[0] == 's']
    if prod.kind == 'valu':
        pv = vg(prod.dst); ps = sg(prod.dst)
        if cons.kind == 'mfma' and ov(pv, cons.src + cons.srcC): n = max(n, 2)
        if cons.kind == 'valu':
            if prod.trans and not cons.trans and ov(pv, cons.src): n = max(n, 1)
            if prod.trans and cons.trans and ov(pv, cons.src): n = max(n, 1)
            if (cons.dpp or cons.perml) and ov(pv, cons.src): n = max(n, 2)
            if cons.rdl and ov(pv, cons.src): n = max(n, 1)
            if prod.opsel_dst and ov(pv, cons.src + cons.dst): n = max(n, 1)
            if ov(ps, cons.src): n = max(n, 4 if cons.rdl else 2)
        if prod.trans and cons.kind in ('ds', 'vmem') and ov(pv, cons.src): n = max(n, 1)
        if cons.kind == 'vmem' and ov(ps, cons.src): n = max(n, 5)
        if cons.kind in ('salu', 'smem') and ov(ps, cons.src): n = max(n, 1)
    if prod.kind == 'mfma':
        p = prod.passes
        if cons.kind == 'mfma':
            if ov(prod.dst, cons.src): n = max(n, {2:5,4:8,8:12}[p])
            if ov(prod.dst, cons.srcC):
                if prod.dst == cons.srcC and prod.op == cons.op: n = max(n, 2 if p == 2 else 0)
                else: n = max(n, {2:4,4:6,8:10}[p])
            elif ov(prod.dst, cons.dst): n = max(n, {2:5,4:8,8:12}[p])
        elif cons.kind in ('valu', 'ds', 'vmem'):
            if ov(prod.dst, cons.src + cons.dst): n = max(n, {2:5,4:8,8:12}[p])
            if ov(prod.srcC, cons.dst): n = max(n, {2:1,4:3,8:7}[p])
    if prod.kind == 'salu' and ('s', 'm0') in prod.dst and cons.kind in ('vmem','ds') and ('s', 'm0') in cons.src: n = max(n, 1)
    if prod.kind == 'vmem' and getattr(prod, 'wide_store', False) and ov(prod.sdata, cons.dst): n = max(n, 2)
    return n

class Asm:
    def __init__(self):
        self.ins = []
        self.lg = []
        self.vm = []
        self.nops = 0
        self.auto = True
        self.uid = 0
        self.deferred = []
    def raw(self, text): self.ins.append(Ins(text))
    def label(self, name):
        self.raw(name + ':')
    def newlabel(self, base):
        self.uid += 1; return f'{base}_{self.uid}'
    def comment(self, t): self.raw('; ' + t)
    def forget(self):
        self.lg = []; self.vm = []
    def _apply_wait(self, vm=None, lg=None):
        if vm is not None: self.vm = self.vm[len(self.vm) - vm:] if vm < len(self.vm) and vm > 0 else ([] if vm == 0 else self.vm)
        if lg is not None: self.lg = self.lg[len(self.lg) - lg:] if lg < len(self.lg) and lg > 0 else ([] if lg == 0 else self.lg)
    def wait(self, vm=None, lg=None):
        s = 's_waitcnt'
        if vm is not None: s += f' vmcnt({vm})'
        if lg is not None: s += f' lgkmcnt({lg})'
        self._apply_wait(vm, lg)
        self.ins.append(Ins(s))
    def __call__(self, text):
        for line in text.split('\n'):
            line = line.strip()
            if not line: continue
            self.emit(line)
    def emit(self, line):
        i = Ins(line)
        if i.label or i.directive or not i.op:
            self.ins.append(i); return
        if i.op == 's_waitcnt':
            vm = re.search(r'vmcnt\((\d+)\)', line); lg = re.search(r'lgkmcnt\((\d+)\)', line)
            self._apply_wait(int(vm.group(1)) if vm else None, int(lg.group(1)) if lg else None)
            self.ins.append(i); return
        touched = set(i.src + i.srcC + i.dst)
        if self.auto:
            wv = wl = None
            for k in range(len(self.vm) - 1, -1, -1):
                if touched & set(self.vm[k]): wv = len(self.vm) - 1 - k; break
            for k in range(len(self.lg) - 1, -1, -1):
                if touched & set(self.lg[k][1]):
                    wl = len(self.lg) - 1 - k
                    if any(x[0] == 'smem' for x in self.lg): wl = 0
                    break
            if wv is not None: wv = min(wv, 63)
            if wl is not None: wl = min(wl, 15)
            if wv is not None or wl is not None: self.wait(wv, wl)
        dist = 0; req = 0
        for p in reversed(self.ins):
            if dist >= 20: break
            if p.op: req = max(req, need(p, i) - dist)
            dist += p.states()
        if req > 0:
            self.nops += req
            self.ins.append(Ins(f's_nop {req - 1}'))
        self.ins.append(i)
        if i.kind == 'ds': self.lg.append(('ds', i.dst))
        elif i.kind == 'smem': self.lg.append(('smem', i.dst))
        elif i.kind == 'vmem': self.vm.append(i.dst)
    def text(self):
        out = []
        for i in self.ins:
            out.append(i.text if (i.label or i.directive) else '    ' + i.text)
        return '\n'.join(out) + '\n'

def vr(a, n=1): return f'v{a}' if n == 1 else f'v[{a}:{a+n-1}]'
def sr(a, n=1): return f's{a}' if n == 1 else f's[{a}:{a+n-1}]'

def interleave(*streams):
    streams = [list(s) for s in streams if s]
    tot = [len(s) for s in streams]; pos = [0] * len(streams); out = []
    while any(pos[k] < tot[k] for k in range(len(streams))):
        k = min((k for k in range(len(streams)) if pos[k] < tot[k]), key=lambda k: (pos[k] + 0.5) / tot[k])
        out.append(streams[k][pos[k]]); pos[k] += 1
    return out

def header(launches):
    s = ''
    for (name, grid, block, lds) in launches:
        s += f'; @launch kernel={name} grid=({grid},1,1) block=({block},1,1) lds={lds}\n'
    s += '.amdgcn_target "amdgcn-amd-amdhsa--gfx950"\n.text\n'
    return s
def kbegin(name): return f'.globl {name}\n.p2align 8\n.type {name},@function\n{name}:\n'
def kdesc(name, vgpr, sgpr=102, accum=None):
    if accum is None: accum = (min(vgpr, 256) + 3) // 4 * 4
    return f'''.section .rodata,"a"
.p2align 6
.amdhsa_kernel {name}
  .amdhsa_next_free_vgpr {vgpr}
  .amdhsa_next_free_sgpr {sgpr}
  .amdhsa_accum_offset {accum}
  .amdhsa_group_segment_fixed_size 0
  .amdhsa_kernarg_size 120
  .amdhsa_user_sgpr_count 2
  .amdhsa_user_sgpr_kernarg_segment_ptr 1
  .amdhsa_system_sgpr_workgroup_id_x 1
  .amdhsa_float_denorm_mode_32 3
.end_amdhsa_kernel
.text
'''

def _need(self, regs):
    touched = set(('v', r) for r in regs)
    wv = wl = None
    for k in range(len(self.vm) - 1, -1, -1):
        if touched & set(self.vm[k]): wv = min(len(self.vm) - 1 - k, 63); break
    for k in range(len(self.lg) - 1, -1, -1):
        if touched & set(self.lg[k][1]):
            wl = 0 if any(x[0] == 'smem' for x in self.lg) else min(len(self.lg) - 1 - k, 15); break
    if wv is not None or wl is not None: self.wait(wv, wl)
Asm.need = _need

import subprocess, tempfile, os as _os
def sizes_of(a):
    d = tempfile.mkdtemp()
    open(d + '/x.s', 'w').write('.amdgcn_target "amdgcn-amd-amdhsa--gfx950"\n.text\n' + re.sub(r'(?m)^\.p2align.*$', '', a.text()))
    subprocess.run(['clang', '-x', 'assembler', '-target', 'amdgcn-amd-amdhsa', '-mcpu=gfx950', '-c', d + '/x.s', '-o', d + '/x.o'], check=True)
    out = subprocess.run(['llvm-objdump', '-d', '--mcpu=gfx950', d + '/x.o'], capture_output=True, text=True).stdout
    sz = []
    for l in out.split('\n'):
        m = re.search(r'// [0-9A-F]{12}: ((?:[0-9A-F]{8} ?)+)', l)
        if m: sz.append(4*len(m.group(1).split()))
    return sz

NO_E64 = ('v_readfirstlane', 'v_swap', 'v_permlane', 'v_nop', 'v_accvgpr', 'v_dot2c', 'v_fmac', 'v_pk_fmac')
def align8(a, min_run=5):
    real = [i for i in a.ins if i.op and not i.directive]
    sz = sizes_of(a); assert len(sz) == len(real), (len(sz), len(real))
    size = {id(i): s for i, s in zip(real, sz)}
    out = []; off = 0; cand = None; promoted = padded = left = 0
    for k, i in enumerate(a.ins):
        if not (i.op and not i.directive):
            if i.directive and 'p2align' in i.text: off = 0; cand = None
            out.append(i); continue
        s = size[id(i)]
        if s >= 8 and off % 8:
            if cand is not None:
                c = out[cand]; t = c.text.strip()
                out[cand] = Ins(c.op + '_e64' + t[len(c.op):]); off += 4; promoted += 1
            else:
                run = 0; mf = 0
                for j in a.ins[k:]:
                    if not (j.op and not j.directive): continue
                    if size[id(j)] % 8: break
                    run += 1; mf += j.kind == 'mfma'
                if run >= min_run and 3*mf < run:
                    out.append(Ins('s_nop 0')); off += 4; padded += 1
                else: left += 1
        if s == 4 and i.kind == 'valu' and not i.op.endswith(('_e32', '_e64')) and not i.op.startswith(NO_E64): cand = len(out)
        elif s >= 8: cand = None
        out.append(i); off += s
    a.ins = out
    return promoted, padded, left
```

```python
from asmgen import *
import os
NAME = 'gated_mix__ssm_conv_s4d__linear_kernel_hedgehog__prompt'
WS_A   = 0x000000
WS_Q   = 0x400000
WS_KV  = 0x800000
WS_O   = 0xC00000
WS_G   = 0xF80000
WS_FL  = 0xF90000
WS_FA  = 0xFA0000
WS_FO  = 0xFB0000
WS_STAMP = 0x1000000
LOG2E = 0x3fb8aa3b
INV2PI = 0x3e22f983
NST = 10
def env(k, d): return int(os.environ.get(k, d))

P = dict(u=4, logA=6, Aim=8, Cre=10, Cim=12, logdt=14, Dskip=16, ws=20, wqkv=56, wphi=58, wo=60, gate=62, out=64, dbg=66)
S_J, S_IDX, S_WAVE, S_ROT, S_PW = 22, 23, 24, 25, 26
S_MODE, S_RT, S_CT, S_AI, S_PAT = 68, 69, 70, 71, 72

def srd(a, r, ptr, nbytes):
    a(f's_mov_b32 s{r}, s{ptr}'); a(f's_and_b32 s{r+1}, s{ptr+1}, 0xffff'); a(f's_mov_b32 s{r+2}, {nbytes}'); a(f's_mov_b32 s{r+3}, 0x20000')

def poll(a, vaddr, vdst, base, check, sleep=0, zero=None):
    L, D = a.newlabel('L_poll'), a.newlabel('L_polled')
    a('s_mov_b32 s27, 0')
    a.label(L)
    if zero is None: a(f'global_load_dword v{vdst}, v{vaddr}, {sr(base,2)} sc1')
    else: a(f'global_atomic_add v{vdst}, v{vaddr}, v{zero}, {sr(base,2)} sc0 sc1')
    a.wait(vm=0)
    for s in check: a(s)
    a(f's_cbranch_vccz {D}')
    if sleep: a(f's_sleep {sleep}')
    a('s_add_u32 s27, s27, 1'); a('s_cmp_lt_u32 s27, 0x40000'); a(f's_cbranch_scc1 {L}')
    a.label(D)

def poll_flag(a, vaddr, vdst, lanes=64, sleep=0):
    if lanes < 64: a(f's_mov_b64 exec, {(1 << lanes) - 1}') if lanes < 32 else a('s_mov_b32 exec_hi, 0')
    poll(a, vaddr, vdst, P['ws'], [f'v_cmp_ne_u32 vcc, 1, v{vdst}'], sleep)
    if lanes < 64: a('s_mov_b64 exec, -1')

def announce(a, vt, also_conv=False):
    a.wait(vm=0)
    a(f's_lshl_b32 s40, s{S_J}, 5'); a(f's_add_u32 s40, s40, s{S_IDX}'); a(f's_and_b32 s42, s{S_PAT}, 0xff')
    a(f'v_mul_u32_u24 v{vt}, 22, v1'); a(f'v_add_u32 v{vt}, s40, v{vt}')
    a(f'v_lshlrev_b32 v{vt+1}, 3, v{vt}'); a(f'v_lshlrev_b32 v{vt+1}, v{vt+1}, s42'); a(f'v_and_b32 v{vt}, 0xfc, v{vt}')
    if also_conv: a(f's_cmp_lt_u32 s{S_IDX}, 10'); a('s_cselect_b64 exec, 3, 1')
    else: a('s_mov_b64 exec, 1')
    a(f'global_atomic_or v{vt}, v{vt+1}, {sr(P["dbg"],2)} sc1')
    a('s_mov_b64 exec, -1')

def check_ann(a, vaddr, vdst, preloaded=False):
    chk = [f'v_and_b32 v{vdst+1}, 0x80808080, v{vdst}', f'v_cmp_ne_u32 vcc, 0x80808080, v{vdst+1}']
    D = a.newlabel('L_ann')
    if preloaded:
        for s in chk: a(s)
        a(f's_cbranch_vccz {D}')
    vm = list(a.vm)
    poll(a, vaddr, vdst, P['dbg'], chk)
    a.label(D)
    if preloaded: a.vm = vm
    a(f'v_cmp_eq_u32 vcc, s{S_PAT}, v{vdst}')
    a(f's_lshl_b32 s40, s{S_J}, 3'); a('s_lshr_b64 s[40:41], vcc, s40'); a('s_and_b32 s40, s40, 0xff')
    a('s_cmp_eq_u32 s40, 0xff'); a(f's_cselect_b32 s{S_MODE}, 1, 0')

def by_mode(a, body):
    G, D = a.newlabel('L_glob'), a.newlabel('L_mode')
    a(f's_cmp_eq_u32 s{S_MODE}, 0'); a(f's_cbranch_scc1 {G}')
    lg, vm = list(a.lg), list(a.vm)
    body(os.environ.get('LFL', ''))
    a(f's_branch {D}')
    a.label(G); a.lg, a.vm = lg, vm
    a('s_nop 7')
    body('sc1')
    a.label(D)

class Stamps:
    def __init__(self, on): self.on = on; self.n = 0
    def mark(self, a, k=None, tag='main'):
        if not self.on: return
        if k != 0 and tag != os.environ.get('DIAG', 'main'): return
        if k is None: k = self.n
        assert k < 12
        a.raw(f'    {"s_memtime" if os.environ.get("CYC") else "s_memrealtime"} s[{76+2*k}:{77+2*k}]')
        a.lg.append(('smem', [('s', 76+2*k), ('s', 77+2*k)]))
        self.n = max(self.n, k + 1)
    def dump(self, a, s_ws, s_wg, s_wave, kidx=0, n=None):
        if not self.on: return
        a.wait(vm=0)
        a.raw('    s_memrealtime s[98:99]')
        a.wait(lg=0)
        n = 12
        a(f's_lshl_b32 s75, s{s_wg}, 3')
        a(f's_add_u32 s75, s75, s{s_wave}')
        a(f's_lshl_b32 s75, s75, 6')
        a(f's_add_u32 s75, s75, {WS_STAMP + kidx*0x40000}')
        a('v_mov_b32 v1, s75')
        for k in range(n or self.n):
            a(f'v_mov_b32 v2, s{76+2*k}')
            a(f'global_store_dword v1, v2, s[{s_ws}:{s_ws+1}] offset:{4*k}')
```

```python
from common import *
import final

STG, TAB = 0, 8704
CW = 12800
UW = 4608
UB = 8 * CW
RS = 544
DA, DB, T2, T3 = TAB, TAB + 1216, TAB + 2368, TAB + 2880
BANDS = UB + 8 * UW
CONV_LDS = BANDS + 8192

def cmul(z, x, y, t):
    return [f'v_pk_mul_f32 {vr(t,2)}, {vr(x,2)}, {vr(y,2)} op_sel:[0,0] op_sel_hi:[0,1]',
            f'v_pk_fma_f32 {vr(z,2)}, {vr(x,2)}, {vr(y,2)}, {vr(t,2)} op_sel:[1,1,0] op_sel_hi:[1,0,1] neg_lo:[1,0,0]']

def touch_early(a, s_wave):
    n = 0
    a(f's_sub_u32 s50, s{S_IDX}, 22'); a('s_lshl_b32 s51, s50, 3'); a(f's_add_u32 s51, s51, s{s_wave}')
    if env('PF_W', 1):
        a('v_and_b32 v6, 7, v1'); a('v_mul_u32_u24 v6, 3840, v6')
        a('v_lshrrev_b32 v7, 3, v1'); a('v_min_u32 v7, 5, v7')
        if env('PF_W', 1) == 2: a('v_max_u32 v7, 2, v7')
        a('v_lshrrev_b32 v16, 1, v7'); a('v_mul_u32_u24 v16, 1024, v16'); a('v_lshl_add_u32 v7, v7, 7, v16')
        a(f's_mul_i32 s43, s51, {8*3840}'); a(f's_mul_i32 s44, s{S_J}, 160'); a('s_andn2_b32 s44, s44, 127'); a('s_add_u32 s43, s43, s44')
        a('v_add3_u32 v6, v6, v7, s43')
        a(f'global_load_dword v254, v6, {sr(P["wqkv"],2)}'); n += 1
    return n

def touch_mid(a, s_wave):
    for rep in range(2):
        if rep: a('s_sub_u32 s51, s51, 4')
        if env('PF_WO', 0):
            a(f's_mul_i32 s43, s{S_J}, 10'); a('s_add_u32 s43, s43, s51'); a('s_cmp_ge_u32 s43, 80'); a('s_cselect_b32 s44, 80, 0'); a('s_sub_u32 s43, s43, s44')
            a(f's_mul_i32 s43, s43, {80*128}'); a('v_lshl_add_u32 v246, v1, 7, s43')
            a(f'global_load_dword v255, v246, {sr(P["wo"],2)}')
            a('v_and_b32 v247, 15, v1'); a('v_lshlrev_b32 v247, 7, v247'); a('v_add_u32 v247, 8192, v247'); a('v_add_u32 v247, s43, v247')
            a('s_mov_b64 exec, 0xffff')
            a(f'global_load_dword v252, v247, {sr(P["wo"],2)}')
            a('s_mov_b64 exec, -1')
        if env('PF_MID', 1):
            a(f's_mul_i32 s43, s{S_J}, {64*5120}'); a('s_lshl_b32 s44, s51, 12'); a('s_add_u32 s43, s43, s44'); a(f's_add_u32 s43, s43, {WS_Q}')
            a('v_lshl_add_u32 v246, v1, 7, s43')
            a('s_mul_i32 s44, s51, 26'); a('s_sub_u32 s44, s44, 32'); a('v_add_u32 v247, s44, v1'); a('v_min_u32 v247, 2047, v247')
            a(f's_lshl_b32 s43, s{S_J}, 18'); a(f's_add_u32 s43, s43, {WS_KV}'); a('v_lshl_add_u32 v247, v247, 7, s43')
            a('v_cmp_gt_u32 vcc, 32, v1'); a('v_cndmask_b32 v246, v247, v246, vcc')
            a(f'global_load_dword v254, v246, {sr(P["ws"],2)} sc1')
        a.vm = []
    if env('PF_MID', 1):
        a(f's_lshl_b32 s43, s{S_J}, 9'); a(f's_add_u32 s43, s43, {WS_FL}'); a('v_and_b32 v247, 3, v1'); a('v_lshl_add_u32 v247, v247, 7, s43')
        a('s_mov_b64 exec, 15')
        a(f'global_load_dword v253, v247, {sr(P["ws"],2)} sc1')
        a('s_mov_b64 exec, -1')
    a.vm = []

def conv_role(a, st, s_cg, s_rot, s_wave, store_flags='sc1'):
    lane, li, lg = 1, 2, 3
    sT, sT2, sLB = 52, 53, 55
    a(f'v_and_b32 v{lane}, 63, v0')
    a(f's_lshl_b32 s{sT}, s{s_cg}, 3')
    a(f's_add_u32 s{sT}, s{sT}, s{s_wave}')
    a(f's_lshl_b32 s{sT2}, s{sT}, 8')
    a(f'v_lshl_add_u32 v4, v{lane}, 2, s{sT2}')
    a(f's_lshl_b32 s{sT2}, s{sT}, 1')
    a(f'v_mov_b32 v5, s{sT2}')
    pl = dict(dt=8, logA=9, Aim=10, Cre=11, Cim=12, Dsk=13)
    a(f's_lshl_b32 s43, s{s_cg}, 7'); a(f's_add_u32 s43, s43, {WS_FA}'); a('v_mov_b32 v250, s43'); a('v_mov_b32 v251, 0')
    UL = 184
    a(f's_sub_u32 s{sT2}, s{s_rot}, s{s_wave}')
    a(f's_and_b32 s46, s{sT2}, 7'); a('s_xor_b32 s49, s46, 4')
    a(f's_lshl_b32 s47, s{s_cg}, 4')
    a(f'v_mul_u32_u24 v15, {4*1280}, v{lane}'); a('v_add_u32 v15, s47, v15')
    a(f's_mul_i32 s{sT2}, s49, {256*1280}'); a(f'v_add_u32 v249, s{sT2}, v15')
    a(f's_mul_i32 s{sT2}, s46, {256*1280}'); a(f'v_add_u32 v15, s{sT2}, v15')
    def usite(k):
        L = a.newlabel('L_us')
        a(f's_cmp_lg_u32 s{s_wave}, {k & 3}'); a(f's_cbranch_scc1 {L}')
        for j in range(4): a.raw(f'    global_load_dwordx4 {vr(UL + 16*(k >> 2) + 4*j, 4)}, v{249 if k >> 2 else 15}, {sr(P["u"],2)} offset:{1280*j}')
        a.label(L)
    a.wait(lg=0)
    a(f'global_load_ushort v{pl["dt"]}, v5, {sr(P["logdt"],2)}')
    a(f'global_load_dword v{pl["logA"]}, v4, {sr(P["logA"],2)}')
    a(f'global_load_dword v{pl["Aim"]}, v4, {sr(P["Aim"],2)}')
    a(f'global_load_dword v{pl["Cre"]}, v4, {sr(P["Cre"],2)}')
    a(f'global_load_dword v{pl["Cim"]}, v4, {sr(P["Cim"],2)}')
    a(f'global_load_ushort v{pl["Dsk"]}, v5, {sr(P["Dskip"],2)}')
    nearly = touch_early(a, s_wave)
    a(f'v_and_b32 v{li}, 15, v0')
    a(f'v_bfe_u32 v{lg}, v0, 4, 2')
    a(f's_mul_i32 s{sLB}, s{s_wave}, {CW}')
    Z = 16
    for k in range(4): a(f'v_mov_b32 v{Z+k}, 0')
    a(f'v_lshl_add_u32 v6, v{lane}, 4, s{sLB}')
    a('s_barrier')
    usite(0)
    for k in range(4): a(f'ds_write_b128 v6, {vr(Z,4)} offset:{TAB + 1024*k}')
    a(f's_mul_i32 s42, s{s_wave}, {UW}'); a(f's_add_u32 s42, s42, {UB}'); a(f'v_lshl_add_u32 v6, v{lane}, 3, s42'); a(f'ds_write_b64 v6, {vr(Z,2)}')
    a(f's_lshl_b32 s43, s{s_wave}, 2'); a('s_lshr_b32 s44, 0x233579, s43'); a('s_lshr_b32 s45, 0xcb3654, s43')
    a('s_and_b32 s44, s44, 15'); a('s_and_b32 s45, s45, 15'); a('s_bfm_b32 s45, s44, s45')
    a(f's_cmp_eq_u32 s{s_wave}, 5'); a('s_mov_b32 s44, 0xffff'); a('s_cselect_b32 s44, s44, 0x3f80')
    a(f'v_lshlrev_b32 v7, 3, v{lg}'); a(f'v_lshlrev_b32 v20, v{li}, s45'); a('v_bfe_u32 v20, v20, v7, 8'); a('v_lshl_or_b32 v20, v20, 15, v20')
    for q in range(4):
        if q: a('v_lshrrev_b32 v20, 2, v20')
        a(f'v_and_b32 v{24+q}, 0x10001, v20'); a(f'v_mul_u32_u24 v{24+q}, s44, v{24+q}')
    A_BAND = 248
    a(f'v_lshlrev_b32 v{A_BAND}, 4, v{lane}'); a(f'v_add_u32 v{A_BAND}, {BANDS}, v{A_BAND}')
    a(f's_lshl_b32 s43, s{s_wave}, 10'); a(f'v_add_u32 v21, s43, v{A_BAND}'); a('ds_write_b128 v21, v[24:27]')
    usite(1)
    AW, A_R, A_R1, A_R2, A_R0, A_R3, A_D, A_D16, A_T2, A_T3, A_U, A_O, A_TR = 228, 232, 233, 234, 235, 236, 237, 238, 239, 240, 241, 242, 243
    a(f'v_lshl_add_u32 v{AW}, v{lane}, 3, s{sLB}')
    for k in range(1, 4): a(f'v_add_u32 v{AW+k}, {4*RS*k}, v{AW}')
    a(f'v_mul_u32_u24 v{A_R}, {RS}, v{li}'); a(f'v_lshl_add_u32 v{A_R}, v{lg}, 4, v{A_R}'); a(f'v_add_u32 v{A_R}, s{sLB}, v{A_R}')
    a(f's_add_u32 s48, s{sLB}, 2048')
    a(f'v_lshlrev_b32 v20, 8, v{lg}'); a(f'v_lshl_add_u32 v20, v{li}, 4, v20'); a(f'v_sub_u32 v{A_R1}, s48, v20')
    a(f'v_lshlrev_b32 v20, 7, v{lg}'); a(f'v_lshl_add_u32 v20, v{li}, 2, v20'); a(f'v_sub_u32 v{A_R2}, s48, v20')
    a(f'v_and_b32 v22, 1, v{lg}'); a(f'v_lshrrev_b32 v23, 1, v{lg}')
    a('v_lshlrev_b32 v20, 3, v22'); a(f'v_lshl_add_u32 v20, v{li}, 4, v20'); a('v_lshl_add_u32 v20, v23, 8, v20'); a(f'v_sub_u32 v{A_R0}, s48, v20')
    a(f'v_lshlrev_b32 v21, 5, v{li}'); a(f'v_lshl_add_u32 v20, v{lg}, 3, v21'); a(f'v_sub_u32 v{A_R3}, s48, v20')
    usite(2)
    a(f'v_lshl_add_u32 v21, v{lg}, 4, v21'); a(f'v_add_u32 v{A_U}, s42, v21')
    a(f'v_and_b32 v20, 1, v{li}'); a(f'v_mul_u32_u24 v20, {DB - DA + 2}, v20'); a(f'v_lshlrev_b32 v21, 1, v{li}'); a('v_sub_u32 v20, v20, v21')
    a(f'v_lshl_add_u32 v20, v{lg}, 4, v20'); a(f'v_add_u32 v20, s{sLB}, v20')
    a(f'v_add_u32 v{A_D16}, {DA + 2*(526 - 512)}, v20')
    a(f'v_add_u32 v{A_D}, {DA + 2*(526 - 480)}, v20')
    a(f'v_lshlrev_b32 v20, 2, v{lg}'); a(f'v_sub_u32 v20, v20, v{li}')
    a(f'v_lshl_add_u32 v{A_T2}, v20, 3, s48')
    a(f's_add_u32 s43, s{sLB}, {T3 + 2*(254 - 224)}'); a(f'v_lshl_add_u32 v{A_T3}, v20, 2, s43')
    a(f's_lshl_b32 s{sT2}, s{sT}, 12')
    if WS_A: a(f's_add_u32 s{sT2}, s{sT2}, {WS_A}')
    a(f'v_lshl_add_u32 v20, v22, 9, s{sT2}'); a('v_lshl_add_u32 v20, v23, 6, v20')
    a(f'v_lshrrev_b32 v21, 2, v{li}'); a('v_lshl_add_u32 v20, v21, 7, v20'); a(f'v_and_b32 v21, 3, v{li}'); a(f'v_lshl_add_u32 v{A_O}, v21, 4, v20')
    for h, sb in enumerate((46, 49)):
        a(f's_lshl_b32 s47, s{sb}, 9'); a(f's_add_u32 s47, s47, {UB + 512}'); a(f'v_lshl_add_u32 v{A_TR + h}, v{lane}, 3, s47')
    NE = env('NE', 4)
    if NE == 4: usite(3)
    st.mark(a, 1)
    L1 = a.newlabel('L_pw')
    a(f's_cmp_lt_u32 s{s_wave}, {NE}'); a(f's_cbranch_scc1 {L1}')
    a.raw(f'    s_waitcnt vmcnt({nearly})'); a.label(L1); a.raw(f'    s_waitcnt vmcnt({nearly + 4})'); a.vm = []
    st.mark(a, 2)
    if NE == 3: usite(3)
    EB = os.environ.get('EB', 'frag')
    def early_barrier(pos):
        if pos != EB: return
        L = a.newlabel('L_eb')
        a(f's_cmp_lt_u32 s{s_wave}, 4'); a(f's_cbranch_scc1 {L}')
        a.raw('    s_barrier')
        touch_mid(a, s_wave)
        if env('EBP', 0): a('s_setprio 2')
        a.label(L)
    a('s_mov_b32 s43, %#x' % LOG2E)
    a('s_mov_b32 s44, 0xffff0000')
    a('s_mov_b32 s45, %#x' % INV2PI)
    dt = 14
    a(f'v_lshlrev_b32 v{dt}, 16, v{pl["dt"]}')
    a(f'v_mul_f32 v{dt}, s43, v{dt}')
    a(f'v_exp_f32 v{dt}, v{dt}')
    al = [16, 17]; be = [18, 19]
    a(f'v_lshlrev_b32 v{al[0]}, 16, v{pl["logA"]}')
    a(f'v_and_b32 v{al[1]}, s44, v{pl["logA"]}')
    a(f'v_cvt_pk_bf16_f32 v{dt}, v{dt}, v{dt}')
    for n in range(2): a(f'v_mul_f32 v{al[n]}, s43, v{al[n]}')
    a(f'v_and_b32 v{dt}, s44, v{dt}')
    for n in range(2): a(f'v_exp_f32 v{al[n]}, v{al[n]}')
    a(f'v_lshlrev_b32 v{be[0]}, 16, v{pl["Aim"]}')
    a(f'v_and_b32 v{be[1]}, s44, v{pl["Aim"]}')
    a(f'v_cvt_pk_bf16_f32 v{al[1]}, v{al[0]}, v{al[1]}')
    for n in range(2): a(f'v_mul_f32 v{be[n]}, v{dt}, v{be[n]}')
    a(f'v_lshlrev_b32 v{al[0]}, 16, v{al[1]}')
    a(f'v_and_b32 v{al[1]}, s44, v{al[1]}')
    for n in range(2): a(f'v_mul_f32 v{be[n]}, s45, v{be[n]}')
    for n in range(2): a(f'v_mul_f32 v{al[n]}, v{dt}, v{al[n]}')
    for n in range(2): a(f'v_mul_f32 v{al[n]}, s43, v{al[n]}')
    w1 = [20, 22]; W = [24, 26]; C = [28, 30]; w8 = [32, 34]; tmp = [36, 38]
    a('s_mov_b32 s47, 0x43000000')
    def direct(dst, scale):
        for n in range(2):
            if scale:
                a(f'v_mul_f32 v{40+n}, s47, v{al[n]}'); a(f'v_mul_f32 v{42+n}, s47, v{be[n]}')
        ms = [40, 41] if scale else al; ps = [42, 43] if scale else be
        for n in range(2): a(f'v_fract_f32 v{42+n}, v{ps[n]}')
        for n in range(2): a(f'v_exp_f32 v{40+n}, -v{ms[n]}')
        for n in range(2):
            a(f'v_cos_f32 v{dst[n]}, v{42+n}'); a(f'v_sin_f32 v{dst[n]+1}, v{42+n}')
        for n in range(2):
            a(f'v_mul_f32 v{dst[n]}, v{40+n}, v{dst[n]}'); a(f'v_mul_f32 v{dst[n]+1}, v{40+n}, v{dst[n]+1}')
    direct(w1, False)
    def cm2(z, x, y):
        i0 = cmul(z[0], x[0], y[0], tmp[0]); i1 = cmul(z[1], x[1], y[1], tmp[1])
        for s in (i0[0], i1[0], i0[1], i1[1]): a(s)
    cm2(w8, w1, w1); cm2(w8, w8, w8); cm2(w8, w8, w8)
    direct(W, True)
    a(f'v_add_f32 v{dt}, v{dt}, v{dt}')
    a(f'v_lshlrev_b32 v{C[0]}, 16, v{pl["Cre"]}'); a(f'v_and_b32 v{C[1]}, s44, v{pl["Cre"]}')
    a(f'v_lshlrev_b32 v{C[0]+1}, 16, v{pl["Cim"]}'); a(f'v_and_b32 v{C[1]+1}, s44, v{pl["Cim"]}')
    for n in range(2):
        a(f'v_mul_f32 v{C[n]}, v{dt}, v{C[n]}'); a(f'v_mul_f32 v{C[n]+1}, v{dt}, v{C[n]+1}')
    a.wait(lg=0)
    US = [int(c) for c in os.environ.get('US', '8,20,32,44').split(',')]
    pkn = [0]; pend = {}; nrow = [0]
    def put(row, x, conj=False, const=None, single=False):
        key = row >> 1
        if key not in pend: pend[key] = (40 if pkn[0] % 3 == 0 else (44 if pkn[0] % 3 == 1 else 4), set()); pkn[0] += 1
        r, have = pend[key]
        for n in range(2):
            d = r + 2*(row & 1) + n
            if const is not None: a(f'v_mov_b32 v{d}, {const}')
            else: a(f'v_cvt_pk_bf16_f32 v{d}, v{x[n]}, {"-" if conj else ""}v{x[n]+1}')
        have.add(row)
        if single:
            a(f'ds_write_b64 v{AW + (row >> 2)}, {vr(r + 2*(row & 1), 2)} offset:{(row & 3)*RS}'); del pend[key]
        elif len(have) == 2:
            o = (row & 2)*RS // 8
            a(f'ds_write2_b64 v{AW + (row >> 2)}, {vr(r,2)}, {vr(r+2,2)} offset0:{o} offset1:{o + RS//8}'); del pend[key]
        nrow[0] += 1
        if nrow[0] in US: usite(4 + US.index(nrow[0]))
    def cx(i): return [48 + 4*i, 50 + 4*i]
    F2, F1 = 88, [120, 152, 48]
    KT = [216, 220, 224]
    def tile(F):
        assert not pend
        for t in range(8): a(f'ds_read_b128 {vr(F+4*t,4)}, v{A_R} offset:{STG + 64*t}')
    def tile_mfma(k, swap=False):
        x, y = (F2, F1[k]) if swap else (F1[k], F2)
        return [f'v_mfma_f32_16x16x32_bf16 {vr(KT[k],4)}, {vr(x+4*t,4)}, {vr(y+4*t,4)}, {vr(KT[k],4) if t else 0}' for t in range(8)]
    put(0, None, const='0x3f80'); put(1, w8, True)
    w16 = cx(0); cm2(w16, w8, w8); put(2, w16, True)
    ev, od = cx(1), cx(2)
    cm2(od, w8, w16); put(3, od, True); cm2(ev, w16, w16); put(4, ev, True)
    for j in range(5, 16):
        x = od if j & 1 else ev
        cm2(x, x, w16); put(j, x, True)
    tile(F2)
    t0 = [cx(i) for i in range(8)]
    put(0, C)
    prev = C
    for i in range(8):
        cm2(t0[i], prev, W); put(8 + i, t0[i])
        if i < 7:
            nx = cx(8 + (i & 1)); cm2(nx, prev, w1); put(i + 1, nx); prev = nx
    tile(F1[0])
    early_barrier('t1')
    e = [t0[0], t0[2], t0[4], t0[6]]
    for k in range(4): cm2(e[k], e[k], W); put(k, e[k])
    for k in range(4): cm2(e[k], e[k], W); put(4 + k, e[k])
    p512, pa, pb = e[0], e[2], e[1]
    cm2(p512, p512, W); cm2(pa, pa, W); cm2(pb, p512, w8)
    for k in range(4):
        if k: cm2(pa, pa, W); cm2(pb, pb, W)
        put(8 + 2*k, pa); put(9 + 2*k, pb)
    tile(F1[1])
    early_barrier('t2')
    W2 = e[3]; cm2(W2, W, W); cm2(pa, pb, W); cm2(pb, pb, W2)
    put(8, p512, single=True); put(0, pa); put(1, pb)
    for i in range(2, 8):
        x = pb if i & 1 else pa
        cm2(x, x, W2); put(i, x)
    tile(F1[2])
    st.mark(a, 3)
    early_barrier('tab')
    for s in interleave(tile_mfma(1), tile_mfma(0)): a(s)
    for s in tile_mfma(2, swap=True): a(s)
    k0, k1, k2 = KT
    a(f'v_lshlrev_b32 v{pl["Dsk"]}, 16, v{pl["Dsk"]}')
    a(f'v_cvt_pk_bf16_f32 v16, v{k1+3}, v{k1+2}')
    a(f'v_cvt_pk_bf16_f32 v17, v{k1+2}, v{k1+2}')
    a(f'v_cvt_pk_bf16_f32 v18, v{k1+1}, v{k1}')
    a(f'v_cvt_pk_bf16_f32 v19, v{k1}, v{k1}')
    a(f'v_cvt_pk_bf16_f32 v20, v{k1+2}, v{k1+1}')
    a('v_mov_b32 v21, v19')
    a('s_mov_b64 exec, 1')
    a(f'v_add_f32 v{k0}, v{k0}, v{pl["Dsk"]}')
    a('s_mov_b32 exec_lo, -1')
    a(f'ds_write_b128 v{A_R1}, {vr(16,4)} offset:{DA - 2048 + 2*(542-256-6)}')
    a(f'ds_write_b16 v{A_R1}, v16 offset:{DB - 2048 + 2*(543-256-6)}')
    a(f'ds_write_b32 v{A_R1}, v17 offset:{DB - 2048 + 2*(543-256-5)}')
    a(f'ds_write_b64 v{A_R1}, v[20:21] offset:{DB - 2048 + 2*(543-256-3)}')
    a(f'ds_write_b16 v{A_R1}, v19 offset:{DB - 2048 + 2*(543-256+1)}')
    a(f'v_readlane_b32 s47, v16, 63')
    a('s_not_b64 exec, exec')
    a(f'ds_write_b32 v{A_R2}, v18 offset:{T2 - 2048 + 2*(320-130+128)}')
    a(f'ds_write_b32 v{A_R2}, v16 offset:{T2 - 2048 + 2*(320-162+128)}')
    a('s_mov_b64 exec, -1')
    a('s_pack_ll_b32_b16 s47, s47, s47')
    a(f'v_cvt_pk_bf16_f32 v22, v{k0+3}, v{k0+2}')
    a(f'v_cvt_pk_bf16_f32 v23, v{k0+1}, v{k0}')
    a(f'v_cvt_pk_bf16_f32 v24, v{k0+2}, v{k0+1}')
    a(f'ds_write_b64 v{A_R0}, {vr(22,2)} offset:{DB - 2048 + 2*(543-3)}')
    a(f'ds_write_b16 v{A_R0}, v22 offset:{DA - 2048 + 2*(542-3)}')
    a(f'ds_write_b32 v{A_R0}, v24 offset:{DA - 2048 + 2*(542-2)}')
    a(f'ds_write_b16_d16_hi v{A_R0}, v23 offset:{DA - 2048 + 2*542}')
    a(f'v_cvt_pk_bf16_f32 v26, v{k2+3}, v{k2+2}')
    a(f'v_cvt_pk_bf16_f32 v27, v{k2+1}, v{k2}')
    a(f'v_cvt_pk_bf16_f32 v28, v{k2}, v{k2}')
    a('v_mov_b32 v29, v28')
    a('s_mov_b32 exec_lo, 0x00ff00ff'); a('s_mov_b32 exec_hi, 0x00ff00ff')
    a(f'ds_write_b64 v{A_R3}, {vr(26,2)} offset:{T3 - 2048 + 2*124}')
    a('s_mov_b64 exec, 0x100')
    a(f'ds_write_b64 v{A_R3}, {vr(28,2)} offset:{DA - 1792 + 2*28}')
    a(f'ds_write_b16 v{A_R3}, v28 offset:{DB - 1792 + 2*29}')
    a(f'ds_write_b32 v{A_R3}, v28 offset:{DB - 1792 + 2*30}')
    a(f'ds_write_b16 v{A_R3}, v28 offset:{DB - 1792 + 2*32}')
    a('s_mov_b64 exec, -1')
    early_barrier('frag')
    final.wo_addr(a, 232)
    AF = 48
    K2 = 116
    K3 = 140
    D = 156
    UF = 188
    WT = 16
    WF = [4, 8, 12]
    OUT = 40
    BAND = 208
    breg = {k: BAND + 4*i for i, k in enumerate(('w9', 'w7', 'w5', 'w3a', 'w3b', 'bd'))}
    def rdA(k):
        if k == 16: return [f'ds_read2_b32 {vr(AF+64,2)}, v{A_D16} offset0:0 offset1:1', f'ds_read2_b32 {vr(AF+66,2)}, v{A_D16} offset0:2 offset1:3']
        o = 16*(15 - k)
        return [f'ds_read2_b32 {vr(AF+4*k,2)}, v{A_D} offset0:{o} offset1:{o+1}', f'ds_read2_b32 {vr(AF+4*k+2,2)}, v{A_D} offset0:{o+2} offset1:{o+3}']
    for k in (0, 8, 16, 1, 9, 2, 10, 3, 11, 4, 12, 5, 13, 6, 14, 7, 15):
        for s in rdA(k): a(s)
    for dl in (2, 3, 4):
        for h in range(2):
            r = K2 + 4*((dl-2)*2 + h); o = T2 - 2048 + 2*(316 - 64*dl + 8*h)
            a(f'ds_read_b64 {vr(r,2)}, v{A_T2} offset:{o}'); a(f'ds_read_b64 {vr(r+2,2)}, v{A_T2} offset:{o+8}')
    for dl in (4, 5, 6, 7):
        r = K3 + 4*(dl-4); o = 16*(7 - dl)
        a(f'ds_read2_b32 {vr(r,2)}, v{A_T3} offset0:{o} offset1:{o+1}'); a(f'ds_read2_b32 {vr(r+2,2)}, v{A_T3} offset0:{o+2} offset1:{o+3}')
    early_barrier('end')
    Lt = a.newlabel('L_tr')
    a(f's_cmp_ge_u32 s{s_wave}, 4'); a(f's_cbranch_scc1 {Lt}')
    lgs = list(a.lg)
    a('s_mov_b32 s43, 0x05040100'); a('s_mov_b32 s45, 0x07060302')
    for h in range(2):
        st.mark(a, 1 + 2*h, 'uw')
        a.raw(f'    s_waitcnt vmcnt({4 - 4*h})')
        st.mark(a, 2 + 2*h, 'uw')
        for ch in range(8):
            r = 16 + 2*(ch & 3); sel = 's45' if ch & 1 else 's43'; q = UL + 16*h + (ch >> 1)
            a(f'v_perm_b32 v{r}, v{q+4}, v{q}, {sel}')
            a(f'v_perm_b32 v{r+1}, v{q+12}, v{q+8}, {sel}')
            a(f'ds_write_b64 v{A_TR + h}, {vr(r,2)} offset:{ch*UW}')
    a.wait(lg=0)
    a('s_barrier')
    a.label(Lt); a.lg = lgs
    if env('EBP', 0): a('s_setprio 0')
    st.mark(a, 4)
    for i, k in enumerate(('w5', 'w9', 'w3a', 'w3b', 'w7', 'bd')): a(f'ds_read_b128 {vr(breg[k],4)}, v{A_BAND} offset:{256*(breg[k] - BAND)}')
    bdfix = [f'v_and_b32 v{breg["bd"]+q}, s47, v{breg["bd"]+q}' for q in range(4)]
    seq = []
    for m in range(8):
        if m <= 5: seq.append((m, -1))
        seq += [(m, b) for b in range(8)]
    NR = 5
    slot = {f: UF + 4*(i % NR) for i, f in enumerate(seq)}
    issued = [0]
    def fetch(upto):
        while issued[0] <= min(upto, len(seq) - 1):
            m, b = seq[issued[0]]
            off = 256*m - 24 if b < 0 else 256*m - 16 - 32*b
            a(f'ds_read_b128 {vr(slot[(m,b)],4)}, v{A_U} offset:{512 + 2*off}')
            issued[0] += 1
    touched = set()
    def acc(n, A, B):
        a(f'v_mfma_f32_16x16x32_bf16 {vr(D+4*n,4)}, {vr(A,4)}, {vr(B,4)}, {vr(D+4*n,4) if n in touched else 0}')
        touched.add(n)
    def wt(i, U, band): a(f'v_mfma_f32_16x16x32_bf16 {vr(WT+4*i,4)}, {vr(U,4)}, {vr(breg[band],4)}, 0')
    fetch(NR - 2)
    srd(a, 28, P['wo'], 819200)
    a(f's_mul_i32 s45, s{s_wave}, {80*1280}')
    dma = []
    for i in range(13):
        d = [f's_add_u32 m0, s{sLB}, {1024*i}']
        if i in (5, 10): d.append(f's_add_u32 s45, s45, {32*1280}')
        if i == 12: d.append('s_mov_b32 exec_hi, 0')
        d.append(f'buffer_load_dwordx4 v{232 + i % 5}, s[28:31], s45 offen lds')
        if i == 12: d.append('s_mov_b32 exec_hi, -1')
        dma.append(d)
    pend_out = []
    for m in range(8):
        fill = list(pend_out); pend_out = []
        if m <= 5:
            i = seq.index((m, -1)); fetch(i + NR - 2)
            U = slot[(m, -1)]
            wt(0, U, 'w5')
            if m <= 3: wt(4, U, 'w9')
            fetch(i + NR - 1)
            U = slot[(m, 0)]
            wt(1, U, 'w3a'); wt(2, U, 'w5'); wt(3, U, 'w3b')
            if m <= 3: wt(5, U, 'w7')
            if m == 0:
                for s in bdfix: a(s)
            cv = []
            for h in range(2):
                for jj in range(2):
                    j = 2*h + jj
                    cv.append(f'v_cvt_pk_bf16_f32 v{WF[h]+2*jj}, v{WT+j}, v{WT+4+j}')
                    cv.append(f'v_cvt_pk_bf16_f32 v{WF[h]+2*jj+1}, v{WT+8+j}, v{WT+12+j}')
            if m <= 3:
                for j in range(4): cv.append(f'v_cvt_pk_bf16_f32 v{WF[2]+j}, v{WT+16+j}, v{WT+20+j}')
            fill = fill + cv
        for b in range(8):
            i = seq.index((m, b)); fetch(i + NR - 2)
            U = slot[(m, b)]
            acc(m, AF + 4*b, U)
            if b >= 2 or m > 5:
                for _ in range(2):
                    if fill: a(fill.pop(0))
            if m + 1 < 8: acc(m + 1, AF + 4*(8 + b), U)
            if b >= 2 or m > 5:
                for _ in range(2):
                    if fill: a(fill.pop(0))
            if m >= 1 and b in (1, 4, 6) and dma:
                for s in dma.pop(0): a(s)
            if b == 0:
                if m + 2 < 8: acc(m + 2, AF + 64, U)
                if m + 4 < 8: acc(m + 4, breg['bd'], U)
        assert not fill, fill
        if m <= 5:
            for dl in (2, 3, 4):
                if m + dl < 8:
                    for h in range(2): acc(m + dl, WF[h], K2 + 4*((dl-2)*2 + h))
        if m <= 3:
            for dl in range(4, 8 - m): acc(m + dl, WF[2], K3 + 4*(dl - 4))
        if m & 1:
            o = OUT + 4*((m >> 1) & 1); d0 = D + 4*(m - 1); d1 = D + 4*m
            pend_out = [f'v_cvt_pk_bf16_f32 v{o}, v{d0}, v{d0+1}', f'v_cvt_pk_bf16_f32 v{o+1}, v{d0+2}, v{d0+3}',
                        f'v_cvt_pk_bf16_f32 v{o+2}, v{d1}, v{d1+1}', f'v_cvt_pk_bf16_f32 v{o+3}, v{d1+2}, v{d1+3}',
                        f'v_permlane16_swap_b32 v{o}, v{o+2}', f'v_permlane16_swap_b32 v{o+1}, v{o+3}',
                        f'global_store_dwordx4 v{A_O}, {vr(o,4)}, {sr(P["ws"],2)} offset:{512*(m-1)} {store_flags}']
    assert not dma
    for s in pend_out: a(s)
    st.mark(a, 5)
    a(f'v_lshlrev_b32 v4, 2, v{lane}')
    check_ann(a, 4, 6)
```

```python
from common import *

OFL = os.environ.get('OFL', '')
WOI = 0
XCH = 143360

def wo_addr(a, R=12):
    a(f's_mul_i32 s46, s{S_CT}, 160'); a('s_movk_i32 s45, 1120')
    a('v_lshl_add_u32 v4, v1, 4, s46'); a('v_mul_u32_u24 v5, 6554, v1')
    for i in range(5):
        if i: a(f'v_add_u32 v5, {64*6554}, v5'); a('v_add_u32 v4, 1024, v4')
        a('v_lshrrev_b32 v6, 16, v5'); a(f'v_mad_u32_u24 v{R+i}, v6, s45, v4')

def wo_issue(a, s_i, n, step, R=12, g0=0):
    if g0 >= n: return
    srd(a, 28, P['wo'], 819200)
    a(f's_mul_i32 s45, s{s_i}, {32*1280}'); a(f's_mul_i32 s44, s{s_i}, 5120')
    if g0: a(f's_add_u32 s45, s45, {g0*step*32*1280}')
    for gi in range(g0, n):
        for i in range(5):
            a(f's_add_u32 m0, s44, {WOI + gi*step*5120 + 1024*i}')
            a(f'buffer_load_dwordx4 v{R+i}, s[28:31], s45 offen lds')
        if gi + 1 < n: a(f's_add_u32 s45, s45, {step*32*1280}')

def f_loader(a, st):
    SA = 32
    srd(a, SA, P['ws'], WS_A + 2621440)
    a(f's_mul_i32 s45, s{S_CT}, 1280'); a(f's_add_u32 s45, s45, {WS_FA}')
    a('v_min_u32 v4, 9, v1'); a('v_lshl_add_u32 v4, v4, 7, s45')
    a('v_lshrrev_b32 v2, 3, v1'); a('v_lshlrev_b32 v2, 12, v2'); a('v_and_b32 v3, 7, v1'); a('v_lshl_add_u32 v2, v3, 4, v2')
    a(f's_mul_i32 s45, s{S_CT}, {80*4096}'); a(f's_lshl_b32 s44, s{S_RT}, 7'); a('s_add_u32 s45, s45, s44')
    a(f's_mul_i32 s44, s{S_PW}, {20*4096}'); a('s_add_u32 s45, s45, s44')
    if WS_A: a(f's_add_u32 s45, s45, {WS_A}')
    a(f's_mul_i32 s44, s{S_PW}, 2560'); a(f's_add_u32 s44, s44, s{S_AI}')
    poll_flag(a, 4, 5, 10, env('SLPA', 4))
    st.mark(a, 9)
    for i in range(3):
        a(f's_add_u32 m0, s44, {1024*i}')
        if i == 2: a('s_mov_b32 exec_hi, 0')
        a(f'buffer_load_dwordx4 v2, {sr(SA,4)}, s45 offen sc1 lds')
        if i < 2: a(f's_add_u32 s45, s45, {8*4096}')
    a('s_mov_b32 exec_hi, -1')
    a.wait(vm=0)
    st.mark(a, 10)
    if env('WB', 0) == 4:
        L = a.newlabel('L_wb')
        a(f's_cmp_lg_u32 s{S_IDX}, 0'); a(f's_cbranch_scc1 {L}'); a(f's_cmp_lg_u32 s{S_WAVE}, 7'); a(f's_cbranch_scc1 {L}')
        a.raw('    buffer_wbl2 sc1'); a.label(L)
    a('s_barrier')

def f_compute(a, st):
    li, lg = 2, 3
    s_w = S_WAVE
    OF = 112
    a('v_and_b32 v1, 63, v0'); a(f'v_and_b32 v{li}, 15, v0'); a(f'v_bfe_u32 v{lg}, v0, 4, 2')
    a(f's_and_b32 s40, s{s_w}, 1'); a(f's_lshr_b32 s41, s{s_w}, 1')
    a(f's_lshl_b32 s42, s{S_RT}, 1'); a('s_add_u32 s42, s42, s40'); a('s_lshl_b32 s42, s42, 1'); a('s_add_u32 s42, s42, s41')
    a(f's_mul_i32 s42, s42, {16*1280}'); a(f's_add_u32 s42, s42, {WS_O}')
    a('v_lshl_add_u32 v14, v1, 4, s42')
    a(f'v_mul_u32_u24 v15, 1280, v{lg}'); a(f'v_lshl_add_u32 v15, v{li}, 4, v15'); a('v_add_u32 v15, s42, v15')
    a('s_lshl_b32 s43, s40, 1'); a('s_add_u32 s43, s43, s41')
    a(f's_lshl_b32 s44, s{S_RT}, 2'); a('s_add_u32 s44, s44, s43'); a('s_lshl_b32 s45, s44, 6'); a(f's_add_u32 s45, s45, {WS_G}')
    a(f'v_lshl_add_u32 v16, v{li}, 2, s45')
    a(f's_mul_i32 s45, s{S_RT}, {32*FOS}'); a(f's_add_u32 s45, s45, {WS_FO}')
    a('v_and_b32 v17, 31, v1'); a(f'v_mul_u32_u24 v17, {FOS}, v17'); a('v_add_u32 v17, s45, v17')
    a(f'v_lshrrev_b32 v8, 2, v{li}'); a(f'v_and_b32 v9, 3, v{li}'); a('v_mul_u32_u24 v10, 40, v9')
    a(f's_mul_i32 s45, s41, {320*160}')
    a(f'v_lshl_add_u32 v11, v{lg}, 2, v8'); a('v_mul_u32_u24 v11, 160, v11'); a('v_add3_u32 v4, v11, v10, s45')
    a(f'v_mul_u32_u24 v11, 20, v{lg}'); a('v_add_u32 v11, v11, v8'); a('v_mul_u32_u24 v12, 160, v11'); a('v_add3_u32 v5, v12, v10, s45')
    a('v_lshlrev_b32 v11, 7, v11'); a('v_lshrrev_b32 v12, 1, v9'); a('v_lshl_add_u32 v11, v12, 6, v11'); a('v_and_b32 v12, 1, v9'); a('v_lshl_add_u32 v11, v12, 3, v11')
    a('s_lshl_b32 s45, s43, 4'); a(f's_add_u32 s45, s45, s{S_AI}'); a('v_add_u32 v6, s45, v11')
    a(f's_mul_i32 s45, s{s_w}, 5120'); a(f's_add_u32 s45, s45, {XCH}'); a('v_lshl_add_u32 v7, v1, 4, s45')
    a(f's_xor_b32 s47, s{s_w}, 2'); a('s_mul_i32 s47, s47, 5120'); a(f's_add_u32 s47, s47, {XCH}'); a('v_lshl_add_u32 v8, v1, 4, s47')
    a(f'v_mul_u32_u24 v9, 176, v{li}'); a(f'v_mul_u32_u24 v10, 40, v{lg}'); a('v_add3_u32 v9, v9, v10, s47')
    a(f's_mul_i32 s45, s44, {16*1280}'); a(f's_mul_i32 s46, s{S_CT}, 160'); a('s_add_u32 s45, s45, s46'); a('s_movk_i32 s46, 1120')
    a('v_mul_u32_u24 v10, 6554, v1')
    for i in range(3):
        if i: a(f'v_add_u32 v10, {64*6554}, v10'); a('s_add_u32 s45, s45, 1024')
        a('v_lshrrev_b32 v11, 16, v10'); a(f'v_lshl_add_u32 v{236+i}, v11, 4, v8')
        a('v_lshl_add_u32 v12, v1, 4, s45'); a(f'v_mad_u32_u24 v{240+i}, v11, s46, v12')
    ACC = 24
    WF = 64; NW = 6
    SO = 32; AK = 192
    srd(a, SO, P['ws'], WS_G)
    for i in range(8):
        a(f's_add_u32 s45, s{S_CT}, {i}'); a('s_and_b32 s45, s45, 7')
        a(f's_mul_i32 s{48+i}, s45, 2560'); a('s_mul_i32 s45, s45, 6400'); a(f'v_add_u32 v{AK+i}, s45, v4')
    def rdw(n):
        ks, T = divmod(n, 5); r = WF + 4*(n % NW)
        if ks < 8: base, o0, o1 = AK + ks, 0, 20*160
        else: base, o0, o1 = 5, (160*(ks - 8) + 16)*160, (160*(ks - 8) + 96)*160
        return [f'ds_read_b64_tr_b16 {vr(r,2)}, v{base} offset:{o0 + 8*T}', f'ds_read_b64_tr_b16 {vr(r+2,2)}, v{base} offset:{o1 + 8*T}']
    PD = NW - 2
    for n in range(PD):
        for s in rdw(n): a(s)
    a('s_movk_i32 s46, 10240'); a('v_add_u32 v19, 5120, v15')
    ld = []
    for i in range(8):
        ld += [f'buffer_load_dwordx4 {vr(OF + 8*i + 4*h, 4)}, v14, {sr(SO,4)}, s{48+i} offen offset:{1280*h} sc1' for h in range(2)]
    for k in range(4):
        ld.append(f'buffer_load_dwordx4 {vr(OF + 64 + 4*k, 4)}, v{19 if k & 1 else 15}, {sr(SO,4)}, {"s46" if k >> 1 else 0} offen offset:1024 sc1')
    ld.insert(8, f'global_load_dword v20, v16, {sr(P["ws"],2)} sc1')
    st.mark(a, 3, 'tail')
    poll_flag(a, 17, 18, 32, env('SLP', 0))
    st.mark(a, 8); st.mark(a, 4, 'tail')
    for _ in range(env('FL0', 6)): a(ld.pop(0))
    def swap(ks):
        x = OF + 8*ks
        a(f'v_swap_b32 v{x+2}, v{x+4}'); a(f'v_swap_b32 v{x+3}, v{x+5}')
    st.mark(a, 5, 'tail')
    swap(0)
    st.mark(a, 6, 'tail')
    AF, RX, O, GA = 88, 64, 100, 200
    seq = [(n, u) for n in range(40) for u in range(2)] + [(n, 1) for n in range(40, 50)] + [(n, 0) for n in range(40, 50)]
    W2 = 220
    wreg = lambda n: WF + 4*(n % NW) if n < 46 else W2 + 4*(n - 46)
    fill = {}
    def at(i, *ins): fill.setdefault(i, []).extend(ins)
    for n in range(PD, 50):
        r = [x.replace(vr(WF + 4*(n % NW), 2), vr(wreg(n), 2)).replace(vr(WF + 4*(n % NW) + 2, 2), vr(wreg(n) + 2, 2)) for x in rdw(n)]
        i = 2*(n - PD) if n < 44 else (80 + (n - 44) if n < 46 else 72 + 2*(n - 46))
        at(i, r[0]); at(i + (1 if n not in (44, 45) else 0), r[1])
    for ks in range(8):
        for T in (0, 2, 4)[:env('FLN', 3)]:
            if ld: at(10*ks + 2*T + 1, ld.pop(0))
        at(10*ks + 7, ('swap', ks + 1))
    at(79, ('swap', 9))
    assert not ld
    BC = env('BC', 62)
    at(BC - 8, 'v_mul_f32 v20, 0xbfb8aa3b, v20'); at(BC - 7, 'v_exp_f32 v20, v20'); at(BC - 5, 'v_add_f32 v20, 1.0, v20'); at(BC - 4, 'v_rcp_f32 v20, v20')
    at(BC - 2, 'v_sub_f32 v22, 1.0, v20', 's_mov_b32 s45, 0xffff0000')
    at(BC, 's_barrier')
    for T in range(5): at(BC + T, f'ds_read_b64_tr_b16 {vr(AF + 2*T, 2)}, v6 offset:{512*T}')
    for k in range(10):
        at(BC + 7 + 2*k, f'v_lshlrev_b32 v{GA + 2*k}, 16, v{AF + k}', f'v_and_b32 v{GA + 2*k + 1}, s45, v{AF + k}')
        at(BC + 8 + 2*k, f'v_mul_f32 v{GA + 2*k}, v20, v{GA + 2*k}', f'v_mul_f32 v{GA + 2*k + 1}, v20, v{GA + 2*k + 1}')
    for T in range(5): at(92 + (3*T + 1)//2, f'ds_write_b128 v7, {vr(ACC + 20 + 4*T, 4)} offset:{1024*T}')
    for i, (n, u) in enumerate(seq):
        ks, T = divmod(n, 5)
        d = ACC + 20*u + 4*T
        a(f'v_mfma_f32_16x16x32_bf16 {vr(d,4)}, {vr(wreg(n), 4)}, {vr(OF + 8*ks + 4*u, 4)}, {vr(d,4) if ks else 0}')
        for x in fill.pop(i, []):
            if isinstance(x, tuple): swap(x[1])
            else: a(x)
    assert not fill
    st.mark(a, 9); st.mark(a, 7, 'tail')
    a.wait(lg=0); st.mark(a, 8, 'tail'); a('s_barrier'); st.mark(a, 9, 'tail')
    for T in range(5): a(f'ds_read_b128 {vr(RX + 4*T, 4)}, v8 offset:{1024*T}')
    for k in range(10): a(f'v_pk_fma_f32 {vr(GA + 2*k, 2)}, {vr(ACC + 2*k, 2)}, v[22:23], {vr(GA + 2*k, 2)} op_sel_hi:[1,0,1]')
    for k in range(10):
        a(f'v_pk_fma_f32 {vr(GA + 2*k, 2)}, {vr(RX + 2*k, 2)}, v[22:23], {vr(GA + 2*k, 2)} op_sel_hi:[1,0,1]')
        a(f'v_cvt_pk_bf16_f32 v{O + k}, v{GA + 2*k}, v{GA + 2*k + 1}')
        if k == 9:
            a(f'ds_write2_b64 v9, {vr(O,2)}, {vr(O+2,2)} offset0:0 offset1:1'); a(f'ds_write2_b64 v9, {vr(O+4,2)}, {vr(O+6,2)} offset0:2 offset1:3')
            a(f'ds_write_b64 v9, {vr(O+8,2)} offset:32')
    for i in range(3): a(f'ds_read_b128 {vr(RX + 4*i, 4)}, v{236+i} offset:{1024*i}')
    for i in range(3):
        if i == 2: a('s_mov_b32 exec_hi, 0')
        a(f'global_store_dwordx4 v{240+i}, {vr(RX + 4*i, 4)}, {sr(P["out"],2)} {OFL}')
    a('s_mov_b32 exec_hi, -1')
    st.mark(a, 10); st.mark(a, 10, 'tail')
```

```python
from common import *
import final

XS, WSL = 16384, 20480
XR, WR = 0, 4*XS
WPHI = WR + 4*WSL
ZERO = WPHI + 4096
PHI = 102400
VFR = PHI + 40960

def kv_producer(a, st):
    s_j, s_R, s_rot, s_pw = S_J, S_IDX, S_ROT, S_PW
    SX, SW, SP = 28, 32, 36
    st.mark(a, 1, 'start')
    a('s_setprio 3')
    a('v_and_b32 v1, 63, v0')
    a('v_lshrrev_b32 v2, 3, v1'); a('v_mul_u32_u24 v2, 1280, v2')
    a('v_lshrrev_b32 v3, 4, v1'); a('v_and_b32 v4, 7, v1'); a('v_xor_b32 v3, v3, v4')
    a('v_lshl_add_u32 v10, v3, 4, v2'); a('v_xor_b32 v11, 64, v10')
    a(f's_lshl_b32 s40, s{s_R}, 2'); a(f's_add_u32 s40, s40, s{s_pw}'); a(f's_mul_i32 s40, s40, {32*1280}')
    if env('XFAKE', 0): a(f's_mul_i32 s40, s{s_pw}, {32*1280}')
    a(f's_lshl_b32 s41, s{s_pw}, 12')
    a(f's_mul_i32 s42, s{s_pw}, 5120'); a(f's_add_u32 s42, s42, {WR}')
    a(f's_mov_b32 s43, s{s_rot}'); a(f's_mov_b32 s44, s{s_rot}')
    st.mark(a, 2, 'start')
    a.wait(lg=0)
    st.mark(a, 3, 'start')
    srd(a, SX, P['u'], 2621440); srd(a, SW, P['wqkv'], 2457600)
    st.mark(a, 1)
    order = []
    def X(t):
        a('s_lshl_b32 s45, s43, 7'); a('s_add_u32 s45, s45, s40')
        for i in range(4):
            a(f's_add_u32 m0, s41, {XR + (t % 4)*XS + 1024*i}')
            if i: a(f's_add_u32 s45, s45, 10240')
            a(f'buffer_load_dwordx4 v{10 + (i & 1)}, {sr(SX,4)}, s45 offen lds'); order.append(t)
        a('s_add_u32 s43, s43, 1'); a(f's_cmp_eq_u32 s43, {NST}'); a('s_cselect_b32 s43, 0, s43')
    def Wt(t, pre=None):
        a(f's_mul_i32 s45, s44, {64*3840}')
        for i in range(5):
            if pre: pre(i)
            a(f's_add_u32 m0, s42, {(t % 4)*WSL + 1024*i}')
            a(f'buffer_load_dwordx4 v{12+i}, {sr(SW,4)}, s45 offen lds'); order.append(t)
        a('s_add_u32 s44, s44, 1'); a(f's_cmp_eq_u32 s44, {NST}'); a('s_cselect_b32 s44, 0, s44')
    X(0); st.mark(a, 4, 'start')
    srd(a, SP, P['wphi'], 25600)
    a('v_lshlrev_b32 v2, 4, v1'); a(f's_lshl_b32 s47, s{s_pw}, 10')
    a(f's_mul_i32 s45, s{s_j}, 3200'); a('s_add_u32 s45, s45, s47')
    a(f'buffer_load_dwordx4 v[36:39], v2, {sr(SP,4)}, s45 offen'); order.append(0)
    a(f's_add_u32 s47, s47, {WPHI}'); a('v_add_u32 v35, s47, v2')
    a(f's_mul_i32 s46, s{s_pw}, {16*3840}'); a(f's_mul_i32 s47, s{s_j}, 160'); a('s_add_u32 s46, s46, s47'); a('s_add_u32 s46, s46, 1280')
    a('v_lshl_add_u32 v7, v1, 4, s46'); a('v_mul_u32_u24 v8, 6554, v1'); a('s_movk_i32 s47, 1760'); a('s_movk_i32 s48, 1280'); a('s_movk_i32 s49, -1920')
    def waddr(i):
        if i: a(f'v_add_u32 v8, {64*6554}, v8'); a('v_add_u32 v7, 1024, v7')
        a('v_lshrrev_b32 v3, 16, v8'); a('v_bfe_u32 v4, v8, 16, 1'); a('v_bfe_u32 v5, v8, 20, 1')
        a(f'v_mad_u32_u24 v{12+i}, v3, s47, v7'); a('v_xor_b32 v5, v5, v4')
        a(f'v_mad_i32_i24 v{12+i}, v4, s49, v{12+i}'); a(f'v_mad_u32_u24 v{12+i}, v5, s48, v{12+i}')
    Wt(0, waddr); st.mark(a, 5, 'start')
    PRO = env('PRO', 1)
    a('s_setprio 0')
    if env('WO1', 3): final.wo_addr(a, 72)
    o_weights_addr(a)
    st.mark(a, 6, 'start')
    if os.environ.get('DIAG') == 'start':
        a.wait(vm=9); st.mark(a, 7, 'start'); a.wait(vm=6); st.mark(a, 8, 'start'); a.wait(vm=1); st.mark(a, 9, 'start'); a.wait(vm=0); st.mark(a, 10, 'start')
    for k in range(4): a(f'v_mov_b32 v{52+k}, 0')
    a(f'v_add_u32 v3, {ZERO}, v2'); a(f'ds_write_b128 v3, v[52:55]')
    X(1)
    if PRO == 0: Wt(1); X(2)
    if PRO == 2: Wt(1)
    a('s_mov_b32 s48, %#x' % LOG2E)
    for q in range(4):
        a(f'v_lshlrev_b32 v40, 16, v{36+q}'); a(f'v_and_b32 v41, 0xffff0000, v{36+q}')
        a('v_mul_f32 v40, s48, v40'); a('v_mul_f32 v41, s48, v41'); a(f'v_cvt_pk_bf16_f32 v{36+q}, v40, v41')
    a('ds_write_b128 v35, v[36:39]')
    nx, nw = (3, 2) if PRO == 0 else ((2, 1) if PRO == 1 else (2, 2))
    for s in range(NST):
        last = max(i for i, o in enumerate(order) if o <= s)
        st.mark(a, s + 1, 'pre')
        a.wait(vm=len(order) - 1 - last, lg=0 if s == 0 else None)
        st.mark(a, s + 1, 'post')
        a('s_barrier')
        st.mark(a, s + 1, 'bar')
        if s == 0: st.mark(a, 2)
        budget = env('RAMP', 3); XA = env('XA', 2)
        while budget > 0:
            cw = nw < NST and nw <= s + 2; cx = nx < NST and nx <= s + XA
            if cw and (nw < nx or not cx): Wt(nw); nw += 1
            elif cx: X(nx); nx += 1
            else: break
            budget -= 1
        if s == NST - 2: o_weights_read(a)
    assert nx == NST and nw == NST
    a.vm = []
    a.wait(lg=0); a('s_barrier')
    st.mark(a, 3)
    final.wo_issue(a, S_PW, env('WO1', 3), 4, 72)
    W3 = o_weights_fix(a)
    a('s_barrier')
    st.mark(a, 4)
    o_stage(a, st, W3)

WA, WB, WBb = 60, 64, 68
def o_weights_addr(a):
    a(f's_and_b32 s50, s{S_IDX}, 3'); a('s_mul_i32 s48, s50, 800'); a(f's_add_u32 s48, s48, {WPHI}')
    a('v_bfe_u32 v20, v1, 2, 2'); a('v_and_b32 v21, 3, v1'); a('v_lshrrev_b32 v26, 4, v1')
    a('v_lshrrev_b32 v22, 2, v1'); a('v_mul_u32_u24 v22, 40, v22'); a('v_add_u32 v22, s48, v22')
    a('v_mul_u32_u24 v23, 40, v20'); a('v_add_u32 v23, s48, v23'); a('v_add_u32 v23, 640, v23')
    a(f'v_mov_b32 v24, {ZERO}'); a('v_cmp_eq_u32 vcc, s50, v26'); a('v_cndmask_b32 v23, v24, v23, vcc')
    a('v_lshl_add_u32 v24, v21, 3, v22'); a('v_lshl_add_u32 v25, v21, 3, v23')
    a('v_and_b32 v26, 1, v20'); a('v_mul_u32_u24 v26, 0x8000, v26'); a('v_lshl_or_b32 v26, v26, 16, v26')
def o_weights_read(a):
    a(f'ds_read_b64_tr_b16 {vr(WA,2)}, v24'); a(f'ds_read_b64_tr_b16 {vr(WA+2,2)}, v25')
    a(f'ds_read_b64_tr_b16 {vr(WB,2)}, v22 offset:32'); a(f'ds_read_b64_tr_b16 {vr(WB+2,2)}, v23 offset:32')
def o_weights_fix(a):
    a('v_cmp_gt_u32 vcc, 2, v20')
    for q in range(4):
        a(f'v_xor_b32 v{WB+q}, v26, v{WB+q}')
        a(f'v_cndmask_b32 v{WBb+q}, v{WB+q}, 0, vcc'); a(f'v_cndmask_b32 v{WB+q}, 0, v{WB+q}, vcc')
    return WA, WB, WBb

def phi_parts(W3, QX, T, PA):
    WA, WB, WBb = W3; QY = QX + 4
    A0, A1, B = T, T + 4, T + 8
    E = [T + 12, T + 16, T + 20, T + 24, T + 28]
    c = [T + 32, T + 34, T + 36, T + 38]; Z = T + 40
    lo = [f'v_swap_b32 v{QX+2}, v{QY}', f'v_swap_b32 v{QX+3}, v{QY+1}',
          f'v_mfma_f32_16x16x32_bf16 {vr(A0,4)}, {vr(WA,4)}, {vr(QX,4)}, 0', f'v_mfma_f32_16x16x32_bf16 {vr(A1,4)}, {vr(WA,4)}, {vr(QY,4)}, 0',
          f'v_mfma_f32_16x16x32_bf16 {vr(B,4)}, {vr(WB,4)}, {vr(QX,4)}, 0', f'v_mfma_f32_16x16x32_bf16 {vr(B,4)}, {vr(WBb,4)}, {vr(QY,4)}, {vr(B,4)}']
    def gather(op2):
        return [f'v_permlane32_swap_b32 v{c[0]}, v{c[2]}', f'v_permlane32_swap_b32 v{c[1]}, v{c[3]}',
                f'{op2} v{c[0]}, v{c[0]}, v{c[2]}', f'{op2} v{c[1]}, v{c[1]}, v{c[3]}',
                f'v_permlane16_swap_b32 v{c[0]}, v{c[1]}',
                f'{op2} v{Z}, v{Z}, v{c[0]}', f'{op2} v{Z}, v{Z}, v{c[1]}']
    spread = [f'v_mov_b32 v{c[0]}, v{Z}', f'v_mov_b32 v{c[1]}, v{Z}',
              f'v_permlane16_swap_b32 v{c[0]}, v{c[1]}',
              f'v_mov_b32 v{c[2]}, v{c[0]}', f'v_mov_b32 v{c[3]}, v{c[1]}',
              f'v_permlane32_swap_b32 v{c[0]}, v{c[2]}', f'v_permlane32_swap_b32 v{c[1]}, v{c[3]}']
    src = [(A0, ''), (A0, '-'), (A1, ''), (A1, '-'), (B, '')]
    fast = [f'v_exp_f32 v{E[k]+q}, {sg}v{x+q}' for k, (x, sg) in enumerate(src) for q in range(4)]
    slow = []
    for m, (x, sg) in zip(c + [Z], src):
        slow += [f'v_max3_f32 v{m}, {sg}v{x}, {sg}v{x+1}, {sg}v{x+2}', f'v_max_f32 v{m}, {sg}v{x+3}, v{m}']
    slow += gather('v_max_f32') + spread
    for k, (m, (x, sg)) in enumerate(zip(c + [Z], src)):
        slow += [f'v_sub_f32 v{E[k]+q}, {sg}v{x+q}, v{m}' for q in range(4)]
    slow += [f'v_exp_f32 v{E[k]+q}, v{E[k]+q}' for k in range(5) for q in range(4)]
    sums = [f'v_pk_add_f32 {vr(m,2)}, {vr(E[k],2)}, {vr(E[k]+2,2)}' for k, m in enumerate(c + [Z])]
    sums += [f'v_add_f32 v{m}, v{m}, v{m+1}' for m in c + [Z]] + gather('v_add_f32')
    rest = [f'v_rcp_f32 v{Z}, v{Z}'] + spread
    for k, m in enumerate(c + [Z]):
        rest += [f'v_pk_mul_f32 {vr(E[k]+q,2)}, {vr(E[k]+q,2)}, {vr(m,2)} op_sel_hi:[1,0]' for q in (0, 2)]
    rest += [f'v_cvt_pk_bf16_f32 v{PA + 2*k + q}, v{E[k] + 2*q}, v{E[k] + 2*q + 1}' for k in range(5) for q in range(2)]
    return lo, fast, slow, sums, rest, Z

def o_stage(a, st, W3):
    li, lg = 2, 3
    a(f'v_and_b32 v{li}, 15, v0'); a(f'v_bfe_u32 v{lg}, v0, 4, 2')
    a(f's_and_b32 s50, s{S_IDX}, 3')
    a(f's_andn2_b32 s51, s{S_IDX}, 3'); a(f's_add_u32 s51, s51, s{S_PW}'); a('s_lshl_b32 s51, s51, 2')
    a(f's_lshl_b32 s40, s{S_J}, 9'); a(f's_add_u32 s40, s40, {WS_FL + 256}')
    a('v_min_u32 v4, 23, v1'); a('v_lshl_add_u32 v4, v4, 2, s40')
    a(f's_lshl_b32 s40, s{S_J}, 6'); a('s_add_u32 s40, s40, s51'); a('s_mul_i32 s40, s40, 5120'); a(f's_add_u32 s40, s40, {WS_Q}')
    a('s_lshl_b32 s41, s50, 10'); a('s_add_u32 s41, s41, s40'); a('s_add_u32 s40, s40, 4096')
    a('v_lshl_add_u32 v5, v1, 4, s41'); a('v_lshl_add_u32 v6, v1, 4, s40')
    poll_flag(a, 4, 7, 24)
    if env('WB', 0) == 3:
        L = a.newlabel('L_wb')
        a(f's_cmp_lg_u32 s{S_IDX}, 0'); a(f's_cbranch_scc1 {L}'); a(f's_cmp_lg_u32 s{S_WAVE}, 7'); a(f's_cbranch_scc1 {L}')
        a.raw('    buffer_wbl2 sc1'); a.label(L)
    st.mark(a, 5)
    QF, PA, T = 72, 104, 144
    for p in range(4):
        a(f'global_load_dwordx4 {vr(QF + 8*p, 4)}, v5, {sr(P["ws"],2)} sc1'); a(f'global_load_dwordx4 {vr(QF + 8*p + 4, 4)}, v6, {sr(P["ws"],2)} sc1')
        if p < 3: a('v_add_u32 v5, 5120, v5'); a('v_add_u32 v6, 5120, v6')
    a('s_mul_i32 s52, s50, 10240'); a(f's_add_u32 s52, s52, {PHI}')
    a('v_lshl_add_u32 v4, v1, 3, s52')
    a(f'v_bfe_u32 v8, v{li}, 2, 1'); a(f'v_and_b32 v9, 1, v{li}'); a('v_lshl_add_u32 v8, v8, 1, v9')
    a(f'v_and_b32 v9, 2, v{li}'); a('v_cmp_eq_u32 vcc, 0, v9')
    a('v_cndmask_b32 v8, 12, v8, vcc'); a(f'v_lshl_add_u32 v8, v{lg}, 4, v8'); a('v_lshl_add_u32 v5, v8, 3, s52')
    a('v_mov_b32 v9, 32'); a('v_cndmask_b32 v9, 8, v9, vcc'); a('v_add_u32 v6, v5, v9'); a('v_add_u32 v9, v6, v9')
    a(f's_lshl_b32 s53, s{S_J}, 2'); a('s_add_u32 s53, s53, s50')
    a('s_lshl_b32 s40, s51, 5'); a('s_add_u32 s40, s40, s53'); a('s_mul_i32 s40, s40, 1280'); a(f's_add_u32 s40, s40, {WS_O}')
    a('v_lshl_add_u32 v10, v1, 4, s40')
    a(f'v_mul_u32_u24 v11, {32*1280}, v{lg}'); a(f'v_lshl_add_u32 v11, v{li}, 4, v11'); a('v_add_u32 v11, s40, v11')
    a('s_lshl_b32 s40, s51, 4'); a('s_add_u32 s40, s40, s53'); a(f's_mul_i32 s40, s40, {FOS}'); a(f's_add_u32 s40, s40, {WS_FO}')
    a(f'v_mul_u32_u24 v12, {32*FOS}, v1'); a('v_add_u32 v12, s40, v12'); a('v_mov_b32 v13, 1')
    for p in (0, 2):
        x = phi_parts(W3, QF + 8*p, T, PA + 10*p); y = phi_parts(W3, QF + 8*p + 8, T + 44, PA + 10*p + 10)
        for s in x[0] + y[0] + x[1] + y[1] + interleave(x[3], y[3]): a(s)
        a(f'v_max_f32 v14, v{x[5]}, v{y[5]}'); a('v_cmp_lt_f32 vcc, 0x5d800000, v14')
        Ls, Lb = a.newlabel('L_qslow'), a.newlabel('L_qback')
        a(f's_cbranch_vccnz {Ls}')
        a.label(Lb)
        def slow(a, x=x, y=y, Ls=Ls, Lb=Lb):
            a.label(Ls); a.forget()
            for s in interleave(x[2] + x[3], y[2] + y[3]): a(s)
            a(f's_branch {Lb}')
        a.deferred.append(slow)
        for s in interleave(x[4], y[4]): a(s)
    st.mark(a, 6)
    a('v_cmp_gt_u32 vcc, 32, v1')
    a('s_barrier')
    st.mark(a, 7); st.mark(a, 1, 'tail')
    K0, K1, X0, X1 = 16, 20, 24, 28
    a(f'ds_read_b64 {vr(K1,2)}, v5 offset:1536'); a(f'ds_read_b64 {vr(K1+2,2)}, v6 offset:1536')
    a(f'ds_read_b64 {vr(X1,2)}, v9 offset:1536')
    a(f'ds_read_b64 {vr(K0,2)}, v4'); a(f'ds_read_b64 {vr(K0+2,2)}, v4 offset:512')
    a(f'ds_read_b64 {vr(X0,2)}, v4 offset:1024')
    D = lambda p, u, t: T + 16*p + 8*u + 4*t
    def mm(p, t):
        K, X = (K0, X0) if t == 0 else (K1, X1)
        return [f'v_mfma_f32_16x16x32_bf16 {vr(D(p,u,t),4)}, {vr(K,4)}, {vr(PA + 10*p + 4*u,4)}, 0' for u in range(2)] + \
               [f'v_mfma_f32_16x16x16_bf16 {vr(D(p,u,t),4)}, {vr(X + 2*u,2)}, {vr(PA + 10*p + 8,2)}, {vr(D(p,u,t),4)}' for u in range(2)]
    def mask(X): return [s for q in range(2) for s in (f'v_cndmask_b32 v{X+2+q}, v{X+q}, 0, vcc', f'v_cndmask_b32 v{X+q}, 0, v{X+q}, vcc')]
    def fin(p):
        o = []
        O = 32 + 8*(p & 1)
        for u in range(2): o.append(f'v_add_f32 v{D(p,u,1)+2}, 0x358637bd, v{D(p,u,1)+2}')
        for u in range(2): o.append(f'v_rcp_f32 v{D(p,u,1)+2}, v{D(p,u,1)+2}')
        for u in range(2):
            r = D(p,u,1) + 2
            for x in (D(p,u,1), D(p,u,1) + 1, D(p,u,0), D(p,u,0) + 1, D(p,u,0) + 2, D(p,u,0) + 3): o.append(f'v_mul_f32 v{x}, v{r}, v{x}')
        for u in range(2):
            for q in range(2): o.append(f'v_cvt_pk_bf16_f32 v{O + 2*u + q}, v{D(p,u,0) + 2*q}, v{D(p,u,0) + 2*q + 1}')
        o.append(f'global_store_dwordx4 v10, {vr(O,4)}, {sr(P["ws"],2)} sc1')
        for u in range(2): o.append(f'v_cvt_pk_bf16_f32 v{O+4+u}, v{D(p,u,1)}, v{D(p,u,1)+1}')
        o.append(f'v_cndmask_b32 v{48+p}, v{O+5}, v{O+4}, vcc')
        if p < 3: o += [f'v_add_u32 v10, {32*1280}, v10']
        return o
    big = lambda p: mm(p, 1)[:2] + mm(p, 0)[:2]
    small = lambda p: mm(p, 1)[2:] + mm(p, 0)[2:]
    for s in interleave(big(0) + big(1), mask(X1) + mask(X0)): a(s)
    for s in small(0) + big(2): a(s)
    for s in interleave(small(1) + big(3), fin(0)): a(s)
    st.mark(a, 2, 'tail')
    for s in interleave(small(2) + small(3), fin(1)): a(s)
    for s in fin(2): a(s)
    for s in fin(3): a(s)
    a('v_permlane32_swap_b32 v48, v50'); a('v_permlane32_swap_b32 v49, v51')
    a('v_permlane16_swap_b32 v48, v49'); a('v_permlane16_swap_b32 v50, v51')
    a(f'global_store_dwordx4 v11, v[48:51], {sr(P["ws"],2)} offset:1024 sc1')
    st.mark(a, 3, 'tail')
    if env('WO1', 3) < 5 and env('BA', 0): a('s_barrier')
    a.wait(vm=0)
    st.mark(a, 4, 'tail')
    a('s_mov_b64 exec, 3')
    a(f'global_store_dword v12, v13, {sr(P["ws"],2)} sc1')
    a('s_mov_b64 exec, -1')
    st.mark(a, 8)
    if env('WO1', 3) < 5: a('s_barrier')

def kv_consumer(a, st):
    s_j, s_R, s_w = S_J, S_IDX, S_WAVE
    li, lg = 2, 3
    a('v_and_b32 v1, 63, v0'); a(f'v_and_b32 v{li}, 15, v0'); a(f'v_bfe_u32 v{lg}, v0, 4, 2')
    L = a.newlabel('L_clr')
    a(f's_cmp_lg_u32 s{s_w}, 0'); a(f's_cbranch_scc1 {L}')
    a(f's_lshl_b32 s40, s{s_j}, 9'); a(f's_lshl_b32 s41, s{s_R}, 2'); a('s_add_u32 s40, s40, s41'); a(f's_add_u32 s40, s40, {WS_FL - 8*64}')
    a('v_lshl_add_u32 v16, v1, 6, s40')
    a(f's_lshr_b32 s40, s{s_R}, 2'); a('s_lshl_b32 s40, s40, 8'); a(f's_lshl_b32 s41, s{s_j}, 2'); a('s_add_u32 s40, s40, s41')
    a(f's_and_b32 s41, s{s_R}, 3'); a('s_add_u32 s40, s40, s41'); a(f's_mul_i32 s40, s40, {FOS}'); a(f's_add_u32 s40, s40, {WS_FO}')
    a(f'v_mul_u32_u24 v17, {32*FOS}, v1'); a('v_add_u32 v17, s40, v17')
    a('v_cmp_gt_u32 vcc, 8, v1'); a('v_cndmask_b32 v16, v16, v17, vcc')
    a(f's_lshl_b32 s40, s{s_R}, 3'); a(f's_add_u32 s40, s40, s{s_j}'); a('s_lshl_b32 s40, s40, 7'); a(f's_add_u32 s40, s40, {WS_FA}')
    a('v_writelane_b32 v16, s40, 12'); a('v_mov_b32 v17, 0')
    a.wait(lg=0)
    a(f's_cmp_lt_u32 s{s_R}, 10'); a('s_movk_i32 s40, 0xfff'); a('s_cselect_b32 exec_lo, 0x1fff, s40'); a('s_mov_b32 exec_hi, 0')
    a(f'global_store_dword v16, v17, {sr(P["ws"],2)} sc1')
    a('s_mov_b64 exec, -1')
    a.label(L); a.vm = []
    AX = 4
    a(f'v_lshrrev_b32 v16, 1, v{li}'); a(f'v_xor_b32 v16, v16, v{lg}'); a('v_lshlrev_b32 v16, 4, v16')
    a(f'v_lshl_add_u32 v16, v{li}, 7, v16'); a(f's_lshl_b32 s40, s{s_w}, 12'); a(f'v_add_u32 v{AX}, s40, v16'); a(f'v_xor_b32 v{AX+1}, 64, v{AX}')
    AK, AVP, AVS = 6, 8, 10
    a(f'v_lshrrev_b32 v16, 2, v{li}'); a(f'v_lshl_add_u32 v16, v{lg}, 3, v16'); a('v_mul_u32_u24 v16, 320, v16')
    a(f'v_and_b32 v17, 1, v{lg}'); a('v_mul_u32_u24 v17, 160, v17')
    a(f'v_and_b32 v18, 3, v{li}'); a('v_mul_u32_u24 v19, 40, v18')
    a(f'v_add_u32 v16, {WR}, v16')
    a(f'v_add3_u32 v{AK}, v16, v17, v19')
    a('v_sub_u32 v16, v16, v17'); a('v_add_u32 v16, 160, v16')
    a(f'v_lshl_add_u32 v{AVP}, v18, 3, v16')
    a(f'v_add3_u32 v{AVS}, v16, v19, 32')
    for r in (AK, AVP, AVS): a(f'v_add_u32 v{r+1}, {3*WSL}, v{r}')
    KA, VA = 32, 72
    XF = 112
    WF = 128; NW = 6
    WPH = 160
    def rdx(ks, u):
        s = ks >> 1
        return f'ds_read_b128 {vr(XF + 8*(ks & 1) + 4*u, 4)}, v{AX + (ks & 1)} offset:{XR + (s % 4)*XS + 2048*u}'
    def rdw(n):
        ks, T = divmod(n, 10); s = ks >> 1; slot = s % 4
        base, o = (AK, 8*T) if T < 5 else ((AVP, 40*(T - 5)) if T < 9 else (AVS, 0))
        o += (ks & 1)*32*320 + (slot % 3)*WSL; base += slot // 3
        r = WF + 4*(n % NW)
        return [f'ds_read_b64_tr_b16 {vr(r,2)}, v{base} offset:{o}', f'ds_read_b64_tr_b16 {vr(r+2,2)}, v{base} offset:{o + 4*320}']
    a(f'v_lshrrev_b32 v16, 2, v{li}'); a('v_mul_u32_u24 v16, 40, v16'); a(f'v_mul_u32_u24 v17, 800, v{lg}')
    a('s_mov_b32 s41, %d' % WPHI); a('v_add3_u32 v16, v16, v17, s41')
    a(f'v_mov_b32 v17, {ZERO}'); a(f'v_cmp_eq_u32 vcc, v18, v{lg}'); a('v_cndmask_b32 v12, v17, v16, vcc')
    wph = [f'ds_read_b64_tr_b16 {vr(WPH + 10*T + 2*q, 2)}, v12 offset:{160*q + 8*T}' for T in range(5) for q in range(5)]
    E_V, E_P, E_A, E_A2, E_B, E_B4, E_O, E_M, E_F, E_KF, E_KP, E_KS, E_DBG = 212, 213, 214, 215, 216, 217, 218, 219, 222, 223, 224, 225, 226
    a(f's_mul_i32 s41, s{s_w}, 5120'); a(f's_add_u32 s41, s41, {VFR}'); a(f'v_lshl_add_u32 v{E_V}, v1, 4, s41')
    a(f'v_mul_u32_u24 v14, 10240, v{lg}'); a(f'v_mul_u32_u24 v15, 80, v{li}')
    a(f's_mul_i32 s41, s{s_w}, {32*80}'); a(f's_add_u32 s41, s41, {PHI}'); a(f'v_add3_u32 v{E_P}, v14, v15, s41')
    a(f'v_lshrrev_b32 v16, 2, v{li}'); a(f'v_lshl_add_u32 v16, v{lg}, 2, v16'); a('v_mul_u32_u24 v16, 80, v16')
    a(f's_mul_i32 s41, s{s_w}, 10240'); a(f's_add_u32 s41, s41, {PHI}')
    a(f'v_lshl_add_u32 v17, v18, 3, v16'); a(f'v_add_u32 v{E_A}, s41, v17')
    a(f'v_and_b32 v17, 1, v{li}'); a('v_lshl_add_u32 v17, v17, 3, v16'); a(f'v_add3_u32 v{E_A2}, v17, s41, 64')
    a(f's_lshl_b32 s41, s{s_w}, 10'); a(f's_add_u32 s41, s41, {VFR}'); a(f'v_lshl_add_u32 v{E_B}, v1, 4, s41')
    a('v_lshlrev_b32 v19, 4, v1'); a(f'v_add_u32 v{E_B4}, {VFR + 4096}, v19')
    a(f's_lshl_b32 s44, s{s_j}, 2'); a(f's_add_u32 s44, s44, s{s_w}'); a('s_lshl_b32 s44, s44, 4'); a(f's_add_u32 s44, s44, s{s_R}')
    a('s_lshl_b32 s44, s44, 12'); a(f's_add_u32 s44, s44, {WS_KV}')
    a(f'v_add_u32 v{E_O}, s44, v19')
    a(f'v_lshrrev_b32 v17, 2, v{li}'); a(f'v_cmp_eq_u32 s[48:49], s{s_w}, v17')
    a(f's_xor_b32 s45, s{s_w}, 1'); a('s_lshl_b32 s45, s45, 2')
    a(f'v_cmp_eq_u32 s[46:47], s45, v{li}')
    a('v_lshlrev_b32 v16, 4, v18'); a('v_mov_b32 v17, 192'); a('v_cndmask_b32 v16, v17, v16, s[48:49]')
    a(f'v_lshl_add_u32 v16, v{lg}, 8, v16'); a(f'v_add_u32 v{E_M}, s44, v16')
    a('v_cndmask_b32 v15, 16, 64, s[48:49]'); a(f'v_add_u32 v{E_M+1}, v{E_M}, v15'); a(f'v_add_u32 v{E_M+2}, v{E_M+1}, v15')
    a('s_or_b64 s[46:47], s[46:47], s[48:49]')
    a(f's_lshl_b32 s40, s{s_j}, 9'); a(f's_add_u32 s40, s40, {WS_FL}')
    a(f's_lshl_b32 s41, s{s_w}, 4'); a(f's_add_u32 s41, s41, s{s_R}'); a('s_lshl_b32 s41, s41, 2'); a('s_add_u32 s41, s41, s40'); a(f'v_mov_b32 v{E_F}, s41')
    a(f's_and_b32 s50, s{s_R}, 3'); a('s_lshl_b32 s41, s50, 6'); a('s_add_u32 s41, s41, s40'); a(f'v_lshl_add_u32 v{E_KF}, v{li}, 2, s41')
    a(f's_lshl_b32 s41, s{s_j}, 2'); a('s_add_u32 s41, s41, s50'); a('s_lshl_b32 s41, s41, 16'); a(f's_lshl_b32 s40, s{s_w}, 10'); a('s_add_u32 s41, s41, s40')
    a(f's_add_u32 s41, s41, {WS_KV + 4096}'); a(f'v_add_u32 v{E_KP}, s41, v19')
    a('s_mul_i32 s41, s50, 10240'); a(f's_lshl_b32 s40, s{s_w}, 9'); a('s_add_u32 s41, s41, s40'); a(f's_add_u32 s41, s41, {PHI}'); a(f'v_lshl_add_u32 v{E_KS}, v1, 3, s41')
    a(f'v_lshlrev_b32 v{E_DBG}, 2, v1')
    a.wait(lg=0)
    PD = NW - 2
    st.mark(a, 1)
    a('s_barrier')
    st.mark(a, 2)
    a(rdx(0, 0)); a(rdx(0, 1))
    for n in range(PD):
        for s in rdw(n): a(s)
    NK = 2*NST
    KO = 232
    kcvt = [f'v_cvt_pk_bf16_f32 v{KO + 12*u + i}, v{KA + 20*u + 2*i}, v{KA + 20*u + 2*i + 1}' for i in range(10) for u in range(2)]
    for n in range(10*NK):
        ks, T = divmod(n, 10)
        m = n + PD
        pre = []
        if m < 10*NK:
            if m % 20 == 0: pre.append('s_barrier')
            if m % 10 == 0: pre += [rdx(m // 10, 0), rdx(m // 10, 1)]
            rw = rdw(m)
        else: rw = []
        if wph and n >= 1 and n % 2 == 1 and not pre: pre.append(wph.pop(0))
        if n == 171: pre.append(f'global_load_dword v{E_DBG+2}, v{E_DBG}, {sr(P["dbg"],2)} sc1')
        if n == 10*NK - 2: pre += ['s_waitcnt lgkmcnt(0)', 's_barrier']
        r = WF + 4*(n % NW)
        for u in range(2):
            x = XF + 8*(ks & 1) + 4*u
            if T < 5: d = KA + 20*u + 4*T; ins = f'v_mfma_f32_16x16x32_bf16 {vr(d,4)}, {vr(r,4)}, {vr(x,4)}, {vr(d,4) if ks else 0}'
            else: d = VA + 20*u + 4*(T - 5); ins = f'v_mfma_f32_16x16x32_bf16 {vr(d,4)}, {vr(x,4)}, {vr(r,4)}, {vr(d,4) if ks else 0}'
            a(ins)
            if u == 0:
                for s in pre: a(s)
            if rw: a(rw[u])
            if n >= 10*NK - 5:
                for _ in range(2): a(kcvt.pop(0))
        if n == 42:
            L = a.newlabel('L_ann0')
            a(f's_cmp_lg_u32 s{s_w}, 0'); a(f's_cbranch_scc1 {L}')
            announce(a, 16, also_conv=True)
            a.label(L); a.vm = []
    assert not wph
    st.mark(a, 3)
    for s in kcvt: a(s)
    VO = 24
    vfill = []
    for T in range(5):
        r = VO + 4*(T & 1)
        for u in range(2):
            for q in range(2): vfill.append(f'v_cvt_pk_bf16_f32 v{r + 2*u + q}, v{VA + 20*u + 4*T + 2*q}, v{VA + 20*u + 4*T + 2*q + 1}')
        vfill.append(f'ds_write_b128 v{E_V}, {vr(r,4)} offset:{1024*T}')
    PK = KA
    def mm(u):
        o = []
        for T, t in [(T, 2) for T in range(5)] + [(T, t) for T in range(5) for t in range(2)]:
            d = PK + 20*u + 4*T; w = WPH + 10*T + 4*t; k = KO + 12*u + 4*t
            if t < 2: o.append(f'v_mfma_f32_16x16x32_bf16 {vr(d,4)}, {vr(w,4)}, {vr(k,4)}, {vr(d,4)}')
            else: o.append(f'v_mfma_f32_16x16x16_bf16 {vr(d,4)}, {vr(w,2)}, {vr(k,2)}, 0')
        return o
    EP, EM, TT, PO = [112, 72], [132, 92], 16, 24
    def exps(u): return [s for i in range(20) for s in (f'v_exp_f32 v{EP[u]+i}, v{PK + 20*u + i}', f'v_exp_f32 v{EM[u]+i}, -v{PK + 20*u + i}')]
    def sums(u):
        sp, sm = TT + 4*u, TT + 4*u + 2
        a(f'v_pk_add_f32 {vr(sp,2)}, {vr(EP[u],2)}, {vr(EP[u]+2,2)}'); a(f'v_pk_add_f32 {vr(sm,2)}, {vr(EM[u],2)}, {vr(EM[u]+2,2)}')
        for i in range(4, 20, 2):
            a(f'v_pk_add_f32 {vr(sp,2)}, {vr(sp,2)}, {vr(EP[u]+i,2)}'); a(f'v_pk_add_f32 {vr(sm,2)}, {vr(sm,2)}, {vr(EM[u]+i,2)}')
        a(f'v_add_f32 v{sp}, v{sp}, v{sp+1}'); a(f'v_add_f32 v{sm}, v{sm}, v{sm+1}')
    m0 = mm(0)
    for s in m0[:2] + interleave(m0[2:], vfill): a(s)
    e0 = exps(0)
    for s in interleave(mm(1), e0[:16]) + e0[16:]: a(s)
    a.wait(vm=0)
    check_ann(a, E_DBG, E_DBG + 2, preloaded=True)
    for s in exps(1): a(s)
    sums(0); sums(1)
    a(f'v_max3_f32 v{TT+1}, v{TT}, v{TT+2}, v{TT+4}'); a(f'v_max_f32 v{TT+1}, v{TT+1}, v{TT+6}')
    a(f'v_cmp_lt_f32 vcc, 0x5d800000, v{TT+1}')
    Ls, Lb = a.newlabel('L_kslow'), a.newlabel('L_kback')
    a(f's_cbranch_vccnz {Ls}')
    a.label(Lb)
    def slow(a):
        a.label(Ls); a.forget()
        for u in range(2):
            x = PK + 20*u; mx, mn = TT + 1, TT + 3
            a(f'v_max3_f32 v{mx}, v{x}, v{x+1}, v{x+2}'); a(f'v_min3_f32 v{mn}, v{x}, v{x+1}, v{x+2}')
            for i in range(3, 19, 2):
                a(f'v_max3_f32 v{mx}, v{mx}, v{x+i}, v{x+i+1}'); a(f'v_min3_f32 v{mn}, v{mn}, v{x+i}, v{x+i+1}')
            a(f'v_max_f32 v{mx}, v{mx}, v{x+19}'); a(f'v_min_f32 v{mn}, v{mn}, v{x+19}')
            for i in range(20): a(f'v_sub_f32 v{EP[u]+i}, v{x+i}, v{mx}'); a(f'v_sub_f32 v{EM[u]+i}, v{mn}, v{x+i}')
            for i in range(20): a(f'v_exp_f32 v{EP[u]+i}, v{EP[u]+i}'); a(f'v_exp_f32 v{EM[u]+i}, v{EM[u]+i}')
        sums(0); sums(1)
        a(f's_branch {Lb}')
    a.deferred.append(slow)
    for k in range(4): a(f'v_rcp_f32 v{TT + 2*k}, v{TT + 2*k}')
    for u in range(2):
        sp, sm = TT + 4*u, TT + 4*u + 2
        src = [(EP[u] + i, sp) for i in range(0, 16, 2)] + [(EM[u] + i, sm) for i in range(0, 16, 2)] + [(EP[u] + 16, sp), (EP[u] + 18, sp), (EM[u] + 16, sm), (EM[u] + 18, sm)]
        for c in range(5):
            r = PO + 4*(c & 1)
            for q in range(4):
                e, s = src[4*c + q]
                a(f'v_pk_mul_f32 {vr(e,2)}, {vr(e,2)}, {vr(s,2)} op_sel_hi:[1,0]')
            for q in range(4):
                e, s = src[4*c + q]
                a(f'v_cvt_pk_bf16_f32 v{r+q}, v{e}, v{e+1}')
            a(f'ds_write_b128 v{E_P}, {vr(r,4)} offset:{16*80*u + 16*c}')
    a('v_mov_b32 v16, 0x3f803f80'); a('v_mov_b32 v17, 1')
    a.wait(lg=0)
    st.mark(a, 4)
    a('s_barrier')
    AFr, BFr, KVA = 32, 80, 112
    def rd(k):
        o = [f'ds_read_b128 {vr(BFr + 8*k, 4)}, v{E_B} offset:{5120*k}']
        for F in range(3):
            r = AFr + 12*k + 4*F
            for h in range(2):
                o.append(f'ds_read_b64_tr_b16 {vr(r + 2*h, 2)}, v{E_A if F < 2 else E_A2} offset:{(32*k + 16*h)*80 + (32*F if F < 2 else 0)}')
            if F == 0: o.append(f'ds_read_b128 {vr(BFr + 8*k + 4, 4)}, v{E_B4} offset:{5120*k}')
        return o
    def ml(k):
        o = []
        for dt in range(2):
            for F in range(3):
                d = KVA + 4*(3*dt + F)
                o.append(f'v_mfma_f32_16x16x32_bf16 {vr(d,4)}, {vr(AFr + 12*k + 4*F, 4)}, {vr(BFr + 8*k + 4*dt, 4)}, {vr(d,4) if k else 0}')
                if dt == 0 and F < 2:
                    o += [f'v_cndmask_b32 v{BFr + 8*k + 4 + q}, v16, v{BFr + 8*k + 4 + q}, s[48:49]' for q in (2*F, 2*F + 1)]
        return o
    for s in rd(0) + rd(1)[:4]: a(s)
    for s in interleave(ml(0), rd(1)[4:] + rd(2)[:4]): a(s)
    for s in interleave(ml(1), rd(2)[4:] + rd(3)[:4]): a(s)
    for s in interleave(ml(2), rd(3)[4:]): a(s)
    for s in ml(3): a(s)
    def stores(fl):
        for F in range(3): a(f'global_store_dwordx4 v{E_O}, {vr(KVA + 4*F, 4)}, {sr(P["ws"],2)} offset:{1024*F} {fl}')
        a('s_mov_b64 exec, s[46:47]')
        for F in range(3): a(f'global_store_dwordx4 v{E_M+F}, {vr(KVA + 12 + 4*F, 4)}, {sr(P["ws"],2)} offset:3072 {fl}')
        a('s_mov_b64 exec, 1')
        a.wait(vm=0)
        a(f'global_store_dword v{E_F}, v17, {sr(P["ws"],2)} {fl}')
        a('s_mov_b64 exec, -1')
    by_mode(a, stores)
    st.mark(a, 5)
    poll_flag(a, E_KF, 18, 16)
    st.mark(a, 6)
    KP = 32
    for k in range(16):
        if k and k % 2 == 0: a(f'v_add_u32 v{E_KP}, 8192, v{E_KP}')
        a(f'global_load_dwordx4 {vr(KP + 4*k, 4)}, v{E_KP}, {sr(P["ws"],2)} offset:{-4096 if k % 2 == 0 else 0} sc1')
    for k in range(1, 16):
        for q in (0, 2): a(f'v_pk_add_f32 {vr(KP+q,2)}, {vr(KP+q,2)}, {vr(KP + 4*k + q,2)}')
    a(f'v_cvt_pk_bf16_f32 v{KP}, v{KP}, v{KP+1}'); a(f'v_cvt_pk_bf16_f32 v{KP+1}, v{KP+2}, v{KP+3}')
    a(f'ds_write_b64 v{E_KS}, {vr(KP,2)}')
    a.wait(lg=0)
    a('s_barrier')
    st.mark(a, 7); st.mark(a, 1, 'tail')
    if env('WO1', 3) < 5:
        final.wo_addr(a, 12)
        if env('BA', 0): a('s_barrier')
        final.wo_issue(a, S_PW, 5, 4, 12, env('WO1', 3))
        a.wait(vm=0)
        st.mark(a, 2, 'tail')
        a('s_barrier')
```

```python
from common import *

QXS, QWS = 45056, 10240
QXR, QWR = 0, 3*QXS
GATE = QWR + 2*QWS
Q_LDS = GATE + 4096

def q_producer(a, st, s_j, s_p0, s_rot, s_pw):
    SX, SW = 28, 32
    a('s_setprio 3')
    a('v_and_b32 v1, 63, v0')
    a('v_lshrrev_b32 v2, 3, v1'); a('v_mul_u32_u24 v2, 1280, v2')
    a('v_lshrrev_b32 v3, 4, v1'); a('v_and_b32 v4, 7, v1'); a('v_xor_b32 v3, v3, v4')
    a('v_lshl_add_u32 v10, v3, 4, v2')
    a(f's_and_b32 s45, s{s_pw}, 1'); a('s_lshl_b32 s45, s45, 6')
    a('v_xor_b32 v10, s45, v10'); a('v_xor_b32 v11, 64, v10')
    a(f's_mul_i32 s40, s{s_p0}, {32*1280}'); a(f's_mul_i32 s45, s{s_pw}, {88*1280}'); a('s_add_u32 s40, s40, s45')
    if env('QFAKE', 0): a('s_mov_b32 s40, 0x1000000')
    a(f's_mul_i32 s41, s{s_pw}, {11*1024}')
    a(f's_mul_i32 s42, s{s_pw}, 2560'); a(f's_add_u32 s42, s42, {QWR}')
    a(f's_mov_b32 s43, s{s_rot}'); a(f's_mov_b32 s44, s{s_rot}')
    a(f's_and_b32 s49, s{s_j}, 4'); a('s_lshl_b32 s49, s49, 9')
    a(f's_mul_i32 s46, s{s_pw}, {16*3840}'); a(f's_mul_i32 s47, s{s_j}, 160'); a('s_add_u32 s46, s46, s47')
    a('v_lshl_add_u32 v7, v1, 4, s46'); a('v_mul_u32_u24 v8, 6554, v1'); a('s_movk_i32 s47, 3840'); a('s_movk_i32 s48, -160')
    for i in range(3):
        if i: a(f'v_add_u32 v8, {64*6554}, v8'); a('v_add_u32 v7, 1024, v7')
        a('v_lshrrev_b32 v3, 16, v8'); a('v_lshrrev_b32 v5, 17, v8'); a('v_and_b32 v5, 4, v5'); a('v_xor_b32 v5, v5, v3')
        a(f'v_mad_i32_i24 v{12+i}, v3, s48, v7'); a(f'v_mad_u32_u24 v{12+i}, v5, s47, v{12+i}')
    a.wait(lg=0)
    srd(a, SX, P['u'], 2621440); srd(a, SW, P['wqkv'], 2457600)
    a('s_cmp_ge_u32 s54, 4'); a('s_cselect_b32 s47, 10, 11'); a(f's_add_u32 s47, s47, s{s_p0}'); a(f's_mul_i32 s{SX+2}, s47, {32*1280}')
    order = []
    def X(t, lo=0, hi=11):
        if lo == 0: a('s_lshl_b32 s45, s43, 7'); a('s_add_u32 s45, s45, s40')
        for i in range(lo, hi):
            a(f's_add_u32 s55, s41, {QXR + (t % 3)*QXS + 1024*i}'); a('s_xor_b32 m0, s55, s49')
            if i: a('s_add_u32 s45, s45, 10240')
            a(f'buffer_load_dwordx4 v{10 + (i & 1)}, {sr(SX,4)}, s45 offen lds'); order.append(t)
        if hi == 11: a('s_add_u32 s43, s43, 1'); a(f's_cmp_eq_u32 s43, {NST}'); a('s_cselect_b32 s43, 0, s43')
    def Wt(t):
        a(f's_mul_i32 s48, s44, {64*3840}')
        for i in range(3):
            a(f's_add_u32 m0, s42, {(t % 2)*QWS + 1024*i}')
            if i == 2: a('s_mov_b32 exec_hi, 0')
            a(f'buffer_load_dwordx4 v{12+i}, {sr(SW,4)}, s48 offen lds'); order.append(t)
        a('s_mov_b32 exec_hi, -1')
        a('s_add_u32 s44, s44, 1'); a(f's_cmp_eq_u32 s44, {NST}'); a('s_cselect_b32 s44, 0, s44')
    a.vm = []
    Wt(0); X(0)
    srd(a, 36, P['gate'], 1280)
    a('v_lshlrev_b32 v2, 4, v1'); a(f's_lshl_b32 s47, s{s_pw}, 10')
    a(f's_add_u32 m0, s47, {GATE}')
    a('buffer_load_dwordx4 v2, s[36:39], s47 offen lds'); order.append(0)
    QL = env('QL', 11)
    if env('QW1', 1): Wt(1)
    a('s_setprio 0')
    X(1, 0, QL)
    for s in range(NST):
        last = max(i for i, o in enumerate(order) if o <= s)
        st.mark(a, s + 1, 'pre')
        a.wait(vm=len(order) - 1 - last)
        st.mark(a, s + 1, 'post')
        a('s_barrier')
        st.mark(a, s + 1, 'bar')
        if s + 1 < NST:
            if s or not env('QW1', 1): Wt(s + 1)
            if QL < 11: X(s + 1, QL, 11)
        if s + 2 < NST: X(s + 2, 0, QL)
    a.vm = []

def q_pre(a, s_j, s_pw0):
    li, lg = 2, 3
    a('v_and_b32 v1, 63, v0'); a(f'v_and_b32 v{li}, 15, v0'); a(f'v_bfe_u32 v{lg}, v0, 4, 2')
    AX = 4
    a(f'v_lshrrev_b32 v16, 1, v{li}'); a(f'v_xor_b32 v16, v16, v{lg}'); a('v_lshlrev_b32 v16, 4, v16')
    a(f'v_lshl_add_u32 v16, v{li}, 7, v16'); a(f's_lshl_b32 s40, s{s_pw0}, 12'); a(f'v_add_u32 v{AX}, s40, v16'); a(f'v_xor_b32 v{AX+1}, 64, v{AX}')
    for s in (1, 2):
        for p in range(2): a(f'v_add_u32 v{AX + 2*s + p}, {s*QXS}, v{AX + p}')
    AP, AS = 10, 12
    a(f'v_lshrrev_b32 v16, 2, v{li}'); a(f'v_lshl_add_u32 v16, v{lg}, 3, v16'); a('v_mul_u32_u24 v16, 160, v16')
    a(f'v_and_b32 v17, 1, v{lg}'); a('v_mul_u32_u24 v17, 640, v17')
    a(f'v_and_b32 v18, 3, v{li}'); a('v_mul_u32_u24 v19, 40, v18'); a('v_lshlrev_b32 v18, 3, v18')
    a(f'v_add_u32 v16, {QWR}, v16'); a('v_add_u32 v20, v16, v17'); a('v_sub_u32 v21, v16, v17'); a('v_add_u32 v21, 640, v21')
    for h in range(2):
        a(f'v_add_u32 v{AP+h}, v{20+h}, v18'); a(f'v_add3_u32 v{AS+h}, v{20+h}, v19, 32')
    a('v_lshlrev_b32 v14, 2, v1')

def q_consumer(a, st, s_j, s_pg, npairs):
    NU = 2*npairs
    AX, AP, AS = 4, 10, 12
    QA = 32
    XF = 152
    WF = 168
    def rdx(n):
        ks, u = divmod(n, NU); s = ks >> 1
        return f'ds_read_b128 {vr(XF + 4*(n % 4), 4)}, v{AX + 2*(s % 3) + (ks & 1)} offset:{2048*u}'
    def rdw(ks):
        out = []
        for T in range(5):
            base, o = (AP, 40*T) if T < 4 else (AS, 0)
            o += (ks & 1)*32*160 + ((ks >> 1) % 2)*QWS
            r = WF + 20*(ks & 1) + 4*T
            out += [f'ds_read_b64_tr_b16 {vr(r,2)}, v{base} offset:{o}', f'ds_read_b64_tr_b16 {vr(r+2,2)}, v{base+1} offset:{o}']
        return out
    GU = 3 if npairs == 2 else 0
    GA, GX, GW, GAD = 112, 124, 136, 20
    if GU:
        a('s_lshl_b32 s40, s50, 1'); a(f's_sub_u32 s41, s{s_j}, s40'); a('s_and_b32 s41, s41, 7')
        a('s_lshl_b32 s42, s51, 12'); a(f'v_subrev_u32 v24, s42, v{AX}')
        for k in range(GU):
            a(f's_add_u32 s42, s41, {8*k}'); a('s_min_u32 s43, s42, 21'); a(f's_lshr_b32 s45, s{s_j}, 2'); a('s_xor_b32 s43, s43, s45'); a('s_lshl_b32 s43, s43, 11'); a(f'v_add_u32 v{GAD+k}, s43, v24')
        a(f'v_lshlrev_b32 v23, 4, v3'); a(f'v_add_u32 v23, {GATE}, v23'); a(f's_mov_b32 s44, s{S_ROT}')
        a('v_lshl_add_u32 v25, v3, 3, s41'); a('s_cmp_ge_u32 s54, 4'); a('s_cselect_b32 s42, 20, 22'); a('v_cmp_gt_u32 s[46:47], s42, v25')
        a('v_add_u32 v25, s40, v25'); a('v_lshlrev_b32 v25, 6, v25'); a('v_lshl_add_u32 v25, v2, 2, v25'); a(f'v_add_u32 v25, {WS_G}, v25')
    st.mark(a, 1)
    a('s_barrier')
    st.mark(a, 2)
    w0 = rdw(0)
    a(rdx(0))
    for s in w0: a(s)
    a(rdx(1))
    nx = 2
    NK = 2*NST
    for ks in range(NK - 2):
        fills = {u: [] for u in range(NU)}
        last = (ks + 1)*NU
        if ks & 1 == 0:
            w = rdw(ks + 1)
            for u in range(NU):
                fills[u].append(rdx(nx)); nx += 1
                k = -(-10 // (NU - 1))
                fills[u] += w[:k]; w = w[k:]
        else:
            for u in range(NU - 2):
                while nx < last and nx <= ks*NU + u + (2 if u < NU - 4 else 3): fills[u].append(rdx(nx)); nx += 1
            assert nx == last
            if ks + 1 < NK:
                w = rdw(ks + 1)
                fills[NU - 2] = ['BAR', rdx(nx)] + w[:5]; fills[NU - 1] = w[5:] + [rdx(nx + 1)]; nx += 2
        if ks == 3 and npairs == 3:
            L = a.newlabel('L_ann0')
            a(f's_cmp_lg_u32 s{S_WAVE}, 0'); a(f's_cbranch_scc1 {L}')
            announce(a, 16)
            a.label(L); a.vm = []
        gm = []
        if GU:
            sl = (ks >> 1) % 3
            pre = ['s_lshl_b32 s45, s44, 7', 'v_add_u32 v26, s45, v23'] if ks & 1 == 0 else ['s_add_u32 s44, s44, 1', f's_cmp_eq_u32 s44, {NST}', 's_cselect_b32 s44, 0, s44']
            pre.append(f'ds_read_b128 {vr(GW,4)}, v26 offset:{64*(ks & 1)}')
            for k in range(GU):
                pre.append(f'ds_read_b128 {vr(GX + 4*k, 4)}, v{GAD+k}')
                pre.append(f'v_xor_b32 v{GAD+k}, 64, v{GAD+k}')
                if ks & 1: pre.append(f'v_add_u32 v{GAD+k}, {QXS if sl < 2 else -2*QXS}, v{GAD+k}')
                gm.append(f'v_mfma_f32_16x16x32_bf16 {vr(GA + 4*k, 4)}, {vr(GW,4)}, {vr(GX + 4*k, 4)}, {vr(GA + 4*k, 4) if ks else 0}')
            fills[0] = fills[0] + pre
        if ks == NK - 5: fills[1].append(f'global_load_dword v16, v14, {sr(P["dbg"],2)} sc1')
        for u in range(NU):
            x = XF + 4*((ks*NU + u) % 4)
            f = fills[u]
            for T in range(5):
                d = QA + 20*u + 4*T
                a(f'v_mfma_f32_16x16x32_bf16 {vr(d,4)}, {vr(WF + 20*(ks & 1) + 4*T, 4)}, {vr(x,4)}, {vr(d,4) if ks else 0}')
                k = -(-len(f) // (5 - T))
                for s in f[:k]:
                    if s == 'BAR': a.wait(lg=0); a('s_barrier')
                    else: a(s)
                f = f[k:]
            if u == 1:
                for s in gm: a(s)
        if ks == NK - 4:
            a.wait(vm=0)
            check_ann(a, 14, 16, preloaded=True)
            a(f's_lshl_b32 s40, s{s_j}, 6'); a(f's_add_u32 s40, s40, s{s_pg}'); a('s_mul_i32 s40, s40, 5120'); a(f's_add_u32 s40, s40, {WS_Q + 2048}')
            a('v_lshl_add_u32 v18, v1, 4, s40'); a('v_mov_b32 v19, 1')
    def store(ins):
        G, D = a.newlabel('L_g'), a.newlabel('L_d')
        a(f's_cbranch_scc1 {G}'); a(ins + ' ' + os.environ.get('LFL', '')); a(f's_branch {D}'); a.label(G); a.raw('    s_nop 1'); a.raw(f'    {ins} sc1'); a.label(D)
    steps = [(NK - 2 + k, 2*p + u) for p in range(npairs) for k in range(2) for u in range(2)]
    base = (NK - 2)*NU
    def rdx2(i):
        ks, u = steps[i]
        return f'ds_read_b128 {vr(XF + 4*((base + i) % 4), 4)}, v{AX + 2*((ks >> 1) % 3) + (ks & 1)} offset:{2048*u}'
    OB = 208
    def outs(p):
        o = [] if p == 0 else ['v_add_u32 v18, 5120, v18']
        for T in range(5):
            r = OB + 4*((5*p + T) % 4)
            for u in range(2):
                d = QA + 20*(2*p + u) + 4*T
                o += [f'v_cvt_pk_bf16_f32 v{r + 2*u + q}, v{d + 2*q}, v{d + 2*q + 1}' for q in range(2)]
            o.append(('st', f'global_store_dwordx4 v18, {vr(r,4)}, {sr(P["ws"],2)} offset:{1024*T - 2048}'))
        return o
    def emit(x):
        if isinstance(x, tuple): store(x[1])
        else: a(x)
    w = rdw(NK - 1); pend = []
    gpre = []; gm = []
    if GU:
        a('s_lshl_b32 s45, s44, 7'); a('v_add_u32 v26, s45, v23')
        for k2 in range(2):
            gpre.append([f'ds_read_b128 {vr(GW,4)}, v26 offset:{64*k2}'] + [x for k in range(GU) for x in (f'ds_read_b128 {vr(GX + 4*k, 4)}, v{GAD+k}', f'v_xor_b32 v{GAD+k}, 64, v{GAD+k}')])
        gm = [f'v_mfma_f32_16x16x32_bf16 {vr(GA + 4*k, 4)}, {vr(GW,4)}, {vr(GX + 4*k, 4)}, {vr(GA + 4*k, 4)}' for k in range(GU)]
    a(f's_cmp_eq_u32 s{S_MODE}, 0')
    for i, (ks, u) in enumerate(steps):
        f = [rdx2(i + 2)] if i + 2 < len(steps) else []
        if i < 2: f += w[5*i:5*i + 5]
        if GU and i in (2, 4): f += gpre[i // 2 - 1]
        if i % 4 == 0 and i: pend = outs(i // 4 - 1)
        x = XF + 4*((base + i) % 4)
        for T in range(5):
            d = QA + 20*u + 4*T
            a(f'v_mfma_f32_16x16x32_bf16 {vr(d,4)}, {vr(WF + 20*(ks & 1) + 4*T, 4)}, {vr(x,4)}, {vr(d,4)}')
            k = -(-len(f) // (5 - T))
            for s in f[:k]: a(s)
            f = f[k:]
            if (i % 4 or T >= 2):
                for _ in range(2 if (5*i + T) % 2 else 1):
                    if pend: emit(pend.pop(0))
        if GU and i in (3, 5):
            for s in gm: a(s)
        if i % 4 == 3: assert not pend
    st.mark(a, 3)
    for x in outs(npairs - 1): emit(x)
    if GU:
        a('v_cmp_eq_u32 vcc, 1, v3'); a(f'v_cndmask_b32 v{GA}, v{GA}, v{GA+4}, vcc')
        a('v_cmp_eq_u32 vcc, 2, v3'); a(f'v_cndmask_b32 v{GA}, v{GA}, v{GA+8}, vcc')
        a('s_mov_b64 exec, s[46:47]')
        a(f'global_store_dword v25, v{GA}, {sr(P["ws"],2)} sc1')
    a('s_mov_b64 exec, 1')
    a.wait(vm=0)
    store(f'global_store_dword v15, v19, {sr(P["ws"],2)}')
    a('s_mov_b64 exec, -1')
    st.mark(a, 5)

def q_role(a, st, tail):
    s_j, s_wave = S_J, S_WAVE
    a(f's_sub_u32 s54, s{S_IDX}, 16')
    a('s_mul_i32 s50, s54, 11'); a('s_cmp_eq_u32 s54, 5'); a('s_subb_u32 s50, s50, 0')
    Lc, L2, L3 = a.newlabel('L_qcons'), a.newlabel('L_q2'), a.newlabel('L_q3')
    a(f's_cmp_lt_u32 s{s_wave}, 4'); a(f's_cbranch_scc1 {Lc}')
    lg0 = list(a.lg)
    q_producer(a, st, s_j, 50, S_ROT, S_PW)
    a(f's_branch {tail}')
    a.label(Lc); a.forget(); a.lg = lg0
    a(f's_mul_i32 s51, s{s_wave}, 3')
    a('s_cmp_ge_u32 s54, 4'); a('s_cselect_b32 s52, 2, 3')
    a(f's_cmp_gt_u32 s{s_wave}, s52'); a('s_subb_u32 s51, s51, 0')
    a('s_add_u32 s53, s50, s51')
    q_pre(a, s_j, 51)
    a(f's_lshl_b32 s40, s{s_j}, 9'); a('s_lshl_b32 s41, s54, 4'); a('s_add_u32 s40, s40, s41'); a(f's_add_u32 s40, s40, {WS_FL + 256}')
    a('v_add_u32 v16, s40, v14'); a('v_mov_b32 v17, 0')
    a(f's_lshl_b32 s41, s{s_wave}, 2'); a('s_add_u32 s40, s40, s41'); a('v_mov_b32 v15, s40')
    a.wait(lg=0)
    a(f's_cmp_lg_u32 s{s_wave}, 0'); a(f's_cbranch_scc1 {L3}')
    a('s_mov_b64 exec, 15')
    a(f'global_store_dword v16, v17, {sr(P["ws"],2)} sc1')
    a('s_mov_b64 exec, -1')
    a.label(L3); a.vm = []
    a(f's_cmp_ge_u32 s{s_wave}, s52'); a(f's_cbranch_scc1 {L2}')
    q_consumer(a, st, s_j, 53, 3)
    a(f's_branch {tail}')
    a.label(L2); a.forget()
    q_consumer(a, st, s_j, 53, 2)
    a(f's_branch {tail}')
```

```python
import sys
from common import *
import conv, kv, qrole, final

def build(st):
    a = Asm()
    st.mark(a, 0)
    a('s_load_dwordx16 s[4:19], s[0:1], 0'); a('s_load_dwordx8 s[56:63], s[0:1], 64'); a('s_load_dwordx4 s[64:67], s[0:1], 96'); a('s_load_dwordx2 s[20:21], s[0:1], 112')
    a('s_cmp_ge_u32 s2, 256'); a('s_cbranch_scc1 L_end')
    a(f's_lshr_b32 s{S_IDX}, s2, 3')
    if env('PF_CODE', 1):
        a('s_getpc_b64 s[44:45]')
        a.label('L_pc')
        a(f's_lshl_b32 s43, s{S_IDX}, 11'); a('v_lshrrev_b32 v2, 5, v0'); a('v_lshl_add_u32 v2, v2, 7, s43')
        a(f'v_min_u32 v2, L_codeend - L_pc - 4, v2')
        a('global_load_dword v255, v2, s[44:45]'); a.vm = []
    a('v_lshrrev_b32 v1, 6, v0'); a(f'v_readfirstlane_b32 s{S_WAVE}, v1')
    a(f's_and_b32 s{S_J}, s2, 7')
    a(f's_getreg_b32 s{S_PAT}, hwreg(HW_REG_XCC_ID, 0, 4)'); a(f's_or_b32 s{S_PAT}, s{S_PAT}, 0x80'); a(f's_mul_i32 s{S_PAT}, s{S_PAT}, 0x01010101')
    a(f's_lshl_b32 s{S_RT}, s{S_J}, 2'); a(f's_lshr_b32 s40, s{S_IDX}, 3'); a(f's_add_u32 s{S_RT}, s{S_RT}, s40'); a(f's_and_b32 s{S_CT}, s{S_IDX}, 7')
    a(f's_add_u32 s40, s{S_IDX}, 1'); a('s_and_b32 s40, s40, 3'); a('s_mul_i32 s40, s40, 10240'); a(f's_add_u32 s{S_AI}, s40, {kv.PHI}')
    a(f's_and_b32 s{S_PW}, s{S_WAVE}, 3')
    def mod10(r):
        a(f's_mul_i32 s40, s{r}, 26'); a('s_lshr_b32 s40, s40, 8'); a('s_mul_i32 s40, s40, 10'); a(f's_sub_u32 s{r}, s{r}, s40')
    ROT = env('ROT', 20)
    r = S_ROT
    lg0 = list(a.lg)
    a(f's_cmp_ge_u32 s{S_IDX}, 22'); a('s_cbranch_scc1 L_conv')
    a(f's_cmp_ge_u32 s{S_IDX}, 16'); a('s_cbranch_scc1 L_q')
    a(f's_cmp_lt_u32 s{S_WAVE}, 4'); a('s_cbranch_scc1 L_kvc')
    if ROT == 0:
        a(f's_mul_i32 s{r}, s{S_IDX}, 93'); a(f's_lshr_b32 s{r}, s{r}, 8'); a(f's_lshl_b32 s{r}, s{r}, 1'); a(f's_add_u32 s{r}, s{r}, s{S_J}'); mod10(r)
    elif ROT == 20:
        a(f's_lshr_b32 s{r}, s{S_IDX}, 1'); a(f's_add_u32 s{r}, s{r}, s{S_J}'); a(f's_and_b32 s{r}, s{r}, 7'); a(f's_mul_i32 s{r}, s{r}, 5'); a(f's_lshr_b32 s{r}, s{r}, 2')
    else:
        a(f's_mul_i32 s{r}, s{S_J}, 5'); a(f's_lshr_b32 s{r}, s{r}, 2')
    kv.kv_producer(a, st)
    a.label('L_floader'); a.forget()
    final.f_loader(a, st)
    st.dump(a, 20, 2, S_WAVE, n=11)
    a.label('L_end'); a('s_endpgm')
    a.label('L_kvc'); a.forget(); a.lg = list(lg0)
    kv.kv_consumer(a, st)
    a.label('L_fcompute'); a.forget()
    final.f_compute(a, st)
    st.dump(a, 20, 2, S_WAVE, n=11)
    a('s_endpgm')
    a.label('L_q'); a.forget(); a.lg = list(lg0)
    if ROT == 0:
        a(f's_lshl_b32 s{r}, s{S_IDX}, 1'); a(f's_add_u32 s{r}, s{r}, s{S_J}'); a(f's_sub_u32 s{r}, s{r}, 27'); mod10(r)
    elif ROT == 20:
        a(f's_mul_i32 s{r}, s{S_IDX}, 11'); a(f's_sub_u32 s{r}, s{r}, {176 - env("QOFF", 5)}'); a(f's_lshr_b32 s{r}, s{r}, 3')
        a(f's_add_u32 s{r}, s{r}, s{S_J}'); a(f's_and_b32 s{r}, s{r}, 7'); a(f's_mul_i32 s{r}, s{r}, 5'); a(f's_lshr_b32 s{r}, s{r}, 2')
    else:
        a(f's_mul_i32 s{r}, s{S_J}, 5'); a(f's_lshr_b32 s{r}, s{r}, 2'); a(f's_add_u32 s{r}, s{r}, {ROT-1}'); mod10(r)
    qrole.q_role(a, st, 'L_tail')
    a.label('L_conv'); a.forget(); a.lg = list(lg0)
    a(f's_sub_u32 s{r}, s{S_IDX}, 22'); a(f's_lshl_b32 s54, s{r}, 3'); a(f's_add_u32 s54, s54, s{S_J}')
    a(f's_add_u32 s{r}, s{r}, {10 - env("S0", 2)}'); mod10(r)
    a(f's_lshl_b32 s{r}, s{r}, 2'); a(f's_add_u32 s{r}, s{r}, 3'); a(f's_mul_i32 s{r}, s{r}, 52'); a(f's_lshr_b32 s{r}, s{r}, 8')
    a(f's_sub_u32 s{r}, s{r}, s{S_J}')
    conv.conv_role(a, st, 54, r, S_WAVE)
    a('s_barrier')
    st.mark(a, 6); st.mark(a, 7)
    a(f's_cmp_lt_u32 s{S_WAVE}, 4'); a('s_cbranch_scc1 L_fcompute')
    a(f's_cmp_lg_u32 s{S_WAVE}, 7'); a('s_cbranch_scc1 L_floader')
    a('v_mov_b32 v251, 1'); a('s_mov_b64 exec, 1')
    a(f'global_store_dword v250, v251, {sr(P["ws"],2)} sc1')
    a('s_mov_b64 exec, -1')
    a('s_branch L_floader')
    a.label('L_tail'); a.forget()
    a('s_barrier')
    st.mark(a, 6)
    a(f's_cmp_lt_u32 s{S_WAVE}, 4'); a('s_cbranch_scc1 L_tail3')
    final.wo_addr(a); final.wo_issue(a, S_PW, 5, 4)
    a.wait(vm=0); a('s_barrier')
    st.mark(a, 7)
    if env('WB', 0) == 1:
        a(f's_cmp_lg_u32 s{S_IDX}, 16'); a('s_cbranch_scc1 L_floader'); a(f's_cmp_lg_u32 s{S_WAVE}, 7'); a('s_cbranch_scc1 L_floader')
        a('buffer_wbl2 sc1')
    a('s_branch L_floader')
    a.label('L_tail3')
    if env('WB', 0) == 2:
        a(f's_cmp_lg_u32 s{S_IDX}, 16'); a('s_cbranch_scc1 L_tail4'); a(f's_cmp_lg_u32 s{S_WAVE}, 0'); a('s_cbranch_scc1 L_tail4')
        a('buffer_wbl2 sc1')
        a.label('L_tail4')
    a('s_barrier')
    st.mark(a, 7)
    a('s_branch L_fcompute')
    a.label('L_codeend')
    for f in a.deferred: f(a)
    return a

if __name__ == '__main__':
    stamps = len(sys.argv) > 2 and sys.argv[2] == '1'
    a = build(Stamps(stamps))
    if env('ALIGN', 1): print('align', align8(a))
    n = NAME + '_kernel'
    ref = open('cdna_kernels/' + NAME + '.s.ref').read()
    head = ref[:ref.index('; @launch')]
    if len(sys.argv) > 3: s = header([(n, 256, 512, 163840)])
    else: s = head + '; @launch grid=(256,1,1) block=(512,1,1) lds=163840\n.amdgcn_target "amdgcn-amd-amdhsa--gfx950"\n.text\n'
    s += kbegin(n) + a.text() + kdesc(n, 256)
    open(sys.argv[1], 'w').write(s)
    print('nops', a.nops, 'instructions', len(a.ins))
```

```python
from common import *
import final

STG, TAB = 0, 8704
CW = 12800
UW = 4608
UB = 8 * CW
RS = 544
DA, DB, T2, T3 = TAB, TAB + 1216, TAB + 2368, TAB + 2880
BANDS = UB + 8 * UW
CONV_LDS = BANDS + 8192

def cmul(z, x, y, t):
    return [f'v_pk_mul_f32 {vr(t,2)}, {vr(x,2)}, {vr(y,2)} op_sel:[0,0] op_sel_hi:[0,1]',
            f'v_pk_fma_f32 {vr(z,2)}, {vr(x,2)}, {vr(y,2)}, {vr(t,2)} op_sel:[1,1,0] op_sel_hi:[1,0,1] neg_lo:[1,0,0]']

def touch_early(a, s_wave):
    n = 0
    a(f's_sub_u32 s50, s{S_IDX}, 22'); a('s_lshl_b32 s51, s50, 3'); a(f's_add_u32 s51, s51, s{s_wave}')
    if env('PF_W', 1):
        a('v_and_b32 v6, 7, v1'); a('v_mul_u32_u24 v6, 3840, v6')
        a('v_lshrrev_b32 v7, 3, v1'); a('v_min_u32 v7, 5, v7')
        if env('PF_W', 1) == 2: a('v_max_u32 v7, 2, v7')
        a('v_lshrrev_b32 v16, 1, v7'); a('v_mul_u32_u24 v16, 1024, v16'); a('v_lshl_add_u32 v7, v7, 7, v16')
        a(f's_mul_i32 s43, s51, {8*3840}'); a(f's_mul_i32 s44, s{S_J}, 160'); a('s_andn2_b32 s44, s44, 127'); a('s_add_u32 s43, s43, s44')
        a('v_add3_u32 v6, v6, v7, s43')
        a('s_mov_b32 exec_hi, 0xffff')
        a(f'global_load_dword v254, v6, {sr(P["wqkv"],2)}'); n += 1
        a('s_mov_b32 exec_hi, -1')
    if env('PF_WO8', 2) == 1:
        a(f's_mul_i32 s43, s{S_J}, 80'); a('s_add_u32 s43, s43, s51'); a('s_mul_i32 s43, s43, 1280'); a('v_lshl_add_u32 v6, v1, 7, s43')
        a('s_mov_b64 exec, 0x3ff')
        a(f'global_load_dword v253, v6, {sr(P["wo"],2)}'); n += 1
        a('s_mov_b64 exec, -1')
    return n

def touch_mid(a, s_wave):
    for rep in range(2):
        if rep: a('s_sub_u32 s51, s51, 4')
        if env('PF_WO', 0):
            a(f's_mul_i32 s43, s{S_J}, 10'); a('s_add_u32 s43, s43, s51'); a('s_cmp_ge_u32 s43, 80'); a('s_cselect_b32 s44, 80, 0'); a('s_sub_u32 s43, s43, s44')
            a(f's_mul_i32 s43, s43, {80*128}'); a('v_lshl_add_u32 v246, v1, 7, s43')
            a(f'global_load_dword v255, v246, {sr(P["wo"],2)}')
            a('v_and_b32 v247, 15, v1'); a('v_lshlrev_b32 v247, 7, v247'); a('v_add_u32 v247, 8192, v247'); a('v_add_u32 v247, s43, v247')
            a('s_mov_b64 exec, 0xffff')
            a(f'global_load_dword v252, v247, {sr(P["wo"],2)}')
            a('s_mov_b64 exec, -1')
        if env('PF_MID', 1):
            a(f's_mul_i32 s43, s{S_J}, {64*5120}'); a('s_lshl_b32 s44, s51, 12'); a('s_add_u32 s43, s43, s44'); a(f's_add_u32 s43, s43, {WS_Q}')
            a('v_lshl_add_u32 v246, v1, 7, s43')
            a('s_mul_i32 s44, s51, 13'); a('s_sub_u32 s44, s44, 32'); a('v_add_u32 v247, s44, v1'); a('v_min_u32 v247, 1023, v247')
            a(f's_lshl_b32 s43, s{S_J}, 17'); a(f's_add_u32 s43, s43, {WS_KV}'); a('v_lshl_add_u32 v247, v247, 7, s43')
            a('v_cmp_gt_u32 vcc, 32, v1'); a('v_cndmask_b32 v246, v247, v246, vcc')
            a('s_mov_b32 exec_hi, 0x1fff')
            a(f'global_load_dword v254, v246, {sr(P["ws"],2)} sc1')
            a('s_mov_b32 exec_hi, -1')
        a.vm = []
    if env('PF_MID', 1):
        a(f's_lshl_b32 s43, s{S_J}, 9'); a(f's_add_u32 s43, s43, {WS_FL}'); a('v_and_b32 v247, 3, v1'); a('v_lshl_add_u32 v247, v247, 7, s43')
        a('s_mov_b64 exec, 15')
        a(f'global_load_dword v253, v247, {sr(P["ws"],2)} sc1')
        a('s_mov_b64 exec, -1')
    a.vm = []

def conv_role(a, st, s_cg, s_rot, s_wave, store_flags='sc1'):
    lane, li, lg = 1, 2, 3
    sT, sT2, sLB = 52, 53, 55
    a(f'v_and_b32 v{lane}, 63, v0')
    a(f's_lshl_b32 s{sT}, s{s_cg}, 3')
    a(f's_add_u32 s{sT}, s{sT}, s{s_wave}')
    a(f's_lshl_b32 s{sT2}, s{sT}, 8')
    a(f'v_lshl_add_u32 v4, v{lane}, 2, s{sT2}')
    a(f's_lshl_b32 s{sT2}, s{sT}, 1')
    a(f'v_mov_b32 v5, s{sT2}')
    pl = dict(dt=8, logA=9, Aim=10, Cre=11, Cim=12, Dsk=13)
    a(f's_mul_i32 s43, s{s_cg}, 205'); a('s_lshr_b32 s43, s43, 11'); a('s_lshl_b32 s43, s43, 10'); a(f's_add_u32 s43, s43, {WS_FA}'); a(f'v_lshl_add_u32 v250, v{lane}, 7, s43')
    UL = 184
    a(f's_sub_u32 s{sT2}, s{s_rot}, s{s_wave}')
    a(f's_and_b32 s46, s{sT2}, 7'); a('s_xor_b32 s49, s46, 4')
    a(f's_lshl_b32 s47, s{s_cg}, 4')
    a(f'v_mul_u32_u24 v15, {4*1280}, v{lane}'); a('v_add_u32 v15, s47, v15')
    a(f's_mul_i32 s{sT2}, s49, {256*1280}'); a(f'v_add_u32 v249, s{sT2}, v15')
    a(f's_mul_i32 s{sT2}, s46, {256*1280}'); a(f'v_add_u32 v15, s{sT2}, v15')
    def usite(k):
        L = a.newlabel('L_us')
        a(f's_cmp_lg_u32 s{s_wave}, {k & 3}'); a(f's_cbranch_scc1 {L}')
        for j in range(4): a.raw(f'    global_load_dwordx4 {vr(UL + 16*(k >> 2) + 4*j, 4)}, v{249 if k >> 2 else 15}, {sr(P["u"],2)} offset:{1280*j}')
        a.label(L)
    a.wait(lg=0)
    a(f'global_load_ushort v{pl["dt"]}, v5, {sr(P["logdt"],2)}')
    a(f'global_load_dword v{pl["logA"]}, v4, {sr(P["logA"],2)}')
    a(f'global_load_dword v{pl["Aim"]}, v4, {sr(P["Aim"],2)}')
    a(f'global_load_dword v{pl["Cre"]}, v4, {sr(P["Cre"],2)}')
    a(f'global_load_dword v{pl["Cim"]}, v4, {sr(P["Cim"],2)}')
    a(f'global_load_ushort v{pl["Dsk"]}, v5, {sr(P["Dskip"],2)}')
    nearly = touch_early(a, s_wave)
    a(f'v_and_b32 v{li}, 15, v0')
    a(f'v_bfe_u32 v{lg}, v0, 4, 2')
    a(f's_mul_i32 s{sLB}, s{s_wave}, {CW}')
    Z = 16
    for k in range(4): a(f'v_mov_b32 v{Z+k}, 0')
    a(f'v_lshl_add_u32 v6, v{lane}, 4, s{sLB}')
    a('s_barrier')
    usite(0)
    for k in range(4): a(f'ds_write_b128 v6, {vr(Z,4)} offset:{TAB + 1024*k}')
    a(f's_mul_i32 s42, s{s_wave}, {UW}'); a(f's_add_u32 s42, s42, {UB}'); a(f'v_lshl_add_u32 v6, v{lane}, 3, s42'); a(f'ds_write_b64 v6, {vr(Z,2)}')
    a(f's_lshl_b32 s43, s{s_wave}, 2'); a('s_lshr_b32 s44, 0x233579, s43'); a('s_lshr_b32 s45, 0xcb3654, s43')
    a('s_and_b32 s44, s44, 15'); a('s_and_b32 s45, s45, 15'); a('s_bfm_b32 s45, s44, s45')
    a(f's_cmp_eq_u32 s{s_wave}, 5'); a('s_mov_b32 s44, 0xffff'); a('s_cselect_b32 s44, s44, 0x3f80')
    a(f'v_lshlrev_b32 v7, 3, v{lg}'); a(f'v_lshlrev_b32 v20, v{li}, s45'); a('v_bfe_u32 v20, v20, v7, 8'); a('v_lshl_or_b32 v20, v20, 15, v20')
    for q in range(4):
        if q: a('v_lshrrev_b32 v20, 2, v20')
        a(f'v_and_b32 v{24+q}, 0x10001, v20'); a(f'v_mul_u32_u24 v{24+q}, s44, v{24+q}')
    A_BAND = 248
    a(f'v_lshlrev_b32 v{A_BAND}, 4, v{lane}'); a(f'v_add_u32 v{A_BAND}, {BANDS}, v{A_BAND}')
    a(f's_lshl_b32 s43, s{s_wave}, 10'); a(f'v_add_u32 v21, s43, v{A_BAND}'); a('ds_write_b128 v21, v[24:27]')
    usite(1)
    AW, A_R, A_R1, A_R2, A_R0, A_R3, A_D, A_D16, A_T2, A_T3, A_U, A_O, A_TR = 228, 232, 233, 234, 235, 236, 237, 238, 239, 240, 241, 242, 243
    a(f'v_lshl_add_u32 v{AW}, v{lane}, 3, s{sLB}')
    for k in range(1, 4): a(f'v_add_u32 v{AW+k}, {4*RS*k}, v{AW}')
    a(f'v_mul_u32_u24 v{A_R}, {RS}, v{li}'); a(f'v_lshl_add_u32 v{A_R}, v{lg}, 4, v{A_R}'); a(f'v_add_u32 v{A_R}, s{sLB}, v{A_R}')
    a(f's_add_u32 s48, s{sLB}, 2048')
    a(f'v_lshlrev_b32 v20, 8, v{lg}'); a(f'v_lshl_add_u32 v20, v{li}, 4, v20'); a(f'v_sub_u32 v{A_R1}, s48, v20')
    a(f'v_lshlrev_b32 v20, 7, v{lg}'); a(f'v_lshl_add_u32 v20, v{li}, 2, v20'); a(f'v_sub_u32 v{A_R2}, s48, v20')
    a(f'v_and_b32 v22, 1, v{lg}'); a(f'v_lshrrev_b32 v23, 1, v{lg}')
    a('v_lshlrev_b32 v20, 3, v22'); a(f'v_lshl_add_u32 v20, v{li}, 4, v20'); a('v_lshl_add_u32 v20, v23, 8, v20'); a(f'v_sub_u32 v{A_R0}, s48, v20')
    a(f'v_lshlrev_b32 v21, 5, v{li}'); a(f'v_lshl_add_u32 v20, v{lg}, 3, v21'); a(f'v_sub_u32 v{A_R3}, s48, v20')
    usite(2)
    a(f'v_lshl_add_u32 v21, v{lg}, 4, v21'); a(f'v_add_u32 v{A_U}, s42, v21')
    a(f'v_and_b32 v20, 1, v{li}'); a(f'v_mul_u32_u24 v20, {DB - DA + 2}, v20'); a(f'v_lshlrev_b32 v21, 1, v{li}'); a('v_sub_u32 v20, v20, v21')
    a(f'v_lshl_add_u32 v20, v{lg}, 4, v20'); a(f'v_add_u32 v20, s{sLB}, v20')
    a(f'v_add_u32 v{A_D16}, {DA + 2*(526 - 512)}, v20')
    a(f'v_add_u32 v{A_D}, {DA + 2*(526 - 480)}, v20')
    a(f'v_lshlrev_b32 v20, 2, v{lg}'); a(f'v_sub_u32 v20, v20, v{li}')
    a(f'v_lshl_add_u32 v{A_T2}, v20, 3, s48')
    a(f's_add_u32 s43, s{sLB}, {T3 + 2*(254 - 224)}'); a(f'v_lshl_add_u32 v{A_T3}, v20, 2, s43')
    a(f's_lshl_b32 s{sT2}, s{sT}, 12')
    if WS_A: a(f's_add_u32 s{sT2}, s{sT2}, {WS_A}')
    a(f'v_lshl_add_u32 v20, v22, 9, s{sT2}'); a('v_lshl_add_u32 v20, v23, 6, v20')
    a(f'v_lshrrev_b32 v21, 2, v{li}'); a('v_lshl_add_u32 v20, v21, 7, v20'); a(f'v_and_b32 v21, 3, v{li}'); a(f'v_lshl_add_u32 v{A_O}, v21, 4, v20')
    for h, sb in enumerate((46, 49)):
        a(f's_lshl_b32 s47, s{sb}, 9'); a(f's_add_u32 s47, s47, {UB + 512}'); a(f'v_lshl_add_u32 v{A_TR + h}, v{lane}, 3, s47')
    NE = env('NE', 4)
    if NE == 4: usite(3)
    st.mark(a, 1)
    L1 = a.newlabel('L_pw')
    a(f's_cmp_lt_u32 s{s_wave}, {NE}'); a(f's_cbranch_scc1 {L1}')
    a.raw(f'    s_waitcnt vmcnt({nearly})'); a.label(L1); a.raw(f'    s_waitcnt vmcnt({nearly + 4})'); a.vm = []
    st.mark(a, 2)
    if NE == 3: usite(3)
    EB = os.environ.get('EB', 'frag')
    def early_barrier(pos):
        if pos != EB: return
        L = a.newlabel('L_eb')
        a(f's_cmp_lt_u32 s{s_wave}, 4'); a(f's_cbranch_scc1 {L}')
        if env('PF_WO8', 2) == 2:
            a(f's_mul_i32 s43, s{S_J}, 80'); a('s_add_u32 s43, s43, s51'); a(f's_add_u32 s43, s43, s{s_wave}'); a('s_sub_u32 s43, s43, 8'); a('s_mul_i32 s43, s43, 1280')
            a('v_lshl_add_u32 v246, v1, 7, s43')
            a('s_mov_b64 exec, 0xfffff')
            a(f'global_load_dword v253, v246, {sr(P["wo"],2)}'); a.vm = []
            a('s_mov_b64 exec, -1')
        a.raw('    s_barrier')
        touch_mid(a, s_wave)
        if env('EBP', 0): a('s_setprio 2')
        a.label(L)
    a('s_mov_b32 s43, %#x' % LOG2E)
    a('s_mov_b32 s44, 0xffff0000')
    a('s_mov_b32 s45, %#x' % INV2PI)
    dt = 14
    a(f'v_lshlrev_b32 v{dt}, 16, v{pl["dt"]}')
    a(f'v_mul_f32 v{dt}, s43, v{dt}')
    a(f'v_exp_f32 v{dt}, v{dt}')
    al = [16, 17]; be = [18, 19]
    a(f'v_lshlrev_b32 v{al[0]}, 16, v{pl["logA"]}')
    a(f'v_and_b32 v{al[1]}, s44, v{pl["logA"]}')
    a(f'v_cvt_pk_bf16_f32 v{dt}, v{dt}, v{dt}')
    for n in range(2): a(f'v_mul_f32 v{al[n]}, s43, v{al[n]}')
    a(f'v_and_b32 v{dt}, s44, v{dt}')
    for n in range(2): a(f'v_exp_f32 v{al[n]}, v{al[n]}')
    a(f'v_lshlrev_b32 v{be[0]}, 16, v{pl["Aim"]}')
    a(f'v_and_b32 v{be[1]}, s44, v{pl["Aim"]}')
    a(f'v_cvt_pk_bf16_f32 v{al[1]}, v{al[0]}, v{al[1]}')
    for n in range(2): a(f'v_mul_f32 v{be[n]}, v{dt}, v{be[n]}')
    a(f'v_lshlrev_b32 v{al[0]}, 16, v{al[1]}')
    a(f'v_and_b32 v{al[1]}, s44, v{al[1]}')
    for n in range(2): a(f'v_mul_f32 v{be[n]}, s45, v{be[n]}')
    for n in range(2): a(f'v_mul_f32 v{al[n]}, v{dt}, v{al[n]}')
    for n in range(2): a(f'v_mul_f32 v{al[n]}, s43, v{al[n]}')
    w1 = [20, 22]; W = [24, 26]; C = [28, 30]; w8 = [32, 34]; tmp = [36, 38]
    a('s_mov_b32 s47, 0x43000000')
    def direct(dst, scale):
        for n in range(2):
            if scale:
                a(f'v_mul_f32 v{40+n}, s47, v{al[n]}'); a(f'v_mul_f32 v{42+n}, s47, v{be[n]}')
        ms = [40, 41] if scale else al; ps = [42, 43] if scale else be
        for n in range(2): a(f'v_fract_f32 v{42+n}, v{ps[n]}')
        for n in range(2): a(f'v_exp_f32 v{40+n}, -v{ms[n]}')
        for n in range(2):
            a(f'v_cos_f32 v{dst[n]}, v{42+n}'); a(f'v_sin_f32 v{dst[n]+1}, v{42+n}')
        for n in range(2):
            a(f'v_mul_f32 v{dst[n]}, v{40+n}, v{dst[n]}'); a(f'v_mul_f32 v{dst[n]+1}, v{40+n}, v{dst[n]+1}')
    direct(w1, False)
    def cm2(z, x, y):
        i0 = cmul(z[0], x[0], y[0], tmp[0]); i1 = cmul(z[1], x[1], y[1], tmp[1])
        for s in (i0[0], i1[0], i0[1], i1[1]): a(s)
    cm2(w8, w1, w1); cm2(w8, w8, w8); cm2(w8, w8, w8)
    direct(W, True)
    a(f'v_add_f32 v{dt}, v{dt}, v{dt}')
    a(f'v_lshlrev_b32 v{C[0]}, 16, v{pl["Cre"]}'); a(f'v_and_b32 v{C[1]}, s44, v{pl["Cre"]}')
    a(f'v_lshlrev_b32 v{C[0]+1}, 16, v{pl["Cim"]}'); a(f'v_and_b32 v{C[1]+1}, s44, v{pl["Cim"]}')
    for n in range(2):
        a(f'v_mul_f32 v{C[n]}, v{dt}, v{C[n]}'); a(f'v_mul_f32 v{C[n]+1}, v{dt}, v{C[n]+1}')
    a.wait(lg=0)
    US = [int(c) for c in os.environ.get('US', '8,20,32,44').split(',')]
    pkn = [0]; pend = {}; nrow = [0]
    def put(row, x, conj=False, const=None, single=False):
        key = row >> 1
        if key not in pend: pend[key] = (40 if pkn[0] % 3 == 0 else (44 if pkn[0] % 3 == 1 else 4), set()); pkn[0] += 1
        r, have = pend[key]
        for n in range(2):
            d = r + 2*(row & 1) + n
            if const is not None: a(f'v_mov_b32 v{d}, {const}')
            else: a(f'v_cvt_pk_bf16_f32 v{d}, v{x[n]}, {"-" if conj else ""}v{x[n]+1}')
        have.add(row)
        if single:
            a(f'ds_write_b64 v{AW + (row >> 2)}, {vr(r + 2*(row & 1), 2)} offset:{(row & 3)*RS}'); del pend[key]
        elif len(have) == 2:
            o = (row & 2)*RS // 8
            a(f'ds_write2_b64 v{AW + (row >> 2)}, {vr(r,2)}, {vr(r+2,2)} offset0:{o} offset1:{o + RS//8}'); del pend[key]
        nrow[0] += 1
        if nrow[0] in US: usite(4 + US.index(nrow[0]))
    def cx(i): return [48 + 4*i, 50 + 4*i]
    F2, F1 = 88, [120, 152, 48]
    KT = [216, 220, 224]
    def tile(F):
        assert not pend
        for t in range(8): a(f'ds_read_b128 {vr(F+4*t,4)}, v{A_R} offset:{STG + 64*t}')
    def tile_mfma(k, swap=False):
        x, y = (F2, F1[k]) if swap else (F1[k], F2)
        return [f'v_mfma_f32_16x16x32_bf16 {vr(KT[k],4)}, {vr(x+4*t,4)}, {vr(y+4*t,4)}, {vr(KT[k],4) if t else 0}' for t in range(8)]
    put(0, None, const='0x3f80'); put(1, w8, True)
    w16 = cx(0); cm2(w16, w8, w8); put(2, w16, True)
    ev, od = cx(1), cx(2)
    cm2(od, w8, w16); put(3, od, True); cm2(ev, w16, w16); put(4, ev, True)
    for j in range(5, 16):
        x = od if j & 1 else ev
        cm2(x, x, w16); put(j, x, True)
    tile(F2)
    t0 = [cx(i) for i in range(8)]
    put(0, C)
    prev = C
    for i in range(8):
        cm2(t0[i], prev, W); put(8 + i, t0[i])
        if i < 7:
            nx = cx(8 + (i & 1)); cm2(nx, prev, w1); put(i + 1, nx); prev = nx
    tile(F1[0])
    early_barrier('t1')
    e = [t0[0], t0[2], t0[4], t0[6]]
    for k in range(4): cm2(e[k], e[k], W); put(k, e[k])
    for k in range(4): cm2(e[k], e[k], W); put(4 + k, e[k])
    p512, pa, pb = e[0], e[2], e[1]
    cm2(p512, p512, W); cm2(pa, pa, W); cm2(pb, p512, w8)
    for k in range(4):
        if k: cm2(pa, pa, W); cm2(pb, pb, W)
        put(8 + 2*k, pa); put(9 + 2*k, pb)
    tile(F1[1])
    early_barrier('t2')
    W2 = e[3]; cm2(W2, W, W); cm2(pa, pb, W); cm2(pb, pb, W2)
    put(8, p512, single=True); put(0, pa); put(1, pb)
    for i in range(2, 8):
        x = pb if i & 1 else pa
        cm2(x, x, W2); put(i, x)
    tile(F1[2])
    st.mark(a, 3)
    early_barrier('tab')
    for s in interleave(tile_mfma(1), tile_mfma(0)): a(s)
    for s in tile_mfma(2, swap=True): a(s)
    k0, k1, k2 = KT
    a(f'v_lshlrev_b32 v{pl["Dsk"]}, 16, v{pl["Dsk"]}')
    a(f'v_cvt_pk_bf16_f32 v16, v{k1+3}, v{k1+2}')
    a(f'v_cvt_pk_bf16_f32 v17, v{k1+2}, v{k1+2}')
    a(f'v_cvt_pk_bf16_f32 v18, v{k1+1}, v{k1}')
    a(f'v_cvt_pk_bf16_f32 v19, v{k1}, v{k1}')
    a(f'v_cvt_pk_bf16_f32 v20, v{k1+2}, v{k1+1}')
    a('v_mov_b32 v21, v19')
    a('s_mov_b64 exec, 1')
    a(f'v_add_f32 v{k0}, v{k0}, v{pl["Dsk"]}')
    a('s_mov_b32 exec_lo, -1')
    a(f'ds_write_b128 v{A_R1}, {vr(16,4)} offset:{DA - 2048 + 2*(542-256-6)}')
    a(f'ds_write_b16 v{A_R1}, v16 offset:{DB - 2048 + 2*(543-256-6)}')
    a(f'ds_write_b32 v{A_R1}, v17 offset:{DB - 2048 + 2*(543-256-5)}')
    a(f'ds_write_b64 v{A_R1}, v[20:21] offset:{DB - 2048 + 2*(543-256-3)}')
    a(f'ds_write_b16 v{A_R1}, v19 offset:{DB - 2048 + 2*(543-256+1)}')
    a(f'v_readlane_b32 s47, v16, 63')
    a('s_not_b64 exec, exec')
    a(f'ds_write_b32 v{A_R2}, v18 offset:{T2 - 2048 + 2*(320-130+128)}')
    a(f'ds_write_b32 v{A_R2}, v16 offset:{T2 - 2048 + 2*(320-162+128)}')
    a('s_mov_b64 exec, -1')
    a('s_pack_ll_b32_b16 s47, s47, s47')
    a(f'v_cvt_pk_bf16_f32 v22, v{k0+3}, v{k0+2}')
    a(f'v_cvt_pk_bf16_f32 v23, v{k0+1}, v{k0}')
    a(f'v_cvt_pk_bf16_f32 v24, v{k0+2}, v{k0+1}')
    a(f'ds_write_b64 v{A_R0}, {vr(22,2)} offset:{DB - 2048 + 2*(543-3)}')
    a(f'ds_write_b16 v{A_R0}, v22 offset:{DA - 2048 + 2*(542-3)}')
    a(f'ds_write_b32 v{A_R0}, v24 offset:{DA - 2048 + 2*(542-2)}')
    a(f'ds_write_b16_d16_hi v{A_R0}, v23 offset:{DA - 2048 + 2*542}')
    a(f'v_cvt_pk_bf16_f32 v26, v{k2+3}, v{k2+2}')
    a(f'v_cvt_pk_bf16_f32 v27, v{k2+1}, v{k2}')
    a(f'v_cvt_pk_bf16_f32 v28, v{k2}, v{k2}')
    a('v_mov_b32 v29, v28')
    a('s_mov_b32 exec_lo, 0x00ff00ff'); a('s_mov_b32 exec_hi, 0x00ff00ff')
    a(f'ds_write_b64 v{A_R3}, {vr(26,2)} offset:{T3 - 2048 + 2*124}')
    a('s_mov_b64 exec, 0x100')
    a(f'ds_write_b64 v{A_R3}, {vr(28,2)} offset:{DA - 1792 + 2*28}')
    a(f'ds_write_b16 v{A_R3}, v28 offset:{DB - 1792 + 2*29}')
    a(f'ds_write_b32 v{A_R3}, v28 offset:{DB - 1792 + 2*30}')
    a(f'ds_write_b16 v{A_R3}, v28 offset:{DB - 1792 + 2*32}')
    a('s_mov_b64 exec, -1')
    early_barrier('frag')
    final.wo_addr(a, 232)
    AF = 48
    K2 = 116
    K3 = 140
    D = 156
    UF = 188
    WT = 16
    WF = [4, 8, 12]
    OUT = 40
    BAND = 208
    breg = {k: BAND + 4*i for i, k in enumerate(('w9', 'w7', 'w5', 'w3a', 'w3b', 'bd'))}
    def rdA(k):
        if k == 16: return [f'ds_read2_b32 {vr(AF+64,2)}, v{A_D16} offset0:0 offset1:1', f'ds_read2_b32 {vr(AF+66,2)}, v{A_D16} offset0:2 offset1:3']
        o = 16*(15 - k)
        return [f'ds_read2_b32 {vr(AF+4*k,2)}, v{A_D} offset0:{o} offset1:{o+1}', f'ds_read2_b32 {vr(AF+4*k+2,2)}, v{A_D} offset0:{o+2} offset1:{o+3}']
    for k in (0, 8, 16, 1, 9, 2, 10, 3, 11, 4, 12, 5, 13, 6, 14, 7, 15):
        for s in rdA(k): a(s)
    for dl in (2, 3, 4):
        for h in range(2):
            r = K2 + 4*((dl-2)*2 + h); o = T2 - 2048 + 2*(316 - 64*dl + 8*h)
            a(f'ds_read_b64 {vr(r,2)}, v{A_T2} offset:{o}'); a(f'ds_read_b64 {vr(r+2,2)}, v{A_T2} offset:{o+8}')
    for dl in (4, 5, 6, 7):
        r = K3 + 4*(dl-4); o = 16*(7 - dl)
        a(f'ds_read2_b32 {vr(r,2)}, v{A_T3} offset0:{o} offset1:{o+1}'); a(f'ds_read2_b32 {vr(r+2,2)}, v{A_T3} offset0:{o+2} offset1:{o+3}')
    early_barrier('end')
    Lt = a.newlabel('L_tr')
    a(f's_cmp_ge_u32 s{s_wave}, 4'); a(f's_cbranch_scc1 {Lt}')
    lgs = list(a.lg)
    a('s_mov_b32 s43, 0x05040100'); a('s_mov_b32 s45, 0x07060302')
    for h in range(2):
        st.mark(a, 1 + 2*h, 'uw')
        a.raw(f'    s_waitcnt vmcnt({4 - 4*h})')
        st.mark(a, 2 + 2*h, 'uw')
        for ch in range(8):
            r = 16 + 2*(ch & 3); sel = 's45' if ch & 1 else 's43'; q = UL + 16*h + (ch >> 1)
            a(f'v_perm_b32 v{r}, v{q+4}, v{q}, {sel}')
            a(f'v_perm_b32 v{r+1}, v{q+12}, v{q+8}, {sel}')
            a(f'ds_write_b64 v{A_TR + h}, {vr(r,2)} offset:{ch*UW}')
    a.wait(lg=0)
    a('s_barrier')
    a.label(Lt); a.lg = lgs
    if env('EBP', 0): a('s_setprio 0')
    st.mark(a, 4)
    for i, k in enumerate(('w5', 'w9', 'w3a', 'w3b', 'w7', 'bd')): a(f'ds_read_b128 {vr(breg[k],4)}, v{A_BAND} offset:{256*(breg[k] - BAND)}')
    bdfix = [f'v_and_b32 v{breg["bd"]+q}, s47, v{breg["bd"]+q}' for q in range(4)]
    seq = []
    for m in range(8):
        if m <= 5: seq.append((m, -1))
        seq += [(m, b) for b in range(8)]
    NR = 5
    slot = {f: UF + 4*(i % NR) for i, f in enumerate(seq)}
    issued = [0]
    def fetch(upto):
        while issued[0] <= min(upto, len(seq) - 1):
            m, b = seq[issued[0]]
            off = 256*m - 24 if b < 0 else 256*m - 16 - 32*b
            a(f'ds_read_b128 {vr(slot[(m,b)],4)}, v{A_U} offset:{512 + 2*off}')
            issued[0] += 1
    touched = set()
    def acc(n, A, B):
        a(f'v_mfma_f32_16x16x32_bf16 {vr(D+4*n,4)}, {vr(A,4)}, {vr(B,4)}, {vr(D+4*n,4) if n in touched else 0}')
        touched.add(n)
    def wt(i, U, band): a(f'v_mfma_f32_16x16x32_bf16 {vr(WT+4*i,4)}, {vr(U,4)}, {vr(breg[band],4)}, 0')
    fetch(NR - 2)
    srd(a, 28, P['wo'], 819200)
    a(f's_mul_i32 s45, s{s_wave}, {80*1280}')
    dma = []
    for i in range(13):
        d = [f's_add_u32 m0, s{sLB}, {1024*i}']
        if i in (5, 10): d.append(f's_add_u32 s45, s45, {32*1280}')
        if i == 12: d.append('s_mov_b32 exec_hi, 0')
        d.append(f'buffer_load_dwordx4 v{232 + i % 5}, s[28:31], s45 offen lds')
        if i == 12: d.append('s_mov_b32 exec_hi, -1')
        dma.append(d)
    pend_out = []
    for m in range(8):
        fill = list(pend_out); pend_out = []
        if m <= 5:
            i = seq.index((m, -1)); fetch(i + NR - 2)
            U = slot[(m, -1)]
            wt(0, U, 'w5')
            if m <= 3: wt(4, U, 'w9')
            fetch(i + NR - 1)
            U = slot[(m, 0)]
            wt(1, U, 'w3a'); wt(2, U, 'w5'); wt(3, U, 'w3b')
            if m <= 3: wt(5, U, 'w7')
            if m == 0:
                for s in bdfix: a(s)
            cv = []
            for h in range(2):
                for jj in range(2):
                    j = 2*h + jj
                    cv.append(f'v_cvt_pk_bf16_f32 v{WF[h]+2*jj}, v{WT+j}, v{WT+4+j}')
                    cv.append(f'v_cvt_pk_bf16_f32 v{WF[h]+2*jj+1}, v{WT+8+j}, v{WT+12+j}')
            if m <= 3:
                for j in range(4): cv.append(f'v_cvt_pk_bf16_f32 v{WF[2]+j}, v{WT+16+j}, v{WT+20+j}')
            fill = fill + cv
        for b in range(8):
            i = seq.index((m, b)); fetch(i + NR - 2)
            U = slot[(m, b)]
            acc(m, AF + 4*b, U)
            if b >= 2 or m > 5:
                for _ in range(2):
                    if fill: a(fill.pop(0))
            if m + 1 < 8: acc(m + 1, AF + 4*(8 + b), U)
            if b >= 2 or m > 5:
                for _ in range(2):
                    if fill: a(fill.pop(0))
            if m >= 1 and b in (1, 4, 6) and dma:
                for s in dma.pop(0): a(s)
            if b == 0:
                if m + 2 < 8: acc(m + 2, AF + 64, U)
                if m + 4 < 8: acc(m + 4, breg['bd'], U)
        assert not fill, fill
        if m <= 5:
            for dl in (2, 3, 4):
                if m + dl < 8:
                    for h in range(2): acc(m + dl, WF[h], K2 + 4*((dl-2)*2 + h))
        if m <= 3:
            for dl in range(4, 8 - m): acc(m + dl, WF[2], K3 + 4*(dl - 4))
        if m & 1:
            o = OUT + 4*((m >> 1) & 1); d0 = D + 4*(m - 1); d1 = D + 4*m
            pend_out = [f'v_cvt_pk_bf16_f32 v{o}, v{d0}, v{d0+1}', f'v_cvt_pk_bf16_f32 v{o+1}, v{d0+2}, v{d0+3}',
                        f'v_cvt_pk_bf16_f32 v{o+2}, v{d1}, v{d1+1}', f'v_cvt_pk_bf16_f32 v{o+3}, v{d1+2}, v{d1+3}',
                        f'v_permlane16_swap_b32 v{o}, v{o+2}', f'v_permlane16_swap_b32 v{o+1}, v{o+3}',
                        f'global_store_dwordx4 v{A_O}, {vr(o,4)}, {sr(P["ws"],2)} offset:{512*(m-1)} {store_flags}']
    assert not dma
    for s in pend_out: a(s)
    st.mark(a, 5)
    a(f'v_lshlrev_b32 v4, 2, v{lane}')
    check_ann(a, 4, 6)
```

```python
from common import *

OFL = os.environ.get('OFL', '')
WOI = 0
XCH = 143360

def wo_addr(a, R=12):
    a(f's_mul_i32 s46, s{S_CT}, 160'); a('s_movk_i32 s45, 1120')
    a('v_lshl_add_u32 v4, v1, 4, s46'); a('v_mul_u32_u24 v5, 6554, v1')
    for i in range(5):
        if i: a(f'v_add_u32 v5, {64*6554}, v5'); a('v_add_u32 v4, 1024, v4')
        a('v_lshrrev_b32 v6, 16, v5'); a(f'v_mad_u32_u24 v{R+i}, v6, s45, v4')

def wo_issue(a, s_i, rounds, R=12, SW=28):
    if not rounds: return
    srd(a, SW, P['wo'], 819200)
    a(f's_mul_i32 s44, s{s_i}, 5120')
    for g in rounds:
        a(f's_mul_i32 s45, s{s_i}, {32*1280}'); a(f's_add_u32 s45, s45, {g*4*32*1280}')
        for i in range(5):
            a(f's_add_u32 m0, s44, {WOI + g*4*5120 + 1024*i}')
            a(f'buffer_load_dwordx4 v{R+i}, {sr(SW,4)}, s45 offen lds')

PHI = 102400
def ga_base(a, s_w, dst):
    a(f's_lshr_b32 s{dst}, s{s_w}, 1'); a(f's_add_u32 s{dst}, s{dst}, s{S_IDX}'); a(f's_add_u32 s{dst}, s{dst}, 2'); a(f's_and_b32 s{dst}, s{dst}, 3')
    a(f's_lshl_b32 s{dst}, s{dst}, 1'); a(f's_and_b32 s39, s{s_w}, 1'); a(f's_add_u32 s{dst}, s{dst}, s39'); a(f's_mul_i32 s{dst}, s{dst}, 5120'); a(f's_add_u32 s{dst}, s{dst}, {PHI}')

def f_loader(a, st):
    SA = 32
    li, lg = 2, 3
    srd(a, SA, P['ws'], WS_A + 2621440)
    a(f'v_and_b32 v{li}, 15, v0'); a(f'v_bfe_u32 v{lg}, v0, 4, 2')
    a(f's_and_b32 s40, s{S_PW}, 1'); a(f's_lshr_b32 s41, s{S_PW}, 1'); a('s_lshl_b32 s43, s40, 1'); a('s_add_u32 s43, s43, s41')
    a(f's_lshl_b32 s45, s{S_CT}, 3'); a(f's_add_u32 s45, s45, s{S_J}'); a('s_lshl_b32 s45, s45, 7'); a(f's_add_u32 s45, s45, {WS_FA}'); a('v_mov_b32 v4, s45'); a('v_mov_b32 v13, 0')
    a(f's_lshl_b32 s44, s{S_RT}, 2'); a('s_add_u32 s44, s44, s43'); a('s_lshl_b32 s45, s44, 6'); a(f's_add_u32 s47, s45, {WS_G}'); a(f'v_lshl_add_u32 v10, v{li}, 2, s47')
    a('v_lshrrev_b32 v6, 1, v1'); a('v_lshlrev_b32 v6, 12, v6'); a('v_and_b32 v7, 1, v1'); a('v_lshl_add_u32 v6, v7, 6, v6')
    a(f's_mul_i32 s45, s{S_CT}, {80*4096}'); a(f's_lshl_b32 s44, s{S_RT}, 7'); a('s_add_u32 s45, s45, s44'); a('s_lshl_b32 s44, s43, 4'); a('s_add_u32 s45, s45, s44')
    if WS_A: a(f's_add_u32 s45, s45, {WS_A}')
    a(f's_mul_i32 s44, s{S_PW}, 2560'); a(f's_add_u32 s44, s44, s{S_AI}')
    a(f'v_mul_u32_u24 v7, 640, v{lg}'); a(f'v_lshl_add_u32 v7, v{li}, 3, v7'); a('v_add_u32 v7, s44, v7')
    ga_base(a, S_PW, 46); a('v_lshl_add_u32 v8, v1, 4, s46'); a('v_lshl_add_u32 v9, v1, 2, s44')
    a('s_mov_b64 exec, 1')
    poll(a, 4, 5, P['ws'], ['v_cmp_ne_u32 vcc, 10, v5'], env('SLPA', 4), zero=13)
    a('s_mov_b64 exec, -1')
    st.mark(a, 9)
    for i in range(3):
        a(f's_add_u32 m0, s44, {1024*i}')
        if i == 2: a('s_mov_b32 exec_hi, 0')
        a(f'buffer_load_dwordx4 v6, {sr(SA,4)}, s45 offen sc1 lds')
        if i < 2: a(f's_add_u32 s45, s45, {32*4096}')
    a('s_mov_b32 exec_hi, -1')
    if env('PF_A', 1):
        L = a.newlabel('L_pfa')
        a(f's_cmp_lt_u32 s{S_IDX}, 16'); a(f's_cbranch_scc1 {L}')
        a(f's_mul_i32 s46, s{S_PW}, {20*4096}'); a('s_add_u32 s45, s45, s46'); a(f's_sub_u32 s45, s45, {64*4096 + 256}')
        a('v_lshl_add_u32 v11, v1, 12, s45'); a('s_sub_u32 s46, s47, 512'); a('v_writelane_b32 v11, s46, 20')
        a('s_mov_b64 exec, 0x1fffff')
        a(f'global_load_dword v12, v11, {sr(P["ws"],2)} sc1')
        a('s_mov_b64 exec, -1')
        a.label(L)
    poll(a, 10, 20, P['ws'], ['v_cmp_eq_u32 vcc, 0, v20'])
    a('v_rcp_f32 v20, v20'); a('s_mov_b32 s45, 0xffff0000'); a('v_sub_f32 v21, 1.0, v20')
    st.mark(a, 10)
    AF, GA = 24, 36
    for T in range(5): a(f'ds_read_b64_tr_b16 {vr(AF + 2*T, 2)}, v7 offset:{128*T}')
    for k in range(10):
        a(f'v_lshlrev_b32 v{GA + 2*k}, 16, v{AF + k}'); a(f'v_and_b32 v{GA + 2*k + 1}, s45, v{AF + k}')
        a(f'v_mul_f32 v{GA + 2*k}, v20, v{GA + 2*k}'); a(f'v_mul_f32 v{GA + 2*k + 1}, v20, v{GA + 2*k + 1}')
        if k & 1: a(f'ds_write_b128 v8, {vr(GA + 2*k - 2, 4)} offset:{512*(k - 1)}')
    a('ds_write_b32 v9, v21')
    a.wait(lg=0)
    a('s_barrier')

def f_compute(a, st):
    li, lg = 2, 3
    s_w = S_WAVE
    OF = 112
    a('v_and_b32 v1, 63, v0'); a(f'v_and_b32 v{li}, 15, v0'); a(f'v_bfe_u32 v{lg}, v0, 4, 2')
    a(f's_and_b32 s40, s{s_w}, 1'); a(f's_lshr_b32 s41, s{s_w}, 1')
    a(f's_lshl_b32 s42, s{S_RT}, 1'); a('s_add_u32 s42, s42, s40'); a('s_lshl_b32 s42, s42, 1'); a('s_add_u32 s42, s42, s41')
    a(f's_mul_i32 s42, s42, {16*1280}'); a(f's_add_u32 s42, s42, {WS_O}')
    a('v_lshl_add_u32 v14, v1, 4, s42')
    a(f'v_mul_u32_u24 v15, 1280, v{lg}'); a(f'v_lshl_add_u32 v15, v{li}, 4, v15'); a('v_add_u32 v15, s42, v15')
    a('s_lshl_b32 s43, s40, 1'); a('s_add_u32 s43, s43, s41')
    a(f's_lshl_b32 s44, s{S_RT}, 2'); a('s_add_u32 s44, s44, s43')
    a(f's_lshl_b32 s45, s{S_RT}, 2'); a(f's_add_u32 s45, s45, s{s_w}'); a('s_lshl_b32 s45, s45, 7'); a(f's_add_u32 s45, s45, {WS_FO}')
    a('v_mov_b32 v17, s45'); a('v_mov_b32 v19, 0')
    a(f'v_lshrrev_b32 v8, 2, v{li}'); a(f'v_and_b32 v9, 3, v{li}'); a('v_mul_u32_u24 v10, 40, v9')
    a(f's_mul_i32 s45, s41, {320*160}')
    a(f'v_lshl_add_u32 v11, v{lg}, 2, v8'); a('v_mul_u32_u24 v11, 160, v11'); a('v_add3_u32 v4, v11, v10, s45')
    a(f'v_mul_u32_u24 v11, 20, v{lg}'); a('v_add_u32 v11, v11, v8'); a('v_mul_u32_u24 v12, 160, v11'); a('v_add3_u32 v5, v12, v10, s45')
    ga_base(a, s_w, 46); a('v_lshl_add_u32 v6, v1, 4, s46')
    a(f's_mul_i32 s45, s{s_w}, 2560'); a(f's_add_u32 s45, s45, s{S_AI}'); a('v_lshl_add_u32 v16, v1, 2, s45')
    a(f's_mul_i32 s45, s{s_w}, 5120'); a(f's_add_u32 s45, s45, {XCH}'); a('v_lshl_add_u32 v7, v1, 4, s45')
    a(f's_xor_b32 s47, s{s_w}, 2'); a('s_mul_i32 s47, s47, 5120'); a(f's_add_u32 s47, s47, {XCH}'); a('v_lshl_add_u32 v8, v1, 4, s47')
    a(f'v_mul_u32_u24 v9, 176, v{li}'); a(f'v_mul_u32_u24 v10, 40, v{lg}'); a('v_add3_u32 v9, v9, v10, s47')
    a(f's_mul_i32 s45, s44, {16*1280}'); a(f's_mul_i32 s46, s{S_CT}, 160'); a('s_add_u32 s45, s45, s46'); a('s_movk_i32 s46, 1120')
    a('v_mul_u32_u24 v10, 6554, v1')
    for i in range(3):
        if i: a(f'v_add_u32 v10, {64*6554}, v10'); a('s_add_u32 s45, s45, 1024')
        a('v_lshrrev_b32 v11, 16, v10'); a(f'v_lshl_add_u32 v{248+i}, v11, 4, v8')
        a('v_lshl_add_u32 v12, v1, 4, s45'); a(f'v_mad_u32_u24 v{252+i}, v11, s46, v12')
    ACC = 24
    WF = 64; NW = 10
    SO = 32; AK = 192
    srd(a, SO, P['ws'], WS_G)
    def rdw(n):
        ks, T = divmod(n, 5); r = WF + 4*(n % NW); h, k = divmod(ks, 5)
        if k < 4: b0 = b1 = AK + 2*h + (k >> 1); o0 = (k & 1)*6400; o1 = o0 + 3200
        else: b0, b1, o0, o1 = AK + 4 + 2*h, AK + 5 + 2*h, 0, 0
        return [f'ds_read_b64_tr_b16 {vr(r,2)}, v{b0} offset:{o0 + 8*T}', f'ds_read_b64_tr_b16 {vr(r+2,2)}, v{b1} offset:{o1 + 8*T}']
    def loads(h):
        o = []
        for p in range(2):
            o += [f'buffer_load_dwordx4 {vr(OF + 40*h + 16*p + 4*i, 4)}, v14, {sr(SO,4)}, s{48 + 2*h + p} offen offset:{1280*i} sc1' for i in range(4)]
        o += [f'buffer_load_dwordx4 {vr(OF + 40*h + 32 + 4*p, 4)}, v15, {sr(SO,4)}, s{48 + 2*h + p} offen offset:1024 sc1' for p in range(2)]
        return o
    ready = ['v_readfirstlane_b32 s52, v18', 's_and_b32 s52, s52, 0x04040404']
    a('v_add_u32 v5, 2560, v5'); a(f's_and_b32 s47, s{S_CT}, 3'); a('s_lshl_b32 s47, s47, 3')
    a.wait(vm=0); st.mark(a, 2, 'tail'); a('s_barrier')
    st.mark(a, 3, 'tail'); st.mark(a, 4, 'hop')
    a('s_mov_b64 exec, 1')
    poll(a, 17, 18, P['ws'], ready + ['s_bcnt1_i32_b32 s45, s52', f's_cmp_lt_u32 s45, {env("NRDY", 2)}', 's_cselect_b64 vcc, 1, 0'], env('SLP', 0), zero=19)
    a('s_mov_b64 exec, -1')
    st.mark(a, 8); st.mark(a, 4, 'tail'); st.mark(a, 5, 'hop')
    a('s_mov_b32 s53, s52'); a('s_lshr_b64 s[44:45], s[52:53], s47')
    a('s_mov_b32 s54, 0x04040404')
    for p in range(4):
        if p == 2: a('s_mov_b32 s44, s54')
        a('s_ff1_i32_b32 s46, s44'); a('s_bitset0_b32 s44, s46')
        if p < 2: a('s_bitset0_b32 s54, s46')
        a('s_add_u32 s46, s46, s47'); a('s_lshr_b32 s46, s46, 1'); a('s_and_b32 s46, s46, 12')
        a(f's_mul_i32 s{48+p}, s46, 1280'); a('s_mul_i32 s46, s46, 3200')
        if p < 2:
            for x in loads(0)[4*p:4*p + 4]: a(x)
        if p == 1:
            for x in loads(0)[8:]: a(x)
            a('s_mov_b64 exec, 1'); a(f'global_atomic_add v18, v17, v19, {sr(P["ws"],2)} sc0 sc1'); a('s_mov_b64 exec, -1')
        a(f'v_add_u32 v{AK+p}, s46, v4'); a(f'v_add_u32 v{AK+4+p}, s46, v5')
    PD = NW - 2
    for n in range(PD):
        for x in rdw(n): a(x)
    def swap(ks):
        x = OF + 8*ks
        a(f'v_swap_b32 v{x+2}, v{x+4}'); a(f'v_swap_b32 v{x+3}, v{x+5}')
    st.mark(a, 5, 'tail')
    swap(0)
    st.mark(a, 6, 'tail'); st.mark(a, 6, 'hop')
    RX, GA, O = 112, 132, 152
    seq = [(n, u) for n in range(40) for u in range(2)] + [(n, 1) for n in range(40, 50)] + [(n, 0) for n in range(40, 50)]
    fill = {}
    def at(i, *ins): fill.setdefault(i, []).extend(ins)
    for n in range(PD, 50):
        r = rdw(n); i = 2*(n - PD)
        at(i, r[0]); at(i + 1, r[1])
    for ks in range(8):
        if ks != 4: at(10*ks + 7, ('swap', ks + 1))
    at(79, ('swap', 9))
    CP = env('CP', 21)
    at(CP, 'CP1'); at(49, 'CP2', ('swap', 5))
    for T in range(5): at(92 + (3*T + 1)//2, f'ds_write_b128 v7, {vr(ACC + 20 + 4*T, 4)} offset:{1024*T}')
    for i, (n, u) in enumerate(seq):
        ks, T = divmod(n, 5)
        d = ACC + 20*u + 4*T
        a(f'v_mfma_f32_16x16x32_bf16 {vr(d,4)}, {vr(WF + 4*(n % NW), 4)}, {vr(OF + 8*ks + 4*u, 4)}, {vr(d,4) if ks else 0}')
        for x in fill.pop(i, []):
            if isinstance(x, tuple):
                swap(x[1])
                if x[1] == 5: st.mark(a, 9, 'hop')
            elif x == 'CP1':
                L = a.newlabel('L_cp')
                a.wait(vm=0); st.mark(a, 7, 'hop'); st.mark(a, 8, 'hop')
                a('v_readfirstlane_b32 s55, v18'); a('s_cmp_lg_u32 s55, 0x04040404'); a(f's_cbranch_scc1 {L}')
                for y in loads(1): a.raw('    ' + y)
                a.label(L)
            elif x == 'CP2':
                L = a.newlabel('L_cp')
                a('s_cmp_eq_u32 s55, 0x04040404'); a(f's_cbranch_scc1 {L}')
                a('s_mov_b64 exec, 1'); poll(a, 17, 18, P['ws'], ['v_cmp_ne_u32 vcc, 0x04040404, v18'], zero=19); a('s_mov_b64 exec, -1'); st.mark(a, 8, 'hop')
                for y in loads(1): a(y)
                a.label(L)
            else: a(x)
    assert not fill
    st.mark(a, 9); st.mark(a, 7, 'tail'); st.mark(a, 10, 'hop')
    a.wait(lg=0); st.mark(a, 8, 'tail'); a('s_barrier'); st.mark(a, 9, 'tail')
    a('ds_read_b32 v22, v16')
    for T in range(5):
        a(f'ds_read_b128 {vr(RX + 4*T, 4)}, v8 offset:{1024*T}'); a(f'ds_read_b128 {vr(GA + 4*T, 4)}, v6 offset:{1024*T}')
    for k in range(10):
        a(f'v_pk_add_f32 {vr(ACC + 2*k, 2)}, {vr(ACC + 2*k, 2)}, {vr(RX + 2*k, 2)}')
        a(f'v_pk_fma_f32 {vr(GA + 2*k, 2)}, {vr(ACC + 2*k, 2)}, v[22:23], {vr(GA + 2*k, 2)} op_sel_hi:[1,0,1]')
        a(f'v_cvt_pk_bf16_f32 v{O + k}, v{GA + 2*k}, v{GA + 2*k + 1}')
        if k == 3: a(f'ds_write2_b64 v9, {vr(O,2)}, {vr(O+2,2)} offset0:0 offset1:1')
        if k == 7: a(f'ds_write2_b64 v9, {vr(O+4,2)}, {vr(O+6,2)} offset0:2 offset1:3')
        if k == 9: a(f'ds_write_b64 v9, {vr(O+8,2)} offset:32')
    for i in range(3): a(f'ds_read_b128 {vr(RX + 4*i, 4)}, v{248+i} offset:{1024*i}')
    for i in range(3):
        if i == 2: a('s_mov_b32 exec_hi, 0')
        a(f'global_store_dwordx4 v{252+i}, {vr(RX + 4*i, 4)}, {sr(P["out"],2)} {OFL}')
    a('s_mov_b32 exec_hi, -1')
    st.mark(a, 10); st.mark(a, 10, 'tail')
```

```python
from common import *
import final

XS, WSL = 16384, 20480
XR, WR = 0, 4*XS
WPHI = WR + 4*WSL
ZERO = WPHI + 4096
PHI = 102400
VFR = PHI + 40960

WOR = [0, 4, 1, 3, 2]

def kv_producer(a, st):
    s_j, s_R, s_rot, s_pw = S_J, S_IDX, S_ROT, S_PW
    SX, SW, SP = 28, 32, 36
    st.mark(a, 1, 'start')
    a('s_setprio 3')
    a('v_and_b32 v1, 63, v0')
    a('v_lshrrev_b32 v2, 3, v1'); a('v_mul_u32_u24 v2, 1280, v2')
    a('v_lshrrev_b32 v3, 4, v1'); a('v_and_b32 v4, 7, v1'); a('v_xor_b32 v3, v3, v4')
    a('v_lshl_add_u32 v10, v3, 4, v2'); a('v_xor_b32 v11, 64, v10')
    a(f's_lshl_b32 s40, s{s_R}, 2'); a(f's_add_u32 s40, s40, s{s_pw}'); a(f's_mul_i32 s40, s40, {32*1280}')
    if env('XFAKE', 0): a(f's_mul_i32 s40, s{s_pw}, {32*1280}')
    a(f's_lshl_b32 s41, s{s_pw}, 12')
    a(f's_mul_i32 s42, s{s_pw}, 5120'); a(f's_add_u32 s42, s42, {WR}')
    a(f's_mov_b32 s43, s{s_rot}'); a(f's_mov_b32 s44, s{s_rot}')
    st.mark(a, 2, 'start')
    a.wait(lg=0)
    st.mark(a, 3, 'start')
    srd(a, SX, P['u'], 2621440); srd(a, SW, P['wqkv'], 2457600)
    st.mark(a, 1)
    order = []
    def X(t):
        a('s_lshl_b32 s45, s43, 7'); a('s_add_u32 s45, s45, s40')
        for i in range(4):
            a(f's_add_u32 m0, s41, {XR + ((t + 2) % 4)*XS + 1024*i}')
            if i: a(f's_add_u32 s45, s45, 10240')
            a(f'buffer_load_dwordx4 v{10 + (i & 1)}, {sr(SX,4)}, s45 offen lds'); order.append(t)
        a('s_add_u32 s43, s43, 1'); a(f's_cmp_eq_u32 s43, {NST}'); a('s_cselect_b32 s43, 0, s43')
    def Wt(t, pre=None):
        a(f's_mul_i32 s45, s44, {64*3840}')
        for i in range(5):
            if pre: pre(i)
            a(f's_add_u32 m0, s42, {((t + 2) % 4)*WSL + 1024*i}')
            a(f'buffer_load_dwordx4 v{12+i}, {sr(SW,4)}, s45 offen lds'); order.append(t)
        a('s_add_u32 s44, s44, 1'); a(f's_cmp_eq_u32 s44, {NST}'); a('s_cselect_b32 s44, 0, s44')
    X(0); st.mark(a, 4, 'start')
    srd(a, SP, P['wphi'], 25600)
    a('v_lshlrev_b32 v2, 4, v1'); a(f's_lshl_b32 s47, s{s_pw}, 10')
    a(f's_mul_i32 s45, s{s_j}, 3200'); a('s_add_u32 s45, s45, s47')
    a(f'buffer_load_dwordx4 v[36:39], v2, {sr(SP,4)}, s45 offen'); order.append(0)
    a(f's_add_u32 s47, s47, {WPHI}'); a('v_add_u32 v35, s47, v2')
    a(f's_mul_i32 s46, s{s_pw}, {16*3840}'); a(f's_mul_i32 s47, s{s_j}, 160'); a('s_add_u32 s46, s46, s47'); a('s_add_u32 s46, s46, 1280')
    a('v_lshl_add_u32 v7, v1, 4, s46'); a('v_mul_u32_u24 v8, 6554, v1'); a('s_movk_i32 s47, 1760'); a('s_movk_i32 s48, 1280'); a('s_movk_i32 s49, -1920')
    def waddr(i):
        if i: a(f'v_add_u32 v8, {64*6554}, v8'); a('v_add_u32 v7, 1024, v7')
        a('v_lshrrev_b32 v3, 16, v8'); a('v_bfe_u32 v4, v8, 16, 1'); a('v_bfe_u32 v5, v8, 20, 1')
        a(f'v_mad_u32_u24 v{12+i}, v3, s47, v7'); a('v_xor_b32 v5, v5, v4')
        a(f'v_mad_i32_i24 v{12+i}, v4, s49, v{12+i}'); a(f'v_mad_u32_u24 v{12+i}, v5, s48, v{12+i}')
    Wt(0, waddr); st.mark(a, 5, 'start')
    PRO = env('PRO', 1)
    a('s_setprio 0')
    if env('WO1', 5): final.wo_addr(a, 72)
    o_weights_addr(a)
    st.mark(a, 6, 'start')
    if os.environ.get('DIAG') == 'start':
        a.wait(vm=9); st.mark(a, 7, 'start'); a.wait(vm=6); st.mark(a, 8, 'start'); a.wait(vm=1); st.mark(a, 9, 'start'); a.wait(vm=0); st.mark(a, 10, 'start')
    for k in range(4): a(f'v_mov_b32 v{52+k}, 0')
    a(f'v_add_u32 v3, {ZERO}, v2'); a(f'ds_write_b128 v3, v[52:55]')
    X(1)
    if PRO == 0: Wt(1); X(2)
    if PRO == 2: Wt(1)
    a('s_mov_b32 s48, %#x' % LOG2E)
    for q in range(4):
        a(f'v_lshlrev_b32 v40, 16, v{36+q}'); a(f'v_and_b32 v41, 0xffff0000, v{36+q}')
        a('v_mul_f32 v40, s48, v40'); a('v_mul_f32 v41, s48, v41'); a(f'v_cvt_pk_bf16_f32 v{36+q}, v40, v41')
    a('ds_write_b128 v35, v[36:39]')
    nwo = 0
    nx, nw = (3, 2) if PRO == 0 else ((2, 1) if PRO == 1 else (2, 2))
    for s in range(NST):
        last = max(i for i, o in enumerate(order) if o <= s)
        st.mark(a, s + 1, 'pre')
        a.wait(vm=len(order) - 1 - last, lg=0 if s == 0 else None)
        st.mark(a, s + 1, 'post')
        a('s_barrier')
        st.mark(a, s + 1, 'bar')
        if s == 0: st.mark(a, 2)
        budget = env('RAMP', 3); XA = env('XA', 2)
        while budget > 0:
            cw = nw < NST and nw <= s + 2; cx = nx < NST and nx <= s + XA
            if cw and (nw < nx or not cx): Wt(nw); nw += 1
            elif cx: X(nx); nx += 1
            else: break
            budget -= 1
        if s == NST - 2: o_weights_read(a)
        if s >= NST - 2:
            k = env('WOA', 1) if s == NST - 2 else env('WOB', 2)
            final.wo_issue(a, S_PW, WOR[nwo:nwo + k], 72); order.extend([99]*5*k); nwo += k
    assert nx == NST and nw == NST
    a.vm = []
    a.wait(lg=0); a('s_barrier')
    st.mark(a, 3)
    final.wo_issue(a, S_PW, WOR[nwo:env('WO1', 5)], 72)
    W3 = o_weights_fix(a)
    o_stage(a, st, W3)

WA, WB, WBb = 60, 64, 68
def o_weights_addr(a):
    a(f's_and_b32 s50, s{S_IDX}, 3'); a('s_mul_i32 s48, s50, 800'); a(f's_add_u32 s48, s48, {WPHI}')
    a('v_bfe_u32 v20, v1, 2, 2'); a('v_and_b32 v21, 3, v1'); a('v_lshrrev_b32 v26, 4, v1')
    a('v_lshrrev_b32 v22, 2, v1'); a('v_mul_u32_u24 v22, 40, v22'); a('v_add_u32 v22, s48, v22')
    a('v_mul_u32_u24 v23, 40, v20'); a('v_add_u32 v23, s48, v23'); a('v_add_u32 v23, 640, v23')
    a(f'v_mov_b32 v24, {ZERO}'); a('v_cmp_eq_u32 vcc, s50, v26'); a('v_cndmask_b32 v23, v24, v23, vcc')
    a('v_lshl_add_u32 v24, v21, 3, v22'); a('v_lshl_add_u32 v25, v21, 3, v23')
    a('v_and_b32 v26, 1, v20'); a('v_mul_u32_u24 v26, 0x8000, v26'); a('v_lshl_or_b32 v26, v26, 16, v26')
def o_weights_read(a):
    a(f'ds_read_b64_tr_b16 {vr(WA,2)}, v24'); a(f'ds_read_b64_tr_b16 {vr(WA+2,2)}, v25')
    a(f'ds_read_b64_tr_b16 {vr(WB,2)}, v22 offset:32'); a(f'ds_read_b64_tr_b16 {vr(WB+2,2)}, v23 offset:32')
def o_weights_fix(a):
    a('v_cmp_gt_u32 vcc, 2, v20')
    for q in range(4):
        a(f'v_xor_b32 v{WB+q}, v26, v{WB+q}')
        a(f'v_cndmask_b32 v{WBb+q}, v{WB+q}, 0, vcc'); a(f'v_cndmask_b32 v{WB+q}, 0, v{WB+q}, vcc')
    return WA, WB, WBb

def phi_parts(W3, QX, T, PA):
    WA, WB, WBb = W3; QY = QX + 4
    A0, A1, B = T, T + 4, T + 8
    E = [T + 12, T + 16, T + 20, T + 24, T + 28]
    c = [T + 32, T + 34, T + 36, T + 38]; Z = T + 40
    lo = [f'v_swap_b32 v{QX+2}, v{QY}', f'v_swap_b32 v{QX+3}, v{QY+1}',
          f'v_mfma_f32_16x16x32_bf16 {vr(A0,4)}, {vr(WA,4)}, {vr(QX,4)}, 0', f'v_mfma_f32_16x16x32_bf16 {vr(A1,4)}, {vr(WA,4)}, {vr(QY,4)}, 0',
          f'v_mfma_f32_16x16x32_bf16 {vr(B,4)}, {vr(WB,4)}, {vr(QX,4)}, 0', f'v_mfma_f32_16x16x32_bf16 {vr(B,4)}, {vr(WBb,4)}, {vr(QY,4)}, {vr(B,4)}']
    def gather(op2):
        return [f'v_permlane32_swap_b32 v{c[0]}, v{c[2]}', f'v_permlane32_swap_b32 v{c[1]}, v{c[3]}',
                f'{op2} v{c[0]}, v{c[0]}, v{c[2]}', f'{op2} v{c[1]}, v{c[1]}, v{c[3]}',
                f'v_permlane16_swap_b32 v{c[0]}, v{c[1]}',
                f'{op2} v{Z}, v{Z}, v{c[0]}', f'{op2} v{Z}, v{Z}, v{c[1]}']
    spread = [f'v_mov_b32 v{c[0]}, v{Z}', f'v_mov_b32 v{c[1]}, v{Z}',
              f'v_permlane16_swap_b32 v{c[0]}, v{c[1]}',
              f'v_mov_b32 v{c[2]}, v{c[0]}', f'v_mov_b32 v{c[3]}, v{c[1]}',
              f'v_permlane32_swap_b32 v{c[0]}, v{c[2]}', f'v_permlane32_swap_b32 v{c[1]}, v{c[3]}']
    src = [(A0, ''), (A0, '-'), (A1, ''), (A1, '-'), (B, '')]
    fast = [f'v_exp_f32 v{E[k]+q}, {sg}v{x+q}' for k, (x, sg) in enumerate(src) for q in range(4)]
    slow = []
    for m, (x, sg) in zip(c + [Z], src):
        slow += [f'v_max3_f32 v{m}, {sg}v{x}, {sg}v{x+1}, {sg}v{x+2}', f'v_max_f32 v{m}, {sg}v{x+3}, v{m}']
    slow += gather('v_max_f32') + spread
    for k, (m, (x, sg)) in enumerate(zip(c + [Z], src)):
        slow += [f'v_sub_f32 v{E[k]+q}, {sg}v{x+q}, v{m}' for q in range(4)]
    slow += [f'v_exp_f32 v{E[k]+q}, v{E[k]+q}' for k in range(5) for q in range(4)]
    sums = [f'v_pk_add_f32 {vr(m,2)}, {vr(E[k],2)}, {vr(E[k]+2,2)}' for k, m in enumerate(c + [Z])]
    sums += [f'v_add_f32 v{m}, v{m}, v{m+1}' for m in c + [Z]] + gather('v_add_f32')
    rest = [f'v_rcp_f32 v{Z}, v{Z}'] + spread
    for k, m in enumerate(c + [Z]):
        rest += [f'v_pk_mul_f32 {vr(E[k]+q,2)}, {vr(E[k]+q,2)}, {vr(m,2)} op_sel_hi:[1,0]' for q in (0, 2)]
    rest += [f'v_cvt_pk_bf16_f32 v{PA + 2*k + q}, v{E[k] + 2*q}, v{E[k] + 2*q + 1}' for k in range(5) for q in range(2)]
    return lo, fast, slow, sums, rest, Z

def o_stage(a, st, W3):
    li, lg = 2, 3
    a(f'v_and_b32 v{li}, 15, v0'); a(f'v_bfe_u32 v{lg}, v0, 4, 2')
    a(f's_and_b32 s50, s{S_IDX}, 3')
    a(f's_andn2_b32 s51, s{S_IDX}, 3'); a(f's_add_u32 s51, s51, s{S_PW}'); a('s_lshl_b32 s51, s51, 2')
    a(f's_lshl_b32 s40, s{S_J}, 9'); a(f's_add_u32 s40, s40, {WS_FL + 256}')
    if env('QFINE', 1):
        a('v_add_u32 v4, s51, v1'); a('v_mul_u32_u24 v7, 373, v4'); a('v_lshrrev_b32 v7, 12, v7')
        a('v_cmp_lt_u32 vcc, 53, v4'); a('v_cndmask_b32 v7, v7, 5, vcc'); a('v_subb_co_u32 v8, vcc, 0, 0, vcc')
        a('v_mul_u32_u24 v9, 11, v7'); a('v_add_u32 v9, v9, v8'); a('v_sub_u32 v4, v4, v9')
        a('v_cmp_lt_u32 vcc, 3, v7'); a('v_cndmask_b32 v8, 0, 1, vcc'); a('v_lshrrev_b32 v9, 3, v4'); a('v_and_b32 v8, v8, v9')
        a('v_add_u32 v4, v4, v8'); a('v_mul_u32_u24 v4, 86, v4'); a('v_lshrrev_b32 v4, 8, v4')
        a('v_lshl_add_u32 v4, v7, 2, v4'); a('v_min_u32 v4, 23, v4')
    else: a('v_min_u32 v4, 23, v1')
    a('v_lshl_add_u32 v4, v4, 2, s40')
    a(f's_lshl_b32 s40, s{S_J}, 6'); a('s_add_u32 s40, s40, s51'); a('s_mul_i32 s40, s40, 5120'); a(f's_add_u32 s40, s40, {WS_Q}')
    a('s_lshl_b32 s41, s50, 10'); a('s_add_u32 s41, s41, s40'); a('s_add_u32 s40, s40, 4096')
    a('v_lshl_add_u32 v5, v1, 4, s41'); a('v_lshl_add_u32 v6, v1, 4, s40')
    a('s_mul_i32 s52, s50, 10240'); a(f's_add_u32 s52, s52, {PHI}')
    a('v_lshl_add_u32 v15, v1, 4, s52')
    a('v_and_b32 v8, 7, v1'); a(f'v_lshl_add_u32 v8, v{lg}, 3, v8'); a('v_lshl_add_u32 v8, v8, 4, s52')
    a('v_and_b32 v9, 31, v1'); a('v_lshl_add_u32 v9, v9, 4, s52')
    a(f's_lshl_b32 s53, s{S_J}, 2'); a('s_add_u32 s53, s53, s50')
    a('s_lshl_b32 s40, s51, 5'); a('s_add_u32 s40, s40, s53'); a('s_mul_i32 s40, s40, 1280'); a(f's_add_u32 s40, s40, {WS_O}')
    a('v_lshl_add_u32 v10, v1, 4, s40')
    a(f'v_mul_u32_u24 v11, {32*1280}, v{lg}'); a(f'v_lshl_add_u32 v11, v{li}, 4, v11'); a('v_add_u32 v11, s40, v11')
    a(f's_lshr_b32 s40, s{S_J}, 2'); a('s_add_u32 s40, s40, s51'); a('s_lshl_b32 s40, s40, 8'); a(f's_add_u32 s40, s40, {WS_FO}')
    a('v_and_b32 v12, 2, v1'); a('v_add_u32 v12, v12, v1'); a('v_lshl_add_u32 v12, v12, 7, s40')
    a(f's_and_b32 s40, s{S_J}, 3'); a('s_lshl_b32 s40, s40, 3'); a('s_lshl_b32 s40, 1, s40'); a('v_mov_b32 v13, s40')
    a('s_barrier')
    st.mark(a, 4)
    poll_flag(a, 4, 7, 4 if env('QFINE', 1) else 24)
    if env('OPRIO', 1) == 1: a('s_setprio 2')
    st.mark(a, 5)
    QF, PA, T = 72, 104, 144
    for p in range(4):
        a(f'global_load_dwordx4 {vr(QF + 8*p, 4)}, v5, {sr(P["ws"],2)} sc1'); a(f'global_load_dwordx4 {vr(QF + 8*p + 4, 4)}, v6, {sr(P["ws"],2)} sc1')
        if p < 3: a('v_add_u32 v5, 5120, v5'); a('v_add_u32 v6, 5120, v6')
    for p in (0, 2):
        x = phi_parts(W3, QF + 8*p, T, PA + 10*p); y = phi_parts(W3, QF + 8*p + 8, T + 44, PA + 10*p + 10)
        for s in x[0] + y[0] + x[1] + y[1] + interleave(x[3], y[3]): a(s)
        a(f'v_max_f32 v14, v{x[5]}, v{y[5]}'); a('v_cmp_lt_f32 vcc, 0x5d800000, v14')
        Ls, Lb = a.newlabel('L_qslow'), a.newlabel('L_qback')
        a(f's_cbranch_vccnz {Ls}')
        a.label(Lb)
        def slow(a, x=x, y=y, Ls=Ls, Lb=Lb):
            a.label(Ls); a.forget()
            for s in interleave(x[2] + x[3], y[2] + y[3]): a(s)
            a(f's_branch {Lb}')
        a.deferred.append(slow)
        for s in interleave(x[4], y[4]): a(s)
    st.mark(a, 6)
    a('v_cmp_gt_u32 vcc, 32, v1')
    if env('OPRIO', 1) == 2: a('s_setprio 2')
    a('s_barrier')
    st.mark(a, 7); st.mark(a, 1, 'tail'); st.mark(a, 1, 'hop')
    K0, K1, XA, XB = 16, 20, 24, 28
    a(f'ds_read_b128 {vr(K1,4)}, v8 offset:1024'); a(f'ds_read_b128 {vr(K0,4)}, v15'); a(f'ds_read_b128 {vr(XA,4)}, v9 offset:1536')
    D = lambda p, u, t: T + 16*p + 8*u + 4*t
    def mm(p, t):
        K = K0 if t == 0 else K1
        return [f'v_mfma_f32_16x16x32_bf16 {vr(D(p,u,t),4)}, {vr(K,4)}, {vr(PA + 10*p + 4*u,4)}, 0' for u in range(2)] + \
               [f'v_mfma_f32_16x16x16_bf16 {vr(D(p,u,t),4)}, {vr(XA + 4*u + 2*t,2)}, {vr(PA + 10*p + 8,2)}, {vr(D(p,u,t),4)}' for u in range(2)]
    mask = [s for q in range(4) for s in (f'v_cndmask_b32 v{XB+q}, v{XA+q}, 0, vcc', f'v_cndmask_b32 v{XA+q}, 0, v{XA+q}, vcc')]
    def fin(p):
        o = []
        O = 32 + 8*(p & 1)
        for u in range(2): o.append(f'v_add_f32 v{D(p,u,1)+2}, 0x358637bd, v{D(p,u,1)+2}')
        for u in range(2): o.append(f'v_rcp_f32 v{D(p,u,1)+2}, v{D(p,u,1)+2}')
        for u in range(2):
            r = D(p,u,1) + 2
            for x in (D(p,u,1), D(p,u,1) + 1, D(p,u,0), D(p,u,0) + 1, D(p,u,0) + 2, D(p,u,0) + 3): o.append(f'v_mul_f32 v{x}, v{r}, v{x}')
        for u in range(2):
            for q in range(2): o.append(f'v_cvt_pk_bf16_f32 v{O + 2*u + q}, v{D(p,u,0) + 2*q}, v{D(p,u,0) + 2*q + 1}')
        o.append(f'global_store_dwordx4 v10, {vr(O,4)}, {sr(P["ws"],2)} sc1')
        for u in range(2): o.append(f'v_cvt_pk_bf16_f32 v{O+4+u}, v{D(p,u,1)}, v{D(p,u,1)+1}')
        o.append(f'v_cndmask_b32 v{48+p}, v{O+5}, v{O+4}, vcc')
        if p < 3: o += [f'v_add_u32 v10, {32*1280}, v10']
        return o
    big = lambda p: mm(p, 1)[:2] + mm(p, 0)[:2]
    small = lambda p: mm(p, 1)[2:] + mm(p, 0)[2:]
    for s in big(0) + interleave(big(1), mask): a(s)
    for s in small(0) + big(2): a(s)
    for s in interleave(small(1) + big(3), fin(0)): a(s)
    st.mark(a, 2, 'tail')
    for s in interleave(small(2) + small(3), fin(1)): a(s)
    for s in fin(2): a(s)
    for s in fin(3): a(s)
    a('v_permlane32_swap_b32 v48, v50'); a('v_permlane32_swap_b32 v49, v51')
    a('v_permlane16_swap_b32 v48, v49'); a('v_permlane16_swap_b32 v50, v51')
    a(f'global_store_dwordx4 v11, v[48:51], {sr(P["ws"],2)} offset:1024 sc1')
    st.mark(a, 3, 'tail'); st.mark(a, 2, 'hop')
    EARLYB = env('WO1', 5) == 5 and env('EARLYB', 1)
    if EARLYB: a('s_barrier')
    a.wait(vm=0)
    st.mark(a, 4, 'tail'); st.mark(a, 3, 'hop')
    a('s_mov_b64 exec, 15')
    a(f'global_atomic_add v12, v13, {sr(P["ws"],2)} sc1')
    a('s_mov_b64 exec, -1')
    st.mark(a, 8)
    a('s_setprio 0')
    if not EARLYB: a('s_barrier')

def kv_consumer(a, st):
    s_j, s_R, s_w = S_J, S_IDX, S_WAVE
    li, lg = 2, 3
    a('v_and_b32 v1, 63, v0'); a(f'v_and_b32 v{li}, 15, v0'); a(f'v_bfe_u32 v{lg}, v0, 4, 2')
    L = a.newlabel('L_clr')
    a(f's_cmp_lg_u32 s{s_w}, 0'); a(f's_cbranch_scc1 {L}')
    a(f's_lshl_b32 s40, s{s_j}, 9'); a(f's_lshl_b32 s41, s{s_R}, 2'); a('s_add_u32 s40, s40, s41'); a(f's_add_u32 s40, s40, {WS_FL}')
    a('v_lshl_add_u32 v16, v1, 6, s40')
    a('s_lshl_b32 s40, s2, 7'); a(f's_add_u32 s41, s40, {WS_FO}'); a(f's_add_u32 s40, s40, {WS_FA}')
    a('v_writelane_b32 v16, s41, 4'); a('v_writelane_b32 v16, s40, 5'); a('v_mov_b32 v17, 0')
    a.wait(lg=0)
    a('s_mov_b64 exec, 63')
    a(f'global_store_dword v16, v17, {sr(P["ws"],2)} sc1')
    a('s_mov_b64 exec, -1')
    a.label(L); a.vm = []
    AX = 4
    a(f'v_lshrrev_b32 v16, 1, v{li}'); a(f'v_xor_b32 v16, v16, v{lg}'); a('v_lshlrev_b32 v16, 4, v16')
    a(f'v_lshl_add_u32 v16, v{li}, 7, v16'); a(f's_lshl_b32 s40, s{s_w}, 12'); a(f'v_add_u32 v{AX}, s40, v16'); a(f'v_xor_b32 v{AX+1}, 64, v{AX}')
    AK, AVP, AVS = 6, 8, 10
    a(f'v_lshrrev_b32 v16, 2, v{li}'); a(f'v_lshl_add_u32 v16, v{lg}, 3, v16'); a('v_mul_u32_u24 v16, 320, v16')
    a(f'v_and_b32 v17, 1, v{lg}'); a('v_mul_u32_u24 v17, 160, v17')
    a(f'v_and_b32 v18, 3, v{li}'); a('v_mul_u32_u24 v19, 40, v18')
    a(f'v_add_u32 v16, {WR}, v16')
    a(f'v_add3_u32 v{AK}, v16, v17, v19')
    a('v_sub_u32 v16, v16, v17'); a('v_add_u32 v16, 160, v16')
    a(f'v_lshl_add_u32 v{AVP}, v18, 3, v16')
    a(f'v_add3_u32 v{AVS}, v16, v19, 32')
    for r in (AK, AVP, AVS): a(f'v_add_u32 v{r+1}, {3*WSL}, v{r}')
    KA, VA = 32, 72
    XF = 112
    WF = 128; NW = 6
    WPH = 160
    def rdx(ks, u):
        s = ks >> 1
        return f'ds_read_b128 {vr(XF + 8*(ks & 1) + 4*u, 4)}, v{AX + (ks & 1)} offset:{XR + ((s + 2) % 4)*XS + 2048*u}'
    def rdw(n):
        ks, T = divmod(n, 10); s = ks >> 1; slot = (s + 2) % 4
        base, o = (AK, 8*T) if T < 5 else ((AVP, 40*(T - 5)) if T < 9 else (AVS, 0))
        o += (ks & 1)*32*320 + (slot % 3)*WSL; base += slot // 3
        r = WF + 4*(n % NW)
        return [f'ds_read_b64_tr_b16 {vr(r,2)}, v{base} offset:{o}', f'ds_read_b64_tr_b16 {vr(r+2,2)}, v{base} offset:{o + 4*320}']
    a(f'v_lshrrev_b32 v16, 2, v{li}'); a('v_mul_u32_u24 v16, 40, v16'); a(f'v_mul_u32_u24 v17, 800, v{lg}')
    a('s_mov_b32 s41, %d' % WPHI); a('v_add3_u32 v16, v16, v17, s41')
    a(f'v_mov_b32 v17, {ZERO}'); a(f'v_cmp_eq_u32 vcc, v18, v{lg}'); a('v_cndmask_b32 v12, v17, v16, vcc')
    wph = [f'ds_read_b64_tr_b16 {vr(WPH + 10*T + 2*q, 2)}, v12 offset:{160*q + 8*T}' for T in range(5) for q in range(5)]
    E_V, E_P, E_A, E_A2, E_B, E_B4, E_O, E_M, E_F, E_KF, E_KP, E_KS, E_DBG = 212, 213, 214, 215, 216, 217, 218, 219, 222, 223, 224, 225, 226
    a(f's_mul_i32 s41, s{s_w}, 5120'); a(f's_add_u32 s41, s41, {VFR}'); a(f'v_lshl_add_u32 v{E_V}, v1, 4, s41')
    a(f'v_mul_u32_u24 v14, 10240, v{lg}'); a(f'v_mul_u32_u24 v15, 80, v{li}')
    a(f's_mul_i32 s41, s{s_w}, {32*80}'); a(f's_add_u32 s41, s41, {PHI}'); a(f'v_add3_u32 v{E_P}, v14, v15, s41')
    a(f'v_lshrrev_b32 v16, 2, v{li}'); a(f'v_lshl_add_u32 v16, v{lg}, 2, v16'); a('v_mul_u32_u24 v16, 80, v16')
    a(f's_mul_i32 s41, s{s_w}, 10240'); a(f's_add_u32 s41, s41, {PHI}')
    a(f'v_lshl_add_u32 v17, v18, 3, v16'); a(f'v_add_u32 v{E_A}, s41, v17')
    a(f'v_and_b32 v17, 1, v{li}'); a('v_lshl_add_u32 v17, v17, 3, v16'); a(f'v_add3_u32 v{E_A2}, v17, s41, 64')
    a(f's_lshl_b32 s41, s{s_w}, 10'); a(f's_add_u32 s41, s41, {VFR}'); a(f'v_lshl_add_u32 v{E_B}, v1, 4, s41')
    a(f'v_bfe_u32 v16, v{li}, 2, 1'); a(f'v_and_b32 v17, 1, v{li}'); a('v_lshl_add_u32 v16, v16, 1, v17'); a(f'v_lshl_add_u32 v16, v{lg}, 4, v16')
    a(f's_lshl_b32 s41, s{s_w}, 6'); a(f's_add_u32 s41, s41, {VFR + 4096}'); a(f'v_lshl_add_u32 v{E_B4}, v16, 4, s41')
    a(f'v_and_b32 v17, 2, v{li}'); a('v_cmp_eq_u32 s[48:49], 0, v17')
    a('v_lshlrev_b32 v19, 4, v1')
    a(f's_lshl_b32 s44, s{s_j}, 2'); a(f's_add_u32 s44, s44, s{s_w}'); a('s_lshl_b32 s44, s44, 4'); a(f's_add_u32 s44, s44, s{s_R}')
    a('s_lshl_b32 s44, s44, 11'); a(f's_add_u32 s44, s44, {WS_KV}')
    a(f'v_add_u32 v{E_O}, s44, v19')
    a(f'v_lshl_add_u32 v16, v{lg}, 3, v{li}'); a(f'v_lshl_add_u32 v{E_M}, v16, 4, s44')
    SEL = 152
    a(f'v_and_b32 v16, 1, v{li}'); a('v_lshlrev_b32 v16, 4, v16'); a('s_movk_i32 s41, 0x3f80'); a('v_lshlrev_b32 v16, v16, s41'); a(f'v_lshrrev_b32 v17, 1, v{li}')
    for q in range(8): a(f'v_cmp_eq_u32 vcc, {q}, v17'); a(f'v_cndmask_b32 v{SEL+q}, 0, v16, vcc')
    a(f's_lshl_b32 s40, s{s_j}, 9'); a(f's_add_u32 s40, s40, {WS_FL}')
    a(f's_lshl_b32 s41, s{s_w}, 4'); a(f's_add_u32 s41, s41, s{s_R}'); a('s_lshl_b32 s41, s41, 2'); a('s_add_u32 s41, s41, s40'); a(f'v_mov_b32 v{E_F}, s41')
    a(f's_and_b32 s50, s{s_R}, 3'); a('s_lshl_b32 s41, s50, 6'); a('s_add_u32 s41, s41, s40'); a(f'v_lshl_add_u32 v{E_KF}, v{li}, 2, s41')
    a(f's_lshl_b32 s41, s{s_j}, 2'); a('s_add_u32 s41, s41, s50'); a('s_lshl_b32 s41, s41, 15'); a(f's_lshl_b32 s40, s{s_w}, 9'); a('s_add_u32 s41, s41, s40')
    a(f's_add_u32 s41, s41, {WS_KV}'); a(f'v_lshlrev_b32 v16, 11, v{lg}'); a(f'v_lshl_add_u32 v16, v{li}, 4, v16'); a(f'v_add_u32 v{E_KP}, s41, v16')
    a('s_mul_i32 s41, s50, 10240'); a('s_add_u32 s41, s41, s40'); a(f's_add_u32 s41, s41, {PHI}')
    a(f'v_lshrrev_b32 v16, 1, v{lg}'); a(f'v_lshl_add_u32 v16, v16, 4, v{li}'); a(f'v_and_b32 v17, 1, v{lg}'); a('v_lshl_add_u32 v16, v16, 1, v17'); a(f'v_lshl_add_u32 v{E_KS}, v16, 3, s41')
    a(f'v_lshlrev_b32 v{E_DBG}, 2, v1')
    a.wait(lg=0)
    PD = NW - 2
    st.mark(a, 1)
    a('s_barrier')
    st.mark(a, 2)
    a(rdx(0, 0)); a(rdx(0, 1))
    for n in range(PD):
        for s in rdw(n): a(s)
    NK = 2*NST
    KO = 232
    kcvt = [f'v_cvt_pk_bf16_f32 v{KO + 12*u + i}, v{KA + 20*u + 2*i}, v{KA + 20*u + 2*i + 1}' for i in range(10) for u in range(2)]
    for n in range(10*NK):
        ks, T = divmod(n, 10)
        m = n + PD
        pre = []
        if m < 10*NK:
            if m % 20 == 0: pre.append('s_barrier')
            if m % 10 == 0: pre += [rdx(m // 10, 0), rdx(m // 10, 1)]
            rw = rdw(m)
        else: rw = []
        if wph and n >= 1 and n % 2 == 1 and not pre: pre.append(wph.pop(0))
        if n == 171: pre.append(f'global_load_dword v{E_DBG+2}, v{E_DBG}, {sr(P["dbg"],2)} sc1')
        if n == 10*NK - 2: pre += ['s_waitcnt lgkmcnt(0)', 's_barrier']
        r = WF + 4*(n % NW)
        for u in range(2):
            x = XF + 8*(ks & 1) + 4*u
            if T < 5: d = KA + 20*u + 4*T; ins = f'v_mfma_f32_16x16x32_bf16 {vr(d,4)}, {vr(r,4)}, {vr(x,4)}, {vr(d,4) if ks else 0}'
            else: d = VA + 20*u + 4*(T - 5); ins = f'v_mfma_f32_16x16x32_bf16 {vr(d,4)}, {vr(x,4)}, {vr(r,4)}, {vr(d,4) if ks else 0}'
            a(ins)
            if u == 0:
                for s in pre: a(s)
            if rw: a(rw[u])
            if n >= 10*NK - 5:
                for _ in range(2): a(kcvt.pop(0))
        if n == 42:
            L = a.newlabel('L_ann0')
            a(f's_cmp_lg_u32 s{s_w}, 0'); a(f's_cbranch_scc1 {L}')
            announce(a, 16, also_conv=True)
            a.label(L); a.vm = []
    assert not wph
    st.mark(a, 3)
    for s in kcvt: a(s)
    VO = 24
    vfill = []
    for T in range(5):
        r = VO + 4*(T & 1)
        for u in range(2):
            for q in range(2): vfill.append(f'v_cvt_pk_bf16_f32 v{r + 2*u + q}, v{VA + 20*u + 4*T + 2*q}, v{VA + 20*u + 4*T + 2*q + 1}')
        vfill.append(f'ds_write_b128 v{E_V}, {vr(r,4)} offset:{1024*T}')
    PK = KA
    def mm(u):
        o = []
        for T, t in [(T, 2) for T in range(5)] + [(T, t) for T in range(5) for t in range(2)]:
            d = PK + 20*u + 4*T; w = WPH + 10*T + 4*t; k = KO + 12*u + 4*t
            if t < 2: o.append(f'v_mfma_f32_16x16x32_bf16 {vr(d,4)}, {vr(w,4)}, {vr(k,4)}, {vr(d,4)}')
            else: o.append(f'v_mfma_f32_16x16x16_bf16 {vr(d,4)}, {vr(w,2)}, {vr(k,2)}, 0')
        return o
    EP, EM, TT, PO = [112, 72], [132, 92], 16, 24
    def exps(u): return [s for i in range(20) for s in (f'v_exp_f32 v{EP[u]+i}, v{PK + 20*u + i}', f'v_exp_f32 v{EM[u]+i}, -v{PK + 20*u + i}')]
    def sums(u):
        sp, sm = TT + 4*u, TT + 4*u + 2
        a(f'v_pk_add_f32 {vr(sp,2)}, {vr(EP[u],2)}, {vr(EP[u]+2,2)}'); a(f'v_pk_add_f32 {vr(sm,2)}, {vr(EM[u],2)}, {vr(EM[u]+2,2)}')
        for i in range(4, 20, 2):
            a(f'v_pk_add_f32 {vr(sp,2)}, {vr(sp,2)}, {vr(EP[u]+i,2)}'); a(f'v_pk_add_f32 {vr(sm,2)}, {vr(sm,2)}, {vr(EM[u]+i,2)}')
        a(f'v_add_f32 v{sp}, v{sp}, v{sp+1}'); a(f'v_add_f32 v{sm}, v{sm}, v{sm+1}')
    m0 = mm(0)
    for s in m0[:2] + interleave(m0[2:], vfill): a(s)
    e0 = exps(0)
    for s in interleave(mm(1), e0[:16]) + e0[16:]: a(s)
    a.wait(vm=0)
    check_ann(a, E_DBG, E_DBG + 2, preloaded=True)
    for s in exps(1): a(s)
    sums(0); sums(1)
    a(f'v_max3_f32 v{TT+1}, v{TT}, v{TT+2}, v{TT+4}'); a(f'v_max_f32 v{TT+1}, v{TT+1}, v{TT+6}')
    a(f'v_cmp_lt_f32 vcc, 0x5d800000, v{TT+1}')
    Ls, Lb = a.newlabel('L_kslow'), a.newlabel('L_kback')
    a(f's_cbranch_vccnz {Ls}')
    a.label(Lb)
    def slow(a):
        a.label(Ls); a.forget()
        for u in range(2):
            x = PK + 20*u; mx, mn = TT + 1, TT + 3
            a(f'v_max3_f32 v{mx}, v{x}, v{x+1}, v{x+2}'); a(f'v_min3_f32 v{mn}, v{x}, v{x+1}, v{x+2}')
            for i in range(3, 19, 2):
                a(f'v_max3_f32 v{mx}, v{mx}, v{x+i}, v{x+i+1}'); a(f'v_min3_f32 v{mn}, v{mn}, v{x+i}, v{x+i+1}')
            a(f'v_max_f32 v{mx}, v{mx}, v{x+19}'); a(f'v_min_f32 v{mn}, v{mn}, v{x+19}')
            for i in range(20): a(f'v_sub_f32 v{EP[u]+i}, v{x+i}, v{mx}'); a(f'v_sub_f32 v{EM[u]+i}, v{mn}, v{x+i}')
            for i in range(20): a(f'v_exp_f32 v{EP[u]+i}, v{EP[u]+i}'); a(f'v_exp_f32 v{EM[u]+i}, v{EM[u]+i}')
        sums(0); sums(1)
        a(f's_branch {Lb}')
    a.deferred.append(slow)
    for k in range(4): a(f'v_rcp_f32 v{TT + 2*k}, v{TT + 2*k}')
    for u in range(2):
        sp, sm = TT + 4*u, TT + 4*u + 2
        src = [(EP[u] + i, sp) for i in range(0, 16, 2)] + [(EM[u] + i, sm) for i in range(0, 16, 2)] + [(EP[u] + 16, sp), (EP[u] + 18, sp), (EM[u] + 16, sm), (EM[u] + 18, sm)]
        for c in range(5):
            r = PO + 4*(c & 1)
            for q in range(4):
                e, s = src[4*c + q]
                a(f'v_pk_mul_f32 {vr(e,2)}, {vr(e,2)}, {vr(s,2)} op_sel_hi:[1,0]')
            for q in range(4):
                e, s = src[4*c + q]
                a(f'v_cvt_pk_bf16_f32 v{r+q}, v{e}, v{e+1}')
            a(f'ds_write_b128 v{E_P}, {vr(r,4)} offset:{16*80*u + 16*c}')
    a('v_mov_b32 v16, 0x3f803f80'); a('v_mov_b32 v17, 1')
    a.wait(lg=0)
    st.mark(a, 4)
    a('s_barrier')
    AFr, BFr, KVA = 32, 80, 112
    def rd(k):
        o = [f'ds_read_b128 {vr(BFr + 8*k, 4)}, v{E_B} offset:{5120*k}']
        for F in range(3):
            r = AFr + 12*k + 4*F
            for h in range(2):
                o.append(f'ds_read_b64_tr_b16 {vr(r + 2*h, 2)}, v{E_A if F < 2 else E_A2} offset:{(32*k + 16*h)*80 + (32*F if F < 2 else 0)}')
            if F == 0: o.append(f'ds_read_b128 {vr(BFr + 8*k + 4, 4)}, v{E_B4} offset:{5120*k}')
        return o
    def ml(k):
        o = []
        for dt in range(2):
            for F in range(3):
                d = KVA + 4*(3*dt + F)
                o.append(f'v_mfma_f32_16x16x32_bf16 {vr(d,4)}, {vr(AFr + 12*k + 4*F, 4)}, {vr(BFr + 8*k + 4*dt, 4)}, {vr(d,4) if k else 0}')
                if dt == 0 and F < 2:
                    o += [f'v_cndmask_b32 v{BFr + 8*k + 4 + q}, v16, v{BFr + 8*k + 4 + q}, s[48:49]' for q in (2*F, 2*F + 1)]
        return o
    for s in rd(0) + rd(1)[:4]: a(s)
    for s in interleave(ml(0), rd(1)[4:] + rd(2)[:4]): a(s)
    for s in interleave(ml(1), rd(2)[4:] + rd(3)[:4]): a(s)
    for s in interleave(ml(2), rd(3)[4:]): a(s)
    for s in ml(3): a(s)
    PB = 136
    def cv(dst, t): return [f'v_cvt_pk_bf16_f32 v{dst + q}, v{KVA + 4*t + 2*q}, v{KVA + 4*t + 2*q + 1}' for q in range(2)]
    def stores(fl):
        for x in cv(PB, 0) + cv(PB + 2, 1): a(x)
        a(f'global_store_dwordx4 v{E_O}, {vr(PB, 4)}, {sr(P["ws"],2)} {fl}')
        for x in cv(PB + 8, 2) + cv(PB + 4, 3) + cv(PB + 6, 4) + cv(PB + 10, 5): a(x)
        a('s_mov_b32 exec_lo, 0x00ff00ff'); a('s_mov_b32 exec_hi, 0x00ff00ff')
        a(f'global_store_dwordx4 v{E_M}, {vr(PB + 4, 4)}, {sr(P["ws"],2)} offset:1024 {fl}')
        a('s_mov_b32 exec_lo, -1'); a('s_mov_b32 exec_hi, 0')
        a(f'global_store_dwordx4 v{E_O}, {vr(PB + 8, 4)}, {sr(P["ws"],2)} offset:1536 {fl}')
        a('s_mov_b64 exec, 1')
        a.wait(vm=0)
        a(f'global_store_dword v{E_F}, v17, {sr(P["ws"],2)} {fl}')
        a('s_mov_b64 exec, -1')
    by_mode(a, stores)
    st.mark(a, 5)
    poll_flag(a, E_KF, 18, 16)
    st.mark(a, 6)
    KP = 32
    KD = env('KD', 5)
    for k in range(8 + KD):
        if k < 8:
            if k and k % 2 == 0: a(f'v_add_u32 v{E_KP}, 8192, v{E_KP}')
            a(f'global_load_dwordx4 {vr(KP + 4 + 4*k, 4)}, v{E_KP}, {sr(P["ws"],2)} offset:{256*(k % 2)} sc1')
        m = k - KD + 1
        if 0 <= m < 8: a(f'v_mfma_f32_16x16x32_bf16 {vr(KP,4)}, {vr(SEL + 4*(m % 2), 4)}, {vr(KP + 4 + 4*m, 4)}, {vr(KP,4) if m else 0}')
    a(f'v_cvt_pk_bf16_f32 v{KP}, v{KP}, v{KP+1}'); a(f'v_cvt_pk_bf16_f32 v{KP+1}, v{KP+2}, v{KP+3}')
    a(f'ds_write_b64 v{E_KS}, {vr(KP,2)}')
    a.wait(lg=0)
    a('s_barrier')
    st.mark(a, 7); st.mark(a, 1, 'tail')
    if env('WO1', 5) < 5:
        final.wo_addr(a, 12)
        final.wo_issue(a, S_PW, WOR[env('WO1', 5):], 12)
```

```python
from common import *

QXS, QWS = 45056, 10240
QXR, QWR = 0, 3*QXS
GATE = QWR + 2*QWS
Q_LDS = GATE + 4096

def q_producer(a, st, s_j, s_p0, s_rot, s_pw):
    SX, SW = 28, 32
    a('s_setprio 3')
    a('v_and_b32 v1, 63, v0')
    a('v_lshrrev_b32 v2, 3, v1'); a('v_mul_u32_u24 v2, 1280, v2')
    a('v_lshrrev_b32 v3, 4, v1'); a('v_and_b32 v4, 7, v1'); a('v_xor_b32 v3, v3, v4')
    a('v_lshl_add_u32 v10, v3, 4, v2')
    a(f's_and_b32 s45, s{s_pw}, 1'); a('s_lshl_b32 s45, s45, 6')
    a('v_xor_b32 v10, s45, v10'); a('v_xor_b32 v11, 64, v10')
    a(f's_mul_i32 s40, s{s_p0}, {32*1280}'); a(f's_mul_i32 s45, s{s_pw}, {88*1280}'); a('s_add_u32 s40, s40, s45')
    if env('QFAKE', 0): a('s_mov_b32 s40, 0x1000000')
    a(f's_mul_i32 s41, s{s_pw}, {11*1024}')
    a(f's_mul_i32 s42, s{s_pw}, 2560'); a(f's_add_u32 s42, s42, {QWR}')
    a(f's_mov_b32 s43, s{s_rot}'); a(f's_mov_b32 s44, s{s_rot}')
    a(f's_and_b32 s49, s{s_j}, 4'); a('s_lshl_b32 s49, s49, 9')
    a(f's_mul_i32 s46, s{s_pw}, {16*3840}'); a(f's_mul_i32 s47, s{s_j}, 160'); a('s_add_u32 s46, s46, s47')
    a('v_lshl_add_u32 v7, v1, 4, s46'); a('v_mul_u32_u24 v8, 6554, v1'); a('s_movk_i32 s47, 3840'); a('s_movk_i32 s48, -160')
    for i in range(3):
        if i: a(f'v_add_u32 v8, {64*6554}, v8'); a('v_add_u32 v7, 1024, v7')
        a('v_lshrrev_b32 v3, 16, v8'); a('v_lshrrev_b32 v5, 17, v8'); a('v_and_b32 v5, 4, v5'); a('v_xor_b32 v5, v5, v3')
        a(f'v_mad_i32_i24 v{12+i}, v3, s48, v7'); a(f'v_mad_u32_u24 v{12+i}, v5, s47, v{12+i}')
    a.wait(lg=0)
    srd(a, SX, P['u'], 2621440); srd(a, SW, P['wqkv'], 2457600)
    a('s_cmp_ge_u32 s54, 4'); a('s_cselect_b32 s47, 10, 11'); a(f's_add_u32 s47, s47, s{s_p0}'); a(f's_mul_i32 s{SX+2}, s47, {32*1280}')
    order = []
    def X(t, lo=0, hi=11):
        if lo == 0: a('s_lshl_b32 s45, s43, 7'); a('s_add_u32 s45, s45, s40')
        for i in range(lo, hi):
            a(f's_add_u32 s55, s41, {QXR + (t % 3)*QXS + 1024*i}'); a('s_xor_b32 m0, s55, s49')
            if i: a('s_add_u32 s45, s45, 10240')
            a(f'buffer_load_dwordx4 v{10 + (i & 1)}, {sr(SX,4)}, s45 offen lds'); order.append(t)
        if hi == 11: a('s_add_u32 s43, s43, 1'); a(f's_cmp_eq_u32 s43, {NST}'); a('s_cselect_b32 s43, 0, s43')
    def Wt(t):
        a(f's_mul_i32 s48, s44, {64*3840}')
        for i in range(3):
            a(f's_add_u32 m0, s42, {(t % 2)*QWS + 1024*i}')
            if i == 2: a('s_mov_b32 exec_hi, 0')
            a(f'buffer_load_dwordx4 v{12+i}, {sr(SW,4)}, s48 offen lds'); order.append(t)
        a('s_mov_b32 exec_hi, -1')
        a('s_add_u32 s44, s44, 1'); a(f's_cmp_eq_u32 s44, {NST}'); a('s_cselect_b32 s44, 0, s44')
    a.vm = []
    Wt(0); X(0)
    srd(a, 36, P['gate'], 1280)
    a('v_lshlrev_b32 v2, 4, v1'); a(f's_lshl_b32 s47, s{s_pw}, 10')
    a(f's_add_u32 m0, s47, {GATE}')
    a('buffer_load_dwordx4 v2, s[36:39], s47 offen lds'); order.append(0)
    QL = env('QL', 11)
    if env('QW1', 1): Wt(1)
    a('s_setprio 0')
    X(1, 0, QL)
    for s in range(NST):
        last = max(i for i, o in enumerate(order) if o <= s)
        st.mark(a, s + 1, 'pre')
        a.wait(vm=len(order) - 1 - last)
        st.mark(a, s + 1, 'post')
        a('s_barrier')
        st.mark(a, s + 1, 'bar')
        if s + 1 < NST:
            if s or not env('QW1', 1): Wt(s + 1)
            if QL < 11: X(s + 1, QL, 11)
        if s + 2 < NST: X(s + 2, 0, QL)
    a.vm = []

def q_pre(a, s_j, s_pw0):
    li, lg = 2, 3
    a('v_and_b32 v1, 63, v0'); a(f'v_and_b32 v{li}, 15, v0'); a(f'v_bfe_u32 v{lg}, v0, 4, 2')
    AX = 4
    a(f'v_lshrrev_b32 v16, 1, v{li}'); a(f'v_xor_b32 v16, v16, v{lg}'); a('v_lshlrev_b32 v16, 4, v16')
    a(f'v_lshl_add_u32 v16, v{li}, 7, v16'); a(f's_lshl_b32 s40, s{s_pw0}, 12'); a(f'v_add_u32 v{AX}, s40, v16'); a(f'v_xor_b32 v{AX+1}, 64, v{AX}')
    for s in (1, 2):
        for p in range(2): a(f'v_add_u32 v{AX + 2*s + p}, {s*QXS}, v{AX + p}')
    AP, AS = 10, 12
    a(f'v_lshrrev_b32 v16, 2, v{li}'); a(f'v_lshl_add_u32 v16, v{lg}, 3, v16'); a('v_mul_u32_u24 v16, 160, v16')
    a(f'v_and_b32 v17, 1, v{lg}'); a('v_mul_u32_u24 v17, 640, v17')
    a(f'v_and_b32 v18, 3, v{li}'); a('v_mul_u32_u24 v19, 40, v18'); a('v_lshlrev_b32 v18, 3, v18')
    a(f'v_add_u32 v16, {QWR}, v16'); a('v_add_u32 v20, v16, v17'); a('v_sub_u32 v21, v16, v17'); a('v_add_u32 v21, 640, v21')
    for h in range(2):
        a(f'v_add_u32 v{AP+h}, v{20+h}, v18'); a(f'v_add3_u32 v{AS+h}, v{20+h}, v19, 32')
    a('v_lshlrev_b32 v14, 2, v1')

def q_consumer(a, st, s_j, s_pg, npairs):
    NU = 2*npairs
    AX, AP, AS = 4, 10, 12
    QA = 32
    XF = 152
    WF = 168
    def rdx(n):
        ks, u = divmod(n, NU); s = ks >> 1
        return f'ds_read_b128 {vr(XF + 4*(n % 4), 4)}, v{AX + 2*(s % 3) + (ks & 1)} offset:{2048*u}'
    def rdw(ks):
        out = []
        for T in range(5):
            base, o = (AP, 40*T) if T < 4 else (AS, 0)
            o += (ks & 1)*32*160 + ((ks >> 1) % 2)*QWS
            r = WF + 20*(ks & 1) + 4*T
            out += [f'ds_read_b64_tr_b16 {vr(r,2)}, v{base} offset:{o}', f'ds_read_b64_tr_b16 {vr(r+2,2)}, v{base+1} offset:{o}']
        return out
    GU = 3 if npairs == 2 else 0
    GA, GX, GW, GAD = 112, 124, 136, 20
    if GU:
        a('s_lshl_b32 s42, s51, 12'); a(f'v_subrev_u32 v24, s42, v{AX}')
        for k in range(GU):
            a(f's_add_u32 s42, s41, {8*k}'); a('s_min_u32 s43, s42, 21'); a(f's_lshr_b32 s45, s{s_j}, 2'); a('s_xor_b32 s43, s43, s45'); a('s_lshl_b32 s43, s43, 11'); a(f'v_add_u32 v{GAD+k}, s43, v24')
        a(f'v_lshlrev_b32 v23, 4, v3'); a(f'v_add_u32 v23, {GATE}, v23'); a(f's_mov_b32 s44, s{S_ROT}')
    st.mark(a, 1)
    a('s_barrier')
    st.mark(a, 2)
    w0 = rdw(0)
    a(rdx(0))
    for s in w0: a(s)
    a(rdx(1))
    nx = 2
    NK = 2*NST
    for ks in range(NK - 2):
        fills = {u: [] for u in range(NU)}
        last = (ks + 1)*NU
        if ks & 1 == 0:
            w = rdw(ks + 1)
            for u in range(NU):
                fills[u].append(rdx(nx)); nx += 1
                k = -(-10 // (NU - 1))
                fills[u] += w[:k]; w = w[k:]
        else:
            for u in range(NU - 2):
                while nx < last and nx <= ks*NU + u + (2 if u < NU - 4 else 3): fills[u].append(rdx(nx)); nx += 1
            assert nx == last
            if ks + 1 < NK:
                w = rdw(ks + 1)
                fills[NU - 2] = ['BAR', rdx(nx)] + w[:5]; fills[NU - 1] = w[5:] + [rdx(nx + 1)]; nx += 2
        if ks == 3 and npairs == 3:
            L = a.newlabel('L_ann0')
            a(f's_cmp_lg_u32 s{S_WAVE}, 0'); a(f's_cbranch_scc1 {L}')
            announce(a, 16)
            a.label(L); a.vm = []
        gm = []
        if GU:
            sl = (ks >> 1) % 3
            pre = ['s_lshl_b32 s45, s44, 7', 'v_add_u32 v26, s45, v23'] if ks & 1 == 0 else ['s_add_u32 s44, s44, 1', f's_cmp_eq_u32 s44, {NST}', 's_cselect_b32 s44, 0, s44']
            pre.append(f'ds_read_b128 {vr(GW,4)}, v26 offset:{64*(ks & 1)}')
            for k in range(GU):
                pre.append(f'ds_read_b128 {vr(GX + 4*k, 4)}, v{GAD+k}')
                pre.append(f'v_xor_b32 v{GAD+k}, 64, v{GAD+k}')
                if ks & 1: pre.append(f'v_add_u32 v{GAD+k}, {QXS if sl < 2 else -2*QXS}, v{GAD+k}')
                gm.append(f'v_mfma_f32_16x16x32_bf16 {vr(GA + 4*k, 4)}, {vr(GW,4)}, {vr(GX + 4*k, 4)}, {vr(GA + 4*k, 4) if ks else 0}')
            fills[0] = fills[0] + pre
        if ks == NK - 5: fills[1].append(f'global_load_dword v16, v14, {sr(P["dbg"],2)} sc1')
        for u in range(NU):
            x = XF + 4*((ks*NU + u) % 4)
            f = fills[u]
            for T in range(5):
                d = QA + 20*u + 4*T
                a(f'v_mfma_f32_16x16x32_bf16 {vr(d,4)}, {vr(WF + 20*(ks & 1) + 4*T, 4)}, {vr(x,4)}, {vr(d,4) if ks else 0}')
                k = -(-len(f) // (5 - T))
                for s in f[:k]:
                    if s == 'BAR': a.wait(lg=0); a('s_barrier')
                    else: a(s)
                f = f[k:]
            if u == 1:
                for s in gm: a(s)
        if ks == NK - 4:
            a.wait(vm=0)
            check_ann(a, 14, 16, preloaded=True)
            a(f's_lshl_b32 s40, s{s_j}, 6'); a(f's_add_u32 s40, s40, s{s_pg}'); a('s_mul_i32 s40, s40, 5120'); a(f's_add_u32 s40, s40, {WS_Q + 2048}')
            a('v_lshl_add_u32 v18, v1, 4, s40'); a('v_mov_b32 v19, 1')
    def store(ins):
        G, D = a.newlabel('L_g'), a.newlabel('L_d')
        a(f's_cbranch_scc1 {G}'); a(ins + ' ' + os.environ.get('LFL', '')); a(f's_branch {D}'); a.label(G); a.raw('    s_nop 1'); a.raw(f'    {ins} sc1'); a.label(D)
    steps = [(NK - 2 + k, 2*p + u) for p in range(npairs) for k in range(2) for u in range(2)]
    base = (NK - 2)*NU
    def rdx2(i):
        ks, u = steps[i]
        return f'ds_read_b128 {vr(XF + 4*((base + i) % 4), 4)}, v{AX + 2*((ks >> 1) % 3) + (ks & 1)} offset:{2048*u}'
    OB = 208
    def outs(p):
        o = [] if p == 0 else ['v_add_u32 v18, 5120, v18']
        for T in range(5):
            r = OB + 4*((5*p + T) % 4)
            for u in range(2):
                d = QA + 20*(2*p + u) + 4*T
                o += [f'v_cvt_pk_bf16_f32 v{r + 2*u + q}, v{d + 2*q}, v{d + 2*q + 1}' for q in range(2)]
            o.append(('st', f'global_store_dwordx4 v18, {vr(r,4)}, {sr(P["ws"],2)} offset:{1024*T - 2048}'))
        return o
    def emit(x):
        if isinstance(x, tuple): store(x[1])
        else: a(x)
    w = rdw(NK - 1); pend = []
    gpre = []; gm = []
    if GU:
        a('s_lshl_b32 s45, s44, 7'); a('v_add_u32 v26, s45, v23')
        for k2 in range(2):
            gpre.append([f'ds_read_b128 {vr(GW,4)}, v26 offset:{64*k2}'] + [x for k in range(GU) for x in (f'ds_read_b128 {vr(GX + 4*k, 4)}, v{GAD+k}', f'v_xor_b32 v{GAD+k}, 64, v{GAD+k}')])
        gm = [f'v_mfma_f32_16x16x32_bf16 {vr(GA + 4*k, 4)}, {vr(GW,4)}, {vr(GX + 4*k, 4)}, {vr(GA + 4*k, 4)}' for k in range(GU)]
    a(f's_cmp_eq_u32 s{S_MODE}, 0')
    for i, (ks, u) in enumerate(steps):
        f = [rdx2(i + 2)] if i + 2 < len(steps) else []
        if i < 2: f += w[5*i:5*i + 5]
        if GU and i in (2, 4): f += gpre[i // 2 - 1]
        if i % 4 == 0 and i: pend = outs(i // 4 - 1)
        x = XF + 4*((base + i) % 4)
        for T in range(5):
            d = QA + 20*u + 4*T
            a(f'v_mfma_f32_16x16x32_bf16 {vr(d,4)}, {vr(WF + 20*(ks & 1) + 4*T, 4)}, {vr(x,4)}, {vr(d,4)}')
            k = -(-len(f) // (5 - T))
            for s in f[:k]: a(s)
            f = f[k:]
            if (i % 4 or T >= 2):
                for _ in range(2 if (5*i + T) % 2 else 1):
                    if pend: emit(pend.pop(0))
        if GU and i in (3, 5):
            for s in gm: a(s)
        if i % 4 == 3: assert not pend
    st.mark(a, 3)
    for x in outs(npairs - 1): emit(x)
    if GU:
        a('v_cmp_eq_u32 vcc, 1, v3'); a(f'v_cndmask_b32 v{GA}, v{GA}, v{GA+4}, vcc')
        a('v_cmp_eq_u32 vcc, 2, v3'); a(f'v_cndmask_b32 v{GA}, v{GA}, v{GA+8}, vcc')
        a(f'v_mul_f32 v{GA}, 0xbfb8aa3b, v{GA}'); a(f'v_exp_f32 v{GA}, v{GA}'); a(f'v_add_f32 v{GA}, 1.0, v{GA}')
        a('s_mov_b64 exec, s[46:47]')
        a(f'global_store_dword v25, v{GA}, {sr(P["ws"],2)} sc1')
    a('s_mov_b64 exec, 1')
    a.wait(vm=0)
    store(f'global_store_dword v15, v19, {sr(P["ws"],2)}')
    a('s_mov_b64 exec, -1')
    st.mark(a, 5)

def q_role(a, st, tail):
    s_j, s_wave = S_J, S_WAVE
    a(f's_sub_u32 s54, s{S_IDX}, 16')
    a('s_mul_i32 s50, s54, 11'); a('s_cmp_eq_u32 s54, 5'); a('s_subb_u32 s50, s50, 0')
    Lc, L2, L3 = a.newlabel('L_qcons'), a.newlabel('L_q2'), a.newlabel('L_q3')
    a(f's_cmp_lt_u32 s{s_wave}, 4'); a(f's_cbranch_scc1 {Lc}')
    lg0 = list(a.lg)
    q_producer(a, st, s_j, 50, S_ROT, S_PW)
    a(f's_branch {tail}')
    a.label(Lc); a.forget(); a.lg = lg0
    a(f's_mul_i32 s51, s{s_wave}, 3')
    a('s_cmp_ge_u32 s54, 4'); a('s_cselect_b32 s52, 2, 3')
    a(f's_cmp_gt_u32 s{s_wave}, s52'); a('s_subb_u32 s51, s51, 0')
    a('s_add_u32 s53, s50, s51')
    q_pre(a, s_j, 51)
    a(f's_lshl_b32 s40, s{s_j}, 9'); a('s_lshl_b32 s41, s54, 4'); a('s_add_u32 s40, s40, s41'); a(f's_add_u32 s40, s40, {WS_FL + 256}')
    a('v_add_u32 v16, s40, v14'); a('v_mov_b32 v17, 0')
    a(f's_lshl_b32 s41, s{s_wave}, 2'); a('s_add_u32 s40, s40, s41'); a('v_mov_b32 v15, s40')
    a('s_lshl_b32 s40, s50, 1'); a(f's_sub_u32 s41, s{s_j}, s40'); a('s_and_b32 s41, s41, 7')
    a('v_lshl_add_u32 v25, v3, 3, s41'); a('s_cmp_ge_u32 s54, 4'); a('s_cselect_b32 s42, 20, 22'); a('v_cmp_gt_u32 s[46:47], s42, v25')
    a('v_add_u32 v25, s40, v25'); a('v_lshlrev_b32 v25, 6, v25'); a('v_lshl_add_u32 v25, v2, 2, v25'); a(f'v_add_u32 v25, {WS_G}, v25')
    a.wait(lg=0)
    a(f's_cmp_lg_u32 s{s_wave}, 0'); a(f's_cbranch_scc1 {L3}')
    a('s_mov_b64 exec, 15')
    a(f'global_store_dword v16, v17, {sr(P["ws"],2)} sc1')
    a('s_mov_b64 exec, s[46:47]')
    a(f'global_store_dword v25, v17, {sr(P["ws"],2)} sc1')
    a('s_mov_b64 exec, -1')
    a.label(L3); a.vm = []
    a(f's_cmp_ge_u32 s{s_wave}, s52'); a(f's_cbranch_scc1 {L2}')
    q_consumer(a, st, s_j, 53, 3)
    a(f's_branch {tail}')
    a.label(L2); a.forget()
    q_consumer(a, st, s_j, 53, 2)
    a(f's_branch {tail}')
```

```python
import sys
from common import *
import conv, kv, qrole, final

def build(st):
    a = Asm()
    st.mark(a, 0)
    a('s_load_dwordx16 s[4:19], s[0:1], 0'); a('s_load_dwordx8 s[56:63], s[0:1], 64'); a('s_load_dwordx4 s[64:67], s[0:1], 96'); a('s_load_dwordx2 s[20:21], s[0:1], 112')
    a('s_cmp_ge_u32 s2, 256'); a('s_cbranch_scc1 L_end')
    a(f's_lshr_b32 s{S_IDX}, s2, 3')
    if env('PF_CODE', 1):
        a('s_getpc_b64 s[44:45]')
        a.label('L_pc')
        a(f's_lshl_b32 s43, s{S_IDX}, 11'); a('v_lshrrev_b32 v2, 5, v0'); a('v_lshl_add_u32 v2, v2, 7, s43')
        a(f'v_min_u32 v2, L_codeend - L_pc - 4, v2')
        a('global_load_dword v255, v2, s[44:45]'); a.vm = []
    a('v_lshrrev_b32 v1, 6, v0'); a(f'v_readfirstlane_b32 s{S_WAVE}, v1')
    a(f's_and_b32 s{S_J}, s2, 7')
    a(f's_getreg_b32 s{S_PAT}, hwreg(HW_REG_XCC_ID, 0, 4)'); a(f's_or_b32 s{S_PAT}, s{S_PAT}, 0x80'); a(f's_mul_i32 s{S_PAT}, s{S_PAT}, 0x01010101')
    a(f's_lshl_b32 s{S_RT}, s{S_J}, 2'); a(f's_lshr_b32 s40, s{S_IDX}, 3'); a(f's_add_u32 s{S_RT}, s{S_RT}, s40'); a(f's_and_b32 s{S_CT}, s{S_IDX}, 7')
    a(f's_add_u32 s40, s{S_IDX}, 1'); a('s_and_b32 s40, s40, 3'); a('s_mul_i32 s40, s40, 10240'); a(f's_add_u32 s{S_AI}, s40, {kv.PHI}')
    a(f's_and_b32 s{S_PW}, s{S_WAVE}, 3')
    def mod10(r):
        a(f's_mul_i32 s40, s{r}, 26'); a('s_lshr_b32 s40, s40, 8'); a('s_mul_i32 s40, s40, 10'); a(f's_sub_u32 s{r}, s{r}, s40')
    ROT = env('ROT', 20)
    r = S_ROT
    lg0 = list(a.lg)
    a(f's_cmp_ge_u32 s{S_IDX}, 22'); a('s_cbranch_scc1 L_conv')
    a(f's_cmp_ge_u32 s{S_IDX}, 16'); a('s_cbranch_scc1 L_q')
    a(f's_cmp_lt_u32 s{S_WAVE}, 4'); a('s_cbranch_scc1 L_kvc')
    if ROT == 0:
        a(f's_mul_i32 s{r}, s{S_IDX}, 93'); a(f's_lshr_b32 s{r}, s{r}, 8'); a(f's_lshl_b32 s{r}, s{r}, 1'); a(f's_add_u32 s{r}, s{r}, s{S_J}'); mod10(r)
    elif ROT == 20:
        a(f's_lshr_b32 s{r}, s{S_IDX}, 1'); a(f's_add_u32 s{r}, s{r}, s{S_J}'); a(f's_and_b32 s{r}, s{r}, 7'); a(f's_mul_i32 s{r}, s{r}, 5'); a(f's_lshr_b32 s{r}, s{r}, 2')
    else:
        a(f's_mul_i32 s{r}, s{S_J}, 5'); a(f's_lshr_b32 s{r}, s{r}, 2')
    kv.kv_producer(a, st)
    a.label('L_floader'); a.forget()
    final.f_loader(a, st)
    st.dump(a, 20, 2, S_WAVE, n=11)
    a.label('L_end'); a('s_endpgm')
    a.label('L_kvc'); a.forget(); a.lg = list(lg0)
    kv.kv_consumer(a, st)
    a.label('L_fcompute'); a.forget()
    final.f_compute(a, st)
    st.dump(a, 20, 2, S_WAVE, n=11)
    a('s_endpgm')
    a.label('L_q'); a.forget(); a.lg = list(lg0)
    if ROT == 0:
        a(f's_lshl_b32 s{r}, s{S_IDX}, 1'); a(f's_add_u32 s{r}, s{r}, s{S_J}'); a(f's_sub_u32 s{r}, s{r}, 27'); mod10(r)
    elif ROT == 20:
        a(f's_mul_i32 s{r}, s{S_IDX}, 11'); a(f's_sub_u32 s{r}, s{r}, {176 - env("QOFF", 5)}'); a(f's_lshr_b32 s{r}, s{r}, 3')
        a(f's_add_u32 s{r}, s{r}, s{S_J}'); a(f's_and_b32 s{r}, s{r}, 7'); a(f's_mul_i32 s{r}, s{r}, 5'); a(f's_lshr_b32 s{r}, s{r}, 2')
    else:
        a(f's_mul_i32 s{r}, s{S_J}, 5'); a(f's_lshr_b32 s{r}, s{r}, 2'); a(f's_add_u32 s{r}, s{r}, {ROT-1}'); mod10(r)
    qrole.q_role(a, st, 'L_tail')
    a.label('L_conv'); a.forget(); a.lg = list(lg0)
    a(f's_sub_u32 s{r}, s{S_IDX}, 22'); a(f's_lshl_b32 s54, s{r}, 3'); a(f's_add_u32 s54, s54, s{S_J}')
    a(f's_add_u32 s{r}, s{r}, {10 - env("S0", 2)}'); mod10(r)
    a(f's_lshl_b32 s{r}, s{r}, 2'); a(f's_add_u32 s{r}, s{r}, 3'); a(f's_mul_i32 s{r}, s{r}, 52'); a(f's_lshr_b32 s{r}, s{r}, 8')
    a(f's_sub_u32 s{r}, s{r}, s{S_J}')
    conv.conv_role(a, st, 54, r, S_WAVE)
    a(f's_cmp_lt_u32 s{S_WAVE}, 4'); a('s_cbranch_scc1 L_fcompute')
    a('s_barrier')
    st.mark(a, 6); st.mark(a, 7)
    a(f's_cmp_lg_u32 s{S_WAVE}, 7'); a('s_cbranch_scc1 L_floader')
    a('v_mov_b32 v251, 1'); a('s_mov_b64 exec, 0xff')
    a(f'global_atomic_add v250, v251, {sr(P["ws"],2)} sc1')
    a('s_mov_b64 exec, -1')
    a('s_branch L_floader')
    a.label('L_tail'); a.forget()
    a('s_barrier')
    st.mark(a, 6)
    a(f's_cmp_lt_u32 s{S_WAVE}, 4'); a('s_cbranch_scc1 L_fcompute')
    final.wo_addr(a); final.wo_issue(a, S_PW, range(5))
    a.wait(vm=0); a('s_barrier')
    st.mark(a, 7)
    a('s_branch L_floader')
    a.label('L_codeend')
    for f in a.deferred: f(a)
    return a

if __name__ == '__main__':
    stamps = len(sys.argv) > 2 and sys.argv[2] == '1'
    a = build(Stamps(stamps))
    if env('ALIGN', 1): print('align', align8(a))
    n = NAME + '_kernel'
    ref = open('cdna_kernels/' + NAME + '.s.ref').read()
    head = ref[:ref.index('; @launch')]
    if len(sys.argv) > 3: s = header([(n, 256, 512, 163840)])
    else: s = head + '; @launch grid=(256,1,1) block=(512,1,1) lds=163840\n.amdgcn_target "amdgcn-amd-amdhsa--gfx950"\n.text\n'
    s += kbegin(n) + a.text() + kdesc(n, 256)
    open(sys.argv[1], 'w').write(s)
    print('nops', a.nops, 'instructions', len(a.ins))
```

```python
from asmgen import *
import os
NAME = 'gated_mix__ssm_conv_s4d__linear_kernel_hedgehog__prompt'
WS_A   = 0x000000
WS_Q   = 0x400000
WS_KV  = 0x800000
WS_O   = 0xC00000
WS_G   = 0xF80000
WS_FL  = 0xF90000
WS_FA  = 0xFA0000
WS_FO  = 0xFB0000
WS_STAMP = 0x1000000
LOG2E = 0x3fb8aa3b
INV2PI = 0x3e22f983
NST = 10
def env(k, d): return int(os.environ.get(k, d))

P = dict(u=4, logA=6, Aim=8, Cre=10, Cim=12, logdt=14, Dskip=16, ws=20, wqkv=56, wphi=58, wo=60, gate=62, out=64, dbg=66)
S_J, S_IDX, S_WAVE, S_ROT, S_PW = 22, 23, 24, 25, 26
S_MODE, S_RT, S_CT, S_AI, S_PAT = 68, 69, 70, 71, 72

def ids(a):
    a(f's_lshr_b32 s{S_WAVE}, s{S_WAVE}, 6'); a(f's_and_b32 s{S_J}, s2, 7'); a(f's_lshr_b32 s{S_IDX}, s2, 3'); a(f's_and_b32 s{S_PW}, s{S_WAVE}, 3')

def rest_loads(a):
    a('s_load_dwordx16 s[4:19], s[0:1], 0'); a('s_load_dwordx8 s[56:63], s[0:1], 64'); a('s_load_dwordx4 s[64:67], s[0:1], 96'); a('s_load_dwordx2 s[20:21], s[0:1], 112')

def rest_setup(a, code=False):
    a(f's_getreg_b32 s{S_PAT}, hwreg(HW_REG_XCC_ID, 0, 4)'); a(f's_or_b32 s{S_PAT}, s{S_PAT}, 0x80'); a(f's_mul_i32 s{S_PAT}, s{S_PAT}, 0x01010101')
    a(f's_lshl_b32 s{S_RT}, s{S_J}, 2'); a(f's_lshr_b32 s73, s{S_IDX}, 3'); a(f's_add_u32 s{S_RT}, s{S_RT}, s73'); a(f's_and_b32 s{S_CT}, s{S_IDX}, 7')
    a(f's_add_u32 s73, s{S_IDX}, 1'); a('s_and_b32 s73, s73, 3'); a('s_mul_i32 s73, s73, 10240'); a(f's_add_u32 s{S_AI}, s73, 102400')

def srd_tail(a, r, nbytes):
    a(f's_mov_b32 s{r+2}, {nbytes}'); a(f's_mov_b32 s{r+3}, 0x20000')

def srd(a, r, ptr, nbytes):
    a(f's_mov_b32 s{r}, s{ptr}'); a(f's_and_b32 s{r+1}, s{ptr+1}, 0xffff'); a(f's_mov_b32 s{r+2}, {nbytes}'); a(f's_mov_b32 s{r+3}, 0x20000')

def poll(a, vaddr, vdst, base, check, sleep=0, zero=None):
    L, D = a.newlabel('L_poll'), a.newlabel('L_polled')
    a('s_mov_b32 s27, 0')
    a.label(L)
    if zero is None: a(f'global_load_dword v{vdst}, v{vaddr}, {sr(base,2)} sc1')
    else: a(f'global_atomic_add v{vdst}, v{vaddr}, v{zero}, {sr(base,2)} sc0 sc1')
    a.wait(vm=0)
    for s in check: a(s)
    a(f's_cbranch_vccz {D}')
    if sleep: a(f's_sleep {sleep}')
    a('s_add_u32 s27, s27, 1'); a('s_cmp_lt_u32 s27, 0x40000'); a(f's_cbranch_scc1 {L}')
    a.label(D)

def poll_flag(a, vaddr, vdst, lanes=64, sleep=0):
    if lanes < 64: a(f's_mov_b64 exec, {(1 << lanes) - 1}') if lanes < 32 else a('s_mov_b32 exec_hi, 0')
    poll(a, vaddr, vdst, P['ws'], [f'v_cmp_ne_u32 vcc, 1, v{vdst}'], sleep)
    if lanes < 64: a('s_mov_b64 exec, -1')

def announce(a, vt, also_conv=False):
    if env('NOANN', 0): return
    a.wait(vm=0)
    a(f's_lshl_b32 s40, s{S_J}, 5'); a(f's_add_u32 s40, s40, s{S_IDX}'); a(f's_and_b32 s42, s{S_PAT}, 0xff')
    a(f'v_mul_u32_u24 v{vt}, 22, v1'); a(f'v_add_u32 v{vt}, s40, v{vt}')
    a(f'v_lshlrev_b32 v{vt+1}, 3, v{vt}'); a(f'v_lshlrev_b32 v{vt+1}, v{vt+1}, s42'); a(f'v_and_b32 v{vt}, 0xfc, v{vt}')
    if also_conv: a(f's_cmp_lt_u32 s{S_IDX}, 10'); a('s_cselect_b64 exec, 3, 1')
    else: a('s_mov_b64 exec, 1')
    a(f'global_atomic_or v{vt}, v{vt+1}, {sr(P["dbg"],2)} sc1')
    a('s_mov_b64 exec, -1')

def check_ann(a, vaddr, vdst, preloaded=False):
    if env('NOANN', 0):
        a.wait(vm=0); a(f's_mov_b32 s{S_MODE}, 1'); return
    chk = [f'v_and_b32 v{vdst+1}, 0x80808080, v{vdst}', f'v_cmp_ne_u32 vcc, 0x80808080, v{vdst+1}']
    D = a.newlabel('L_ann')
    if preloaded:
        for s in chk: a(s)
        a(f's_cbranch_vccz {D}')
    vm = list(a.vm)
    poll(a, vaddr, vdst, P['dbg'], chk)
    a.label(D)
    if preloaded: a.vm = vm
    a(f'v_cmp_eq_u32 vcc, s{S_PAT}, v{vdst}')
    a(f's_lshl_b32 s40, s{S_J}, 3'); a('s_lshr_b64 s[40:41], vcc, s40'); a('s_and_b32 s40, s40, 0xff')
    a('s_cmp_eq_u32 s40, 0xff'); a(f's_cselect_b32 s{S_MODE}, 1, 0')

def by_mode(a, body):
    G, D = a.newlabel('L_glob'), a.newlabel('L_mode')
    a(f's_cmp_eq_u32 s{S_MODE}, 0'); a(f's_cbranch_scc1 {G}')
    lg, vm = list(a.lg), list(a.vm)
    body(os.environ.get('LFL', ''))
    a(f's_branch {D}')
    a.label(G); a.lg, a.vm = lg, vm
    a('s_nop 7')
    body('sc1')
    a.label(D)

class Stamps:
    def __init__(self, on): self.on = on; self.n = 0
    def mark(self, a, k=None, tag='main'):
        if not self.on: return
        if k != 0 and tag != os.environ.get('DIAG', 'main'): return
        if k is None: k = self.n
        assert k < 12
        a.raw(f'    {"s_memtime" if os.environ.get("CYC") else "s_memrealtime"} s[{76+2*k}:{77+2*k}]')
        a.lg.append(('smem', [('s', 76+2*k), ('s', 77+2*k)]))
        self.n = max(self.n, k + 1)
    def dump(self, a, s_ws, s_wg, s_wave, kidx=0, n=None):
        if not self.on: return
        a.wait(vm=0)
        a.raw('    s_memrealtime s[98:99]')
        a.wait(lg=0)
        n = 12
        a(f's_lshl_b32 s75, s{s_wg}, 3')
        a(f's_add_u32 s75, s75, s{s_wave}')
        a(f's_lshl_b32 s75, s75, 6')
        a(f's_add_u32 s75, s75, {WS_STAMP + kidx*0x40000}')
        a('v_mov_b32 v1, s75')
        for k in range(n or self.n):
            a(f'v_mov_b32 v2, s{76+2*k}')
            a(f'global_store_dword v1, v2, s[{s_ws}:{s_ws+1}] offset:{4*k}')
```

```python
from common import *
import final

STG, TAB = 0, 8704
CW = 12800
UW = 4608
UB = 8 * CW
RS = 544
DA, DB, T2, T3 = TAB, TAB + 1216, TAB + 2368, TAB + 2880
BANDS = UB + 8 * UW
CONV_LDS = BANDS + 8192

def cmul(z, x, y, t):
    return [f'v_pk_mul_f32 {vr(t,2)}, {vr(x,2)}, {vr(y,2)} op_sel:[0,0] op_sel_hi:[0,1]',
            f'v_pk_fma_f32 {vr(z,2)}, {vr(x,2)}, {vr(y,2)}, {vr(t,2)} op_sel:[1,1,0] op_sel_hi:[1,0,1] neg_lo:[1,0,0]']

def touch_early(a, s_wave):
    n = 0
    a(f's_sub_u32 s50, s{S_IDX}, 22'); a('s_lshl_b32 s51, s50, 3'); a(f's_add_u32 s51, s51, s{s_wave}')
    if env('PF_W', 1):
        a('v_and_b32 v6, 7, v1'); a('v_mul_u32_u24 v6, 3840, v6')
        a('v_lshrrev_b32 v7, 3, v1'); a('v_min_u32 v7, 5, v7')
        if env('PF_W', 1) == 2: a('v_max_u32 v7, 2, v7')
        a('v_lshrrev_b32 v16, 1, v7'); a('v_mul_u32_u24 v16, 1024, v16'); a('v_lshl_add_u32 v7, v7, 7, v16')
        a(f's_mul_i32 s43, s51, {8*3840}'); a(f's_mul_i32 s44, s{S_J}, 160'); a('s_andn2_b32 s44, s44, 127'); a('s_add_u32 s43, s43, s44')
        a('v_add3_u32 v6, v6, v7, s43')
        a('s_mov_b32 exec_hi, 0xffff')
        a(f'global_load_dword v252, v6, {sr(P["wqkv"],2)}'); n += 1
        a('s_mov_b32 exec_hi, -1')
    if env('PF_WO8', 2) == 1:
        a(f's_mul_i32 s43, s{S_J}, 80'); a('s_add_u32 s43, s43, s51'); a('s_mul_i32 s43, s43, 1280'); a('v_lshl_add_u32 v6, v1, 7, s43')
        a('s_mov_b64 exec, 0x3ff')
        a(f'global_load_dword v253, v6, {sr(P["wo"],2)}'); n += 1
        a('s_mov_b64 exec, -1')
    return n

def touch_mid(a, s_wave):
    for rep in range(2):
        if rep: a('s_sub_u32 s51, s51, 4')
        if env('PF_WO', 0):
            a(f's_mul_i32 s43, s{S_J}, 10'); a('s_add_u32 s43, s43, s51'); a('s_cmp_ge_u32 s43, 80'); a('s_cselect_b32 s44, 80, 0'); a('s_sub_u32 s43, s43, s44')
            a(f's_mul_i32 s43, s43, {80*128}'); a('v_lshl_add_u32 v246, v1, 7, s43')
            a(f'global_load_dword v255, v246, {sr(P["wo"],2)}')
            a('v_and_b32 v247, 15, v1'); a('v_lshlrev_b32 v247, 7, v247'); a('v_add_u32 v247, 8192, v247'); a('v_add_u32 v247, s43, v247')
            a('s_mov_b64 exec, 0xffff')
            a(f'global_load_dword v252, v247, {sr(P["wo"],2)}')
            a('s_mov_b64 exec, -1')
        if env('PF_MID', 1):
            a(f's_mul_i32 s43, s{S_J}, {64*5120}'); a('s_lshl_b32 s44, s51, 12'); a('s_add_u32 s43, s43, s44'); a(f's_add_u32 s43, s43, {WS_Q}')
            a('v_lshl_add_u32 v246, v1, 7, s43')
            a('s_mul_i32 s44, s51, 13'); a('s_sub_u32 s44, s44, 32'); a('v_add_u32 v247, s44, v1'); a('v_min_u32 v247, 1023, v247')
            a(f's_lshl_b32 s43, s{S_J}, 17'); a(f's_add_u32 s43, s43, {WS_KV}'); a('v_lshl_add_u32 v247, v247, 7, s43')
            a('v_cmp_gt_u32 vcc, 32, v1'); a('v_cndmask_b32 v246, v247, v246, vcc')
            a('s_mov_b32 exec_hi, 0x1fff')
            a(f'global_load_dword v254, v246, {sr(P["ws"],2)} sc1')
            a('s_mov_b32 exec_hi, -1')
        a.vm = []
    if env('PF_MID', 1):
        a(f's_lshl_b32 s43, s{S_J}, 9'); a(f's_add_u32 s43, s43, {WS_FL}'); a('v_and_b32 v247, 3, v1'); a('v_lshl_add_u32 v247, v247, 7, s43')
        a('s_mov_b64 exec, 15')
        a(f'global_load_dword v253, v247, {sr(P["ws"],2)} sc1')
        a('s_mov_b64 exec, -1')
    a.vm = []

def conv_role(a, st, s_cg, s_rot, s_wave, rot_setup, store_flags='sc1'):
    lane, li, lg = 1, 2, 3
    sT, sT2, sLB = 52, 53, 55
    a(f'v_and_b32 v{lane}, 63, v0')
    a(f's_lshl_b32 s{sT}, s{s_cg}, 3')
    a(f's_add_u32 s{sT}, s{sT}, s{s_wave}')
    a(f's_lshl_b32 s{sT2}, s{sT}, 8')
    a(f'v_lshl_add_u32 v4, v{lane}, 2, s{sT2}')
    a(f's_lshl_b32 s{sT2}, s{sT}, 1')
    a(f'v_mov_b32 v5, s{sT2}')
    pl = dict(dt=8, logA=9, Aim=10, Cre=11, Cim=12, Dsk=13)
    a.wait(lg=0)
    a(f'global_load_ushort v{pl["dt"]}, v5, {sr(P["logdt"],2)}')
    a(f'global_load_dword v{pl["logA"]}, v4, {sr(P["logA"],2)}')
    a(f'global_load_dword v{pl["Aim"]}, v4, {sr(P["Aim"],2)}')
    a(f'global_load_dword v{pl["Cre"]}, v4, {sr(P["Cre"],2)}')
    a(f'global_load_dword v{pl["Cim"]}, v4, {sr(P["Cim"],2)}')
    a(f'global_load_ushort v{pl["Dsk"]}, v5, {sr(P["Dskip"],2)}')
    nearly = touch_early(a, s_wave)
    rot_setup()
    a(f's_mul_i32 s43, s{s_cg}, 205'); a('s_lshr_b32 s43, s43, 11'); a('s_lshl_b32 s43, s43, 10'); a(f's_add_u32 s43, s43, {WS_FA}'); a(f'v_lshl_add_u32 v250, v{lane}, 7, s43')
    UL = 184
    a(f's_sub_u32 s{sT2}, s{s_rot}, s{s_wave}')
    a(f's_and_b32 s46, s{sT2}, 7'); a('s_xor_b32 s49, s46, 4')
    a(f's_lshl_b32 s47, s{s_cg}, 4')
    a(f'v_mul_u32_u24 v15, {4*1280}, v{lane}'); a('v_add_u32 v15, s47, v15')
    a(f's_mul_i32 s{sT2}, s49, {256*1280}'); a(f'v_add_u32 v249, s{sT2}, v15')
    a(f's_mul_i32 s{sT2}, s46, {256*1280}'); a(f'v_add_u32 v15, s{sT2}, v15')
    def usite(k):
        L = a.newlabel('L_us')
        a(f's_cmp_lg_u32 s{s_wave}, {k & 3}'); a(f's_cbranch_scc1 {L}')
        for j in range(4): a.raw(f'    global_load_dwordx4 {vr(UL + 16*(k >> 2) + 4*j, 4)}, v{249 if k >> 2 else 15}, {sr(P["u"],2)} offset:{1280*j}')
        a.label(L)
    rest_setup(a)
    a(f'v_and_b32 v{li}, 15, v0')
    a(f'v_bfe_u32 v{lg}, v0, 4, 2')
    a(f's_mul_i32 s{sLB}, s{s_wave}, {CW}')
    Z = 16
    for k in range(4): a(f'v_mov_b32 v{Z+k}, 0')
    a(f'v_lshl_add_u32 v6, v{lane}, 4, s{sLB}')
    a('s_barrier')
    usite(0)
    for k in range(4): a(f'ds_write_b128 v6, {vr(Z,4)} offset:{TAB + 1024*k}')
    a(f's_mul_i32 s42, s{s_wave}, {UW}'); a(f's_add_u32 s42, s42, {UB}'); a(f'v_lshl_add_u32 v6, v{lane}, 3, s42'); a(f'ds_write_b64 v6, {vr(Z,2)}')
    a(f's_lshl_b32 s43, s{s_wave}, 2'); a('s_lshr_b32 s44, 0x233579, s43'); a('s_lshr_b32 s45, 0xcb3654, s43')
    a('s_and_b32 s44, s44, 15'); a('s_and_b32 s45, s45, 15'); a('s_bfm_b32 s45, s44, s45')
    a(f's_cmp_eq_u32 s{s_wave}, 5'); a('s_mov_b32 s44, 0xffff'); a('s_cselect_b32 s44, s44, 0x3f80')
    a(f'v_lshlrev_b32 v7, 3, v{lg}'); a(f'v_lshlrev_b32 v20, v{li}, s45'); a('v_bfe_u32 v20, v20, v7, 8'); a('v_lshl_or_b32 v20, v20, 15, v20')
    for q in range(4):
        if q: a('v_lshrrev_b32 v20, 2, v20')
        a(f'v_and_b32 v{24+q}, 0x10001, v20'); a(f'v_mul_u32_u24 v{24+q}, s44, v{24+q}')
    A_BAND = 248
    a(f'v_lshlrev_b32 v{A_BAND}, 4, v{lane}'); a(f'v_add_u32 v{A_BAND}, {BANDS}, v{A_BAND}')
    a(f's_lshl_b32 s43, s{s_wave}, 10'); a(f'v_add_u32 v21, s43, v{A_BAND}'); a('ds_write_b128 v21, v[24:27]')
    usite(1)
    AW, A_R, A_R1, A_R2, A_R0, A_R3, A_D, A_D16, A_T2, A_T3, A_U, A_O, A_TR = 228, 232, 233, 234, 235, 236, 237, 238, 239, 240, 241, 242, 243
    a(f'v_lshl_add_u32 v{AW}, v{lane}, 3, s{sLB}')
    for k in range(1, 4): a(f'v_add_u32 v{AW+k}, {4*RS*k}, v{AW}')
    a(f'v_mul_u32_u24 v{A_R}, {RS}, v{li}'); a(f'v_lshl_add_u32 v{A_R}, v{lg}, 4, v{A_R}'); a(f'v_add_u32 v{A_R}, s{sLB}, v{A_R}')
    a(f's_add_u32 s48, s{sLB}, 2048')
    a(f'v_lshlrev_b32 v20, 8, v{lg}'); a(f'v_lshl_add_u32 v20, v{li}, 4, v20'); a(f'v_sub_u32 v{A_R1}, s48, v20')
    a(f'v_lshlrev_b32 v20, 7, v{lg}'); a(f'v_lshl_add_u32 v20, v{li}, 2, v20'); a(f'v_sub_u32 v{A_R2}, s48, v20')
    a(f'v_and_b32 v22, 1, v{lg}'); a(f'v_lshrrev_b32 v23, 1, v{lg}')
    a('v_lshlrev_b32 v20, 3, v22'); a(f'v_lshl_add_u32 v20, v{li}, 4, v20'); a('v_lshl_add_u32 v20, v23, 8, v20'); a(f'v_sub_u32 v{A_R0}, s48, v20')
    a(f'v_lshlrev_b32 v21, 5, v{li}'); a(f'v_lshl_add_u32 v20, v{lg}, 3, v21'); a(f'v_sub_u32 v{A_R3}, s48, v20')
    usite(2)
    a(f'v_lshl_add_u32 v21, v{lg}, 4, v21'); a(f'v_add_u32 v{A_U}, s42, v21')
    a(f'v_and_b32 v20, 1, v{li}'); a(f'v_mul_u32_u24 v20, {DB - DA + 2}, v20'); a(f'v_lshlrev_b32 v21, 1, v{li}'); a('v_sub_u32 v20, v20, v21')
    a(f'v_lshl_add_u32 v20, v{lg}, 4, v20'); a(f'v_add_u32 v20, s{sLB}, v20')
    a(f'v_add_u32 v{A_D16}, {DA + 2*(526 - 512)}, v20')
    a(f'v_add_u32 v{A_D}, {DA + 2*(526 - 480)}, v20')
    a(f'v_lshlrev_b32 v20, 2, v{lg}'); a(f'v_sub_u32 v20, v20, v{li}')
    a(f'v_lshl_add_u32 v{A_T2}, v20, 3, s48')
    a(f's_add_u32 s43, s{sLB}, {T3 + 2*(254 - 224)}'); a(f'v_lshl_add_u32 v{A_T3}, v20, 2, s43')
    a(f's_lshl_b32 s{sT2}, s{sT}, 12')
    if WS_A: a(f's_add_u32 s{sT2}, s{sT2}, {WS_A}')
    a(f'v_lshl_add_u32 v20, v22, 9, s{sT2}'); a('v_lshl_add_u32 v20, v23, 6, v20')
    a(f'v_lshrrev_b32 v21, 2, v{li}'); a('v_lshl_add_u32 v20, v21, 7, v20'); a(f'v_and_b32 v21, 3, v{li}'); a(f'v_lshl_add_u32 v{A_O}, v21, 4, v20')
    for h, sb in enumerate((46, 49)):
        a(f's_lshl_b32 s47, s{sb}, 9'); a(f's_add_u32 s47, s47, {UB + 512}'); a(f'v_lshl_add_u32 v{A_TR + h}, v{lane}, 3, s47')
    NE = env('NE', 4)
    if NE == 4: usite(3)
    st.mark(a, 1)
    L1 = a.newlabel('L_pw')
    a(f's_cmp_lt_u32 s{s_wave}, {NE}'); a(f's_cbranch_scc1 {L1}')
    a.raw(f'    s_waitcnt vmcnt({nearly})'); a.label(L1); a.raw(f'    s_waitcnt vmcnt({nearly + 4})'); a.vm = []
    st.mark(a, 2)
    if NE == 3: usite(3)
    EB = os.environ.get('EB', 'frag')
    def early_barrier(pos):
        if pos != EB: return
        L = a.newlabel('L_eb')
        a(f's_cmp_lt_u32 s{s_wave}, 4'); a(f's_cbranch_scc1 {L}')
        if env('PF_WO8', 2) == 2:
            a(f's_mul_i32 s43, s{S_J}, 80'); a('s_add_u32 s43, s43, s51'); a(f's_add_u32 s43, s43, s{s_wave}'); a('s_sub_u32 s43, s43, 8'); a('s_mul_i32 s43, s43, 1280')
            a('v_lshl_add_u32 v246, v1, 7, s43')
            a('s_mov_b64 exec, 0xfffff')
            a(f'global_load_dword v253, v246, {sr(P["wo"],2)}'); a.vm = []
            a('s_mov_b64 exec, -1')
        a.raw('    s_barrier')
        touch_mid(a, s_wave)
        if env('EBP', 0): a('s_setprio 2')
        a.label(L)
    a('s_mov_b32 s43, %#x' % LOG2E)
    a('s_mov_b32 s44, 0xffff0000')
    a('s_mov_b32 s45, %#x' % INV2PI)
    dt = 14
    a(f'v_lshlrev_b32 v{dt}, 16, v{pl["dt"]}')
    a(f'v_mul_f32 v{dt}, s43, v{dt}')
    a(f'v_exp_f32 v{dt}, v{dt}')
    al = [16, 17]; be = [18, 19]
    a(f'v_lshlrev_b32 v{al[0]}, 16, v{pl["logA"]}')
    a(f'v_and_b32 v{al[1]}, s44, v{pl["logA"]}')
    a(f'v_cvt_pk_bf16_f32 v{dt}, v{dt}, v{dt}')
    for n in range(2): a(f'v_mul_f32 v{al[n]}, s43, v{al[n]}')
    a(f'v_and_b32 v{dt}, s44, v{dt}')
    for n in range(2): a(f'v_exp_f32 v{al[n]}, v{al[n]}')
    a(f'v_lshlrev_b32 v{be[0]}, 16, v{pl["Aim"]}')
    a(f'v_and_b32 v{be[1]}, s44, v{pl["Aim"]}')
    a(f'v_cvt_pk_bf16_f32 v{al[1]}, v{al[0]}, v{al[1]}')
    for n in range(2): a(f'v_mul_f32 v{be[n]}, v{dt}, v{be[n]}')
    a(f'v_lshlrev_b32 v{al[0]}, 16, v{al[1]}')
    a(f'v_and_b32 v{al[1]}, s44, v{al[1]}')
    for n in range(2): a(f'v_mul_f32 v{be[n]}, s45, v{be[n]}')
    for n in range(2): a(f'v_mul_f32 v{al[n]}, v{dt}, v{al[n]}')
    for n in range(2): a(f'v_mul_f32 v{al[n]}, s43, v{al[n]}')
    w1 = [20, 22]; W = [24, 26]; C = [28, 30]; w8 = [32, 34]; tmp = [36, 38]
    a('s_mov_b32 s47, 0x43000000')
    def direct(dst, scale):
        for n in range(2):
            if scale:
                a(f'v_mul_f32 v{40+n}, s47, v{al[n]}'); a(f'v_mul_f32 v{42+n}, s47, v{be[n]}')
        ms = [40, 41] if scale else al; ps = [42, 43] if scale else be
        for n in range(2): a(f'v_fract_f32 v{42+n}, v{ps[n]}')
        for n in range(2): a(f'v_exp_f32 v{40+n}, -v{ms[n]}')
        for n in range(2):
            a(f'v_cos_f32 v{dst[n]}, v{42+n}'); a(f'v_sin_f32 v{dst[n]+1}, v{42+n}')
        for n in range(2):
            a(f'v_mul_f32 v{dst[n]}, v{40+n}, v{dst[n]}'); a(f'v_mul_f32 v{dst[n]+1}, v{40+n}, v{dst[n]+1}')
    direct(w1, False)
    def cm2(z, x, y):
        i0 = cmul(z[0], x[0], y[0], tmp[0]); i1 = cmul(z[1], x[1], y[1], tmp[1])
        for s in (i0[0], i1[0], i0[1], i1[1]): a(s)
    cm2(w8, w1, w1); cm2(w8, w8, w8); cm2(w8, w8, w8)
    direct(W, True)
    a(f'v_add_f32 v{dt}, v{dt}, v{dt}')
    a(f'v_lshlrev_b32 v{C[0]}, 16, v{pl["Cre"]}'); a(f'v_and_b32 v{C[1]}, s44, v{pl["Cre"]}')
    a(f'v_lshlrev_b32 v{C[0]+1}, 16, v{pl["Cim"]}'); a(f'v_and_b32 v{C[1]+1}, s44, v{pl["Cim"]}')
    for n in range(2):
        a(f'v_mul_f32 v{C[n]}, v{dt}, v{C[n]}'); a(f'v_mul_f32 v{C[n]+1}, v{dt}, v{C[n]+1}')
    a.wait(lg=0)
    US = [int(c) for c in os.environ.get('US', '8,20,32,44').split(',')]
    pkn = [0]; pend = {}; nrow = [0]
    def put(row, x, conj=False, const=None, single=False):
        key = row >> 1
        if key not in pend: pend[key] = (40 if pkn[0] % 3 == 0 else (44 if pkn[0] % 3 == 1 else 4), set()); pkn[0] += 1
        r, have = pend[key]
        for n in range(2):
            d = r + 2*(row & 1) + n
            if const is not None: a(f'v_mov_b32 v{d}, {const}')
            else: a(f'v_cvt_pk_bf16_f32 v{d}, v{x[n]}, {"-" if conj else ""}v{x[n]+1}')
        have.add(row)
        if single:
            a(f'ds_write_b64 v{AW + (row >> 2)}, {vr(r + 2*(row & 1), 2)} offset:{(row & 3)*RS}'); del pend[key]
        elif len(have) == 2:
            o = (row & 2)*RS // 8
            a(f'ds_write2_b64 v{AW + (row >> 2)}, {vr(r,2)}, {vr(r+2,2)} offset0:{o} offset1:{o + RS//8}'); del pend[key]
        nrow[0] += 1
        if nrow[0] in US: usite(4 + US.index(nrow[0]))
    def cx(i): return [48 + 4*i, 50 + 4*i]
    F2, F1 = 88, [120, 152, 48]
    KT = [216, 220, 224]
    def tile(F):
        assert not pend
        for t in range(8): a(f'ds_read_b128 {vr(F+4*t,4)}, v{A_R} offset:{STG + 64*t}')
    def tile_mfma(k, swap=False):
        x, y = (F2, F1[k]) if swap else (F1[k], F2)
        return [f'v_mfma_f32_16x16x32_bf16 {vr(KT[k],4)}, {vr(x+4*t,4)}, {vr(y+4*t,4)}, {vr(KT[k],4) if t else 0}' for t in range(8)]
    put(0, None, const='0x3f80'); put(1, w8, True)
    w16 = cx(0); cm2(w16, w8, w8); put(2, w16, True)
    ev, od = cx(1), cx(2)
    cm2(od, w8, w16); put(3, od, True); cm2(ev, w16, w16); put(4, ev, True)
    for j in range(5, 16):
        x = od if j & 1 else ev
        cm2(x, x, w16); put(j, x, True)
    tile(F2)
    t0 = [cx(i) for i in range(8)]
    put(0, C)
    prev = C
    for i in range(8):
        cm2(t0[i], prev, W); put(8 + i, t0[i])
        if i < 7:
            nx = cx(8 + (i & 1)); cm2(nx, prev, w1); put(i + 1, nx); prev = nx
    tile(F1[0])
    early_barrier('t1')
    e = [t0[0], t0[2], t0[4], t0[6]]
    for k in range(4): cm2(e[k], e[k], W); put(k, e[k])
    for k in range(4): cm2(e[k], e[k], W); put(4 + k, e[k])
    p512, pa, pb = e[0], e[2], e[1]
    cm2(p512, p512, W); cm2(pa, pa, W); cm2(pb, p512, w8)
    for k in range(4):
        if k: cm2(pa, pa, W); cm2(pb, pb, W)
        put(8 + 2*k, pa); put(9 + 2*k, pb)
    tile(F1[1])
    early_barrier('t2')
    W2 = e[3]; cm2(W2, W, W); cm2(pa, pb, W); cm2(pb, pb, W2)
    put(8, p512, single=True); put(0, pa); put(1, pb)
    for i in range(2, 8):
        x = pb if i & 1 else pa
        cm2(x, x, W2); put(i, x)
    tile(F1[2])
    st.mark(a, 3)
    early_barrier('tab')
    for s in interleave(tile_mfma(1), tile_mfma(0)): a(s)
    for s in tile_mfma(2, swap=True): a(s)
    k0, k1, k2 = KT
    a(f'v_lshlrev_b32 v{pl["Dsk"]}, 16, v{pl["Dsk"]}')
    a(f'v_cvt_pk_bf16_f32 v16, v{k1+3}, v{k1+2}')
    a(f'v_cvt_pk_bf16_f32 v17, v{k1+2}, v{k1+2}')
    a(f'v_cvt_pk_bf16_f32 v18, v{k1+1}, v{k1}')
    a(f'v_cvt_pk_bf16_f32 v19, v{k1}, v{k1}')
    a(f'v_cvt_pk_bf16_f32 v20, v{k1+2}, v{k1+1}')
    a('v_mov_b32 v21, v19')
    a('s_mov_b64 exec, 1')
    a(f'v_add_f32 v{k0}, v{k0}, v{pl["Dsk"]}')
    a('s_mov_b32 exec_lo, -1')
    a(f'ds_write_b128 v{A_R1}, {vr(16,4)} offset:{DA - 2048 + 2*(542-256-6)}')
    a(f'ds_write_b16 v{A_R1}, v16 offset:{DB - 2048 + 2*(543-256-6)}')
    a(f'ds_write_b32 v{A_R1}, v17 offset:{DB - 2048 + 2*(543-256-5)}')
    a(f'ds_write_b64 v{A_R1}, v[20:21] offset:{DB - 2048 + 2*(543-256-3)}')
    a(f'ds_write_b16 v{A_R1}, v19 offset:{DB - 2048 + 2*(543-256+1)}')
    a(f'v_readlane_b32 s47, v16, 63')
    a('s_not_b64 exec, exec')
    a(f'ds_write_b32 v{A_R2}, v18 offset:{T2 - 2048 + 2*(320-130+128)}')
    a(f'ds_write_b32 v{A_R2}, v16 offset:{T2 - 2048 + 2*(320-162+128)}')
    a('s_mov_b64 exec, -1')
    a('s_pack_ll_b32_b16 s47, s47, s47')
    a(f'v_cvt_pk_bf16_f32 v22, v{k0+3}, v{k0+2}')
    a(f'v_cvt_pk_bf16_f32 v23, v{k0+1}, v{k0}')
    a(f'v_cvt_pk_bf16_f32 v24, v{k0+2}, v{k0+1}')
    a(f'ds_write_b64 v{A_R0}, {vr(22,2)} offset:{DB - 2048 + 2*(543-3)}')
    a(f'ds_write_b16 v{A_R0}, v22 offset:{DA - 2048 + 2*(542-3)}')
    a(f'ds_write_b32 v{A_R0}, v24 offset:{DA - 2048 + 2*(542-2)}')
    a(f'ds_write_b16_d16_hi v{A_R0}, v23 offset:{DA - 2048 + 2*542}')
    a(f'v_cvt_pk_bf16_f32 v26, v{k2+3}, v{k2+2}')
    a(f'v_cvt_pk_bf16_f32 v27, v{k2+1}, v{k2}')
    a(f'v_cvt_pk_bf16_f32 v28, v{k2}, v{k2}')
    a('v_mov_b32 v29, v28')
    a('s_mov_b32 exec_lo, 0x00ff00ff'); a('s_mov_b32 exec_hi, 0x00ff00ff')
    a(f'ds_write_b64 v{A_R3}, {vr(26,2)} offset:{T3 - 2048 + 2*124}')
    a('s_mov_b64 exec, 0x100')
    a(f'ds_write_b64 v{A_R3}, {vr(28,2)} offset:{DA - 1792 + 2*28}')
    a(f'ds_write_b16 v{A_R3}, v28 offset:{DB - 1792 + 2*29}')
    a(f'ds_write_b32 v{A_R3}, v28 offset:{DB - 1792 + 2*30}')
    a(f'ds_write_b16 v{A_R3}, v28 offset:{DB - 1792 + 2*32}')
    a('s_mov_b64 exec, -1')
    early_barrier('frag')
    final.wo_addr(a, 232)
    AF = 48
    K2 = 116
    K3 = 140
    D = 156
    UF = 188
    WT = 16
    WF = [4, 8, 12]
    OUT = 40
    BAND = 208
    breg = {k: BAND + 4*i for i, k in enumerate(('w9', 'w7', 'w5', 'w3a', 'w3b', 'bd'))}
    def rdA(k):
        if k == 16: return [f'ds_read2_b32 {vr(AF+64,2)}, v{A_D16} offset0:0 offset1:1', f'ds_read2_b32 {vr(AF+66,2)}, v{A_D16} offset0:2 offset1:3']
        o = 16*(15 - k)
        return [f'ds_read2_b32 {vr(AF+4*k,2)}, v{A_D} offset0:{o} offset1:{o+1}', f'ds_read2_b32 {vr(AF+4*k+2,2)}, v{A_D} offset0:{o+2} offset1:{o+3}']
    for k in (0, 8, 16, 1, 9, 2, 10, 3, 11, 4, 12, 5, 13, 6, 14, 7, 15):
        for s in rdA(k): a(s)
    for dl in (2, 3, 4):
        for h in range(2):
            r = K2 + 4*((dl-2)*2 + h); o = T2 - 2048 + 2*(316 - 64*dl + 8*h)
            a(f'ds_read_b64 {vr(r,2)}, v{A_T2} offset:{o}'); a(f'ds_read_b64 {vr(r+2,2)}, v{A_T2} offset:{o+8}')
    for dl in (4, 5, 6, 7):
        r = K3 + 4*(dl-4); o = 16*(7 - dl)
        a(f'ds_read2_b32 {vr(r,2)}, v{A_T3} offset0:{o} offset1:{o+1}'); a(f'ds_read2_b32 {vr(r+2,2)}, v{A_T3} offset0:{o+2} offset1:{o+3}')
    early_barrier('end')
    Lt = a.newlabel('L_tr')
    a(f's_cmp_ge_u32 s{s_wave}, 4'); a(f's_cbranch_scc1 {Lt}')
    lgs = list(a.lg)
    a('s_mov_b32 s43, 0x05040100'); a('s_mov_b32 s45, 0x07060302')
    for h in range(2):
        st.mark(a, 1 + 2*h, 'uw')
        a.raw(f'    s_waitcnt vmcnt({4 - 4*h})')
        st.mark(a, 2 + 2*h, 'uw')
        for ch in range(8):
            r = 16 + 2*(ch & 3); sel = 's45' if ch & 1 else 's43'; q = UL + 16*h + (ch >> 1)
            a(f'v_perm_b32 v{r}, v{q+4}, v{q}, {sel}')
            a(f'v_perm_b32 v{r+1}, v{q+12}, v{q+8}, {sel}')
            a(f'ds_write_b64 v{A_TR + h}, {vr(r,2)} offset:{ch*UW}')
    a.wait(lg=0)
    a('s_barrier')
    a.label(Lt); a.lg = lgs
    if env('EBP', 0): a('s_setprio 0')
    st.mark(a, 4)
    for i, k in enumerate(('w5', 'w9', 'w3a', 'w3b', 'w7', 'bd')): a(f'ds_read_b128 {vr(breg[k],4)}, v{A_BAND} offset:{256*(breg[k] - BAND)}')
    bdfix = [f'v_and_b32 v{breg["bd"]+q}, s47, v{breg["bd"]+q}' for q in range(4)]
    seq = []
    for m in range(8):
        if m <= 5: seq.append((m, -1))
        seq += [(m, b) for b in range(8)]
    NR = 5
    slot = {f: UF + 4*(i % NR) for i, f in enumerate(seq)}
    issued = [0]
    def fetch(upto):
        while issued[0] <= min(upto, len(seq) - 1):
            m, b = seq[issued[0]]
            off = 256*m - 24 if b < 0 else 256*m - 16 - 32*b
            a(f'ds_read_b128 {vr(slot[(m,b)],4)}, v{A_U} offset:{512 + 2*off}')
            issued[0] += 1
    touched = set()
    def acc(n, A, B):
        a(f'v_mfma_f32_16x16x32_bf16 {vr(D+4*n,4)}, {vr(A,4)}, {vr(B,4)}, {vr(D+4*n,4) if n in touched else 0}')
        touched.add(n)
    def wt(i, U, band): a(f'v_mfma_f32_16x16x32_bf16 {vr(WT+4*i,4)}, {vr(U,4)}, {vr(breg[band],4)}, 0')
    fetch(NR - 2)
    srd(a, 28, P['wo'], 819200)
    a(f's_mul_i32 s45, s{s_wave}, {80*1280}')
    dma = []
    for i in range(13):
        d = [f's_add_u32 m0, s{sLB}, {1024*i}']
        if i in (5, 10): d.append(f's_add_u32 s45, s45, {32*1280}')
        if i == 12: d.append('s_mov_b32 exec_hi, 0')
        d.append(f'buffer_load_dwordx4 v{232 + i % 5}, s[28:31], s45 offen lds')
        if i == 12: d.append('s_mov_b32 exec_hi, -1')
        dma.append(d)
    pend_out = []
    for m in range(8):
        fill = list(pend_out); pend_out = []
        if m <= 5:
            i = seq.index((m, -1)); fetch(i + NR - 2)
            U = slot[(m, -1)]
            wt(0, U, 'w5')
            if m <= 3: wt(4, U, 'w9')
            fetch(i + NR - 1)
            U = slot[(m, 0)]
            wt(1, U, 'w3a'); wt(2, U, 'w5'); wt(3, U, 'w3b')
            if m <= 3: wt(5, U, 'w7')
            if m == 0:
                for s in bdfix: a(s)
            cv = []
            for h in range(2):
                for jj in range(2):
                    j = 2*h + jj
                    cv.append(f'v_cvt_pk_bf16_f32 v{WF[h]+2*jj}, v{WT+j}, v{WT+4+j}')
                    cv.append(f'v_cvt_pk_bf16_f32 v{WF[h]+2*jj+1}, v{WT+8+j}, v{WT+12+j}')
            if m <= 3:
                for j in range(4): cv.append(f'v_cvt_pk_bf16_f32 v{WF[2]+j}, v{WT+16+j}, v{WT+20+j}')
            fill = fill + cv
        for b in range(8):
            i = seq.index((m, b)); fetch(i + NR - 2)
            U = slot[(m, b)]
            acc(m, AF + 4*b, U)
            if b >= 2 or m > 5:
                for _ in range(2):
                    if fill: a(fill.pop(0))
            if m + 1 < 8: acc(m + 1, AF + 4*(8 + b), U)
            if b >= 2 or m > 5:
                for _ in range(2):
                    if fill: a(fill.pop(0))
            if m >= 1 and b in (1, 4, 6) and dma:
                for s in dma.pop(0): a(s)
            if b == 0:
                if m + 2 < 8: acc(m + 2, AF + 64, U)
                if m + 4 < 8: acc(m + 4, breg['bd'], U)
        assert not fill, fill
        if m <= 5:
            for dl in (2, 3, 4):
                if m + dl < 8:
                    for h in range(2): acc(m + dl, WF[h], K2 + 4*((dl-2)*2 + h))
        if m <= 3:
            for dl in range(4, 8 - m): acc(m + dl, WF[2], K3 + 4*(dl - 4))
        if m & 1:
            o = OUT + 4*((m >> 1) & 1); d0 = D + 4*(m - 1); d1 = D + 4*m
            pend_out = [f'v_cvt_pk_bf16_f32 v{o}, v{d0}, v{d0+1}', f'v_cvt_pk_bf16_f32 v{o+1}, v{d0+2}, v{d0+3}',
                        f'v_cvt_pk_bf16_f32 v{o+2}, v{d1}, v{d1+1}', f'v_cvt_pk_bf16_f32 v{o+3}, v{d1+2}, v{d1+3}',
                        f'v_permlane16_swap_b32 v{o}, v{o+2}', f'v_permlane16_swap_b32 v{o+1}, v{o+3}',
                        f'global_store_dwordx4 v{A_O}, {vr(o,4)}, {sr(P["ws"],2)} offset:{512*(m-1)} {store_flags}']
    assert not dma
    for s in pend_out: a(s)
    st.mark(a, 5)
    a(f'v_lshlrev_b32 v4, 2, v{lane}')
    check_ann(a, 4, 6)
```

```python
from common import *

OFL = os.environ.get('OFL', '')
WOI = 0
XCH = 143360

def wo_addr(a, R=12):
    a(f's_mul_i32 s46, s{S_CT}, 160'); a('s_movk_i32 s45, 1120')
    a('v_lshl_add_u32 v4, v1, 4, s46'); a('v_mul_u32_u24 v5, 6554, v1')
    for i in range(5):
        if i: a(f'v_add_u32 v5, {64*6554}, v5'); a('v_add_u32 v4, 1024, v4')
        a('v_lshrrev_b32 v6, 16, v5'); a(f'v_mad_u32_u24 v{R+i}, v6, s45, v4')

def wo_issue(a, s_i, rounds, R=12, SW=28):
    if not rounds: return
    srd(a, SW, P['wo'], 819200)
    a(f's_mul_i32 s44, s{s_i}, 5120')
    for g in rounds:
        a(f's_mul_i32 s45, s{s_i}, {32*1280}'); a(f's_add_u32 s45, s45, {g*4*32*1280}')
        for i in range(5):
            a(f's_add_u32 m0, s44, {WOI + g*4*5120 + 1024*i}')
            a(f'buffer_load_dwordx4 v{R+i}, {sr(SW,4)}, s45 offen lds')

PHI = 102400
def ga_base(a, s_w, dst):
    a(f's_lshr_b32 s{dst}, s{s_w}, 1'); a(f's_add_u32 s{dst}, s{dst}, s{S_IDX}'); a(f's_add_u32 s{dst}, s{dst}, 2'); a(f's_and_b32 s{dst}, s{dst}, 3')
    a(f's_lshl_b32 s{dst}, s{dst}, 1'); a(f's_and_b32 s39, s{s_w}, 1'); a(f's_add_u32 s{dst}, s{dst}, s39'); a(f's_mul_i32 s{dst}, s{dst}, 5120'); a(f's_add_u32 s{dst}, s{dst}, {PHI}')

def f_loader(a, st):
    SA = 32
    li, lg = 2, 3
    srd(a, SA, P['ws'], WS_A + 2621440)
    a(f'v_and_b32 v{li}, 15, v0'); a(f'v_bfe_u32 v{lg}, v0, 4, 2')
    a(f's_and_b32 s40, s{S_PW}, 1'); a(f's_lshr_b32 s41, s{S_PW}, 1'); a('s_lshl_b32 s43, s40, 1'); a('s_add_u32 s43, s43, s41')
    a(f's_lshl_b32 s45, s{S_CT}, 3'); a(f's_add_u32 s45, s45, s{S_J}'); a('s_lshl_b32 s45, s45, 7'); a(f's_add_u32 s45, s45, {WS_FA}'); a('v_mov_b32 v4, s45'); a('v_mov_b32 v13, 0')
    a(f's_lshl_b32 s44, s{S_RT}, 2'); a('s_add_u32 s44, s44, s43'); a('s_lshl_b32 s45, s44, 6'); a(f's_add_u32 s47, s45, {WS_G}'); a(f'v_lshl_add_u32 v10, v{li}, 2, s47')
    a('v_lshrrev_b32 v6, 1, v1'); a('v_lshlrev_b32 v6, 12, v6'); a('v_and_b32 v7, 1, v1'); a('v_lshl_add_u32 v6, v7, 6, v6')
    a(f's_mul_i32 s45, s{S_CT}, {80*4096}'); a(f's_lshl_b32 s44, s{S_RT}, 7'); a('s_add_u32 s45, s45, s44'); a('s_lshl_b32 s44, s43, 4'); a('s_add_u32 s45, s45, s44')
    if WS_A: a(f's_add_u32 s45, s45, {WS_A}')
    a(f's_mul_i32 s44, s{S_PW}, 2560'); a(f's_add_u32 s44, s44, s{S_AI}')
    a(f'v_mul_u32_u24 v7, 640, v{lg}'); a(f'v_lshl_add_u32 v7, v{li}, 3, v7'); a('v_add_u32 v7, s44, v7')
    ga_base(a, S_PW, 46); a('v_lshl_add_u32 v8, v1, 4, s46'); a('v_lshl_add_u32 v9, v1, 2, s44')
    a('s_mov_b64 exec, 1')
    poll(a, 4, 5, P['ws'], ['v_cmp_ne_u32 vcc, 10, v5'], env('SLPA', 4), zero=13)
    a('s_mov_b64 exec, -1')
    st.mark(a, 9)
    for i in range(3):
        a(f's_add_u32 m0, s44, {1024*i}')
        if i == 2: a('s_mov_b32 exec_hi, 0')
        a(f'buffer_load_dwordx4 v6, {sr(SA,4)}, s45 offen sc1 lds')
        if i < 2: a(f's_add_u32 s45, s45, {32*4096}')
    a('s_mov_b32 exec_hi, -1')
    if env('PF_A', 0):
        L = a.newlabel('L_pfa')
        a(f's_cmp_lt_u32 s{S_IDX}, 16'); a(f's_cbranch_scc1 {L}')
        a(f's_mul_i32 s46, s{S_PW}, {20*4096}'); a('s_add_u32 s45, s45, s46'); a(f's_sub_u32 s45, s45, {64*4096 + 256}')
        a('v_lshl_add_u32 v11, v1, 12, s45'); a('s_sub_u32 s46, s47, 512'); a('v_writelane_b32 v11, s46, 20')
        a('s_mov_b64 exec, 0x1fffff')
        a(f'global_load_dword v12, v11, {sr(P["ws"],2)} sc1')
        a('s_mov_b64 exec, -1')
        a.label(L)
    poll(a, 10, 20, P['ws'], ['v_cmp_eq_u32 vcc, 0, v20'])
    a('v_rcp_f32 v20, v20'); a('s_mov_b32 s45, 0xffff0000'); a('v_sub_f32 v21, 1.0, v20')
    st.mark(a, 10)
    AF, GA = 24, 36
    for T in range(5): a(f'ds_read_b64_tr_b16 {vr(AF + 2*T, 2)}, v7 offset:{128*T}')
    for k in range(10):
        a(f'v_lshlrev_b32 v{GA + 2*k}, 16, v{AF + k}'); a(f'v_and_b32 v{GA + 2*k + 1}, s45, v{AF + k}')
        a(f'v_mul_f32 v{GA + 2*k}, v20, v{GA + 2*k}'); a(f'v_mul_f32 v{GA + 2*k + 1}, v20, v{GA + 2*k + 1}')
        if k & 1: a(f'ds_write_b128 v8, {vr(GA + 2*k - 2, 4)} offset:{512*(k - 1)}')
    a('ds_write_b32 v9, v21')
    a.wait(lg=0)
    a('s_barrier')

def f_compute(a, st):
    li, lg = 2, 3
    s_w = S_WAVE
    OF = 112
    a('v_and_b32 v1, 63, v0'); a(f'v_and_b32 v{li}, 15, v0'); a(f'v_bfe_u32 v{lg}, v0, 4, 2')
    a(f's_and_b32 s40, s{s_w}, 1'); a(f's_lshr_b32 s41, s{s_w}, 1')
    a(f's_lshl_b32 s42, s{S_RT}, 1'); a('s_add_u32 s42, s42, s40'); a('s_lshl_b32 s42, s42, 1'); a('s_add_u32 s42, s42, s41')
    a(f's_mul_i32 s42, s42, {16*1280}'); a(f's_add_u32 s42, s42, {WS_O}')
    a('v_lshl_add_u32 v14, v1, 4, s42')
    a(f'v_mul_u32_u24 v15, 1280, v{lg}'); a(f'v_lshl_add_u32 v15, v{li}, 4, v15'); a('v_add_u32 v15, s42, v15')
    a('s_lshl_b32 s43, s40, 1'); a('s_add_u32 s43, s43, s41')
    a(f's_lshl_b32 s44, s{S_RT}, 2'); a('s_add_u32 s44, s44, s43')
    a(f's_lshl_b32 s45, s{S_RT}, 2'); a(f's_add_u32 s45, s45, s{s_w}'); a('s_lshl_b32 s45, s45, 7'); a(f's_add_u32 s45, s45, {WS_FO}')
    a('v_mov_b32 v17, s45'); a('v_mov_b32 v19, 0')
    a(f'v_lshrrev_b32 v8, 2, v{li}'); a(f'v_and_b32 v9, 3, v{li}'); a('v_mul_u32_u24 v10, 40, v9')
    a(f's_mul_i32 s45, s41, {320*160}')
    a(f'v_lshl_add_u32 v11, v{lg}, 2, v8'); a('v_mul_u32_u24 v11, 160, v11'); a('v_add3_u32 v4, v11, v10, s45')
    a(f'v_mul_u32_u24 v11, 20, v{lg}'); a('v_add_u32 v11, v11, v8'); a('v_mul_u32_u24 v12, 160, v11'); a('v_add3_u32 v5, v12, v10, s45')
    ga_base(a, s_w, 46); a('v_lshl_add_u32 v6, v1, 4, s46')
    a(f's_mul_i32 s45, s{s_w}, 2560'); a(f's_add_u32 s45, s45, s{S_AI}'); a('v_lshl_add_u32 v16, v1, 2, s45')
    a(f's_mul_i32 s45, s{s_w}, 5120'); a(f's_add_u32 s45, s45, {XCH}'); a('v_lshl_add_u32 v7, v1, 4, s45')
    a(f's_xor_b32 s47, s{s_w}, 2'); a('s_mul_i32 s47, s47, 5120'); a(f's_add_u32 s47, s47, {XCH}'); a('v_lshl_add_u32 v8, v1, 4, s47')
    a(f'v_mul_u32_u24 v9, 176, v{li}'); a(f'v_mul_u32_u24 v10, 40, v{lg}'); a('v_add3_u32 v9, v9, v10, s47')
    a(f's_mul_i32 s45, s44, {16*1280}'); a(f's_mul_i32 s46, s{S_CT}, 160'); a('s_add_u32 s45, s45, s46'); a('s_movk_i32 s46, 1120')
    a('v_mul_u32_u24 v10, 6554, v1')
    for i in range(3):
        if i: a(f'v_add_u32 v10, {64*6554}, v10'); a('s_add_u32 s45, s45, 1024')
        a('v_lshrrev_b32 v11, 16, v10'); a(f'v_lshl_add_u32 v{248+i}, v11, 4, v8')
        a('v_lshl_add_u32 v12, v1, 4, s45'); a(f'v_mad_u32_u24 v{252+i}, v11, s46, v12')
    ACC = [200, 24]
    WF = 64; NW = 10
    SO = 32; AK = 192
    srd(a, SO, P['ws'], WS_G)
    def rdw(n):
        ks, T = divmod(n, 5); r = WF + 4*(n % NW); h, k = divmod(ks, 5)
        if k < 4: b0 = b1 = AK + 2*h + (k >> 1); o0 = (k & 1)*6400; o1 = o0 + 3200
        else: b0, b1, o0, o1 = AK + 4 + 2*h, AK + 5 + 2*h, 0, 0
        return [f'ds_read_b64_tr_b16 {vr(r,2)}, v{b0} offset:{o0 + 8*T}', f'ds_read_b64_tr_b16 {vr(r+2,2)}, v{b1} offset:{o1 + 8*T}']
    def loads(h):
        o = []
        for p in range(2):
            o += [f'buffer_load_dwordx4 {vr(OF + 40*h + 16*p + 4*i, 4)}, v14, {sr(SO,4)}, s{48 + 2*h + p} offen offset:{1280*i} sc1' for i in range(4)]
        o += [f'buffer_load_dwordx4 {vr(OF + 40*h + 32 + 4*p, 4)}, v15, {sr(SO,4)}, s{48 + 2*h + p} offen offset:1024 sc1' for p in range(2)]
        return o
    repoll = ['s_mov_b64 exec, 1', f'global_atomic_add v18, v17, v19, {sr(P["ws"],2)} sc0 sc1', 's_mov_b64 exec, -1']
    a('v_add_u32 v5, 2560, v5')
    a(f's_and_b32 s47, s{S_CT}, 2'); a(f's_and_b32 s53, s{S_CT}, 1')
    a.wait(vm=0); st.mark(a, 2, 'tail'); a('s_barrier')
    st.mark(a, 3, 'tail'); st.mark(a, 4, 'hop')
    a('s_mov_b64 exec, 1')
    chk = ['v_readfirstlane_b32 s52, v18', 's_lshr_b32 s45, s52, 16', 's_and_b32 s52, s52, s45', 's_and_b32 s52, s52, 0x0404']
    chk += ['s_cmp_eq_u32 s52, 0'] if env('NRDY', 2) == 2 else ['s_cmp_lg_u32 s52, 0x0404']
    poll(a, 17, 18, P['ws'], chk + ['s_cselect_b64 vcc, 1, 0'], env('SLP', 0), zero=19)
    a(repoll[2])
    st.mark(a, 8); st.mark(a, 4, 'tail'); st.mark(a, 5, 'hop')
    a('s_lshr_b32 s45, s52, 10'); a('s_cmp_eq_u32 s52, 0x0404'); a('s_cselect_b32 s45, s53, s45'); a('s_or_b32 s45, s45, s47')
    for p in range(4):
        if p: a(f's_xor_b32 s45, s45, {2 if p & 1 else 3}')
        a(f's_mul_i32 s{48+p}, s45, 5120'); a('s_mul_i32 s46, s45, 12800')
        if p < 2:
            for x in loads(0)[4*p:4*p + 4]: a(x)
        if p == 0:
            L = a.newlabel('L_cp')
            a('s_cmp_eq_u32 s52, 0x0404'); a(f's_cbranch_scc1 {L}')
            for x in repoll: a.raw('    ' + x)
            a.label(L)
        if p == 1:
            for x in loads(0)[8:]: a(x)
        a(f'v_add_u32 v{AK+p}, s46, v4'); a(f'v_add_u32 v{AK+4+p}, s46, v5')
    PD = NW - 2
    for n in range(PD):
        for x in rdw(n): a(x)
    def swap(ks):
        x = OF + 8*ks
        a(f'v_swap_b32 v{x+2}, v{x+4}'); a(f'v_swap_b32 v{x+3}, v{x+5}')
    st.mark(a, 5, 'tail')
    swap(0)
    st.mark(a, 6, 'tail'); st.mark(a, 6, 'hop')
    RX, GA, O = 112, 132, 152
    seq = [(n, u) for n in range(40) for u in range(2)] + [(n, 1) for n in range(40, 50)] + [(n, 0) for n in range(40, 50)]
    fill = {}
    def at(i, *ins): fill.setdefault(i, []).extend(ins)
    for n in range(PD, 50):
        r = rdw(n); i = 2*(n - PD)
        at(i, r[0]); at(i + 1, r[1])
    for ks in range(8):
        if ks != 4: at(10*ks + 7, ('swap', ks + 1))
    at(79, ('swap', 9))
    LS = env('LS', 2)
    at(7, 'CP0')
    for k in range(10): at(8 + LS*k, ('ld', k))
    CP = env('CP', 33); assert CP > 8 + LS*9
    at(CP, 'CP1'); at(49, 'CP2', ('swap', 5))
    for T in range(5):
        g = ACC[1] + 20 + 4*T
        at(90 + 2*T, *[f'v_add_f32 v{g+q}, v{g+q}, v{ACC[0] + 20 + 4*T + q}' for q in range(2)])
        at(91 + 2*T, *[f'v_add_f32 v{g+q}, v{g+q}, v{ACC[0] + 20 + 4*T + q}' for q in range(2, 4)], f'ds_write_b128 v7, {vr(g, 4)} offset:{1024*T}')
    nld = 0
    for i, (n, u) in enumerate(seq):
        ks, T = divmod(n, 5)
        d = ACC[ks // 5] + 20*u + 4*T
        a(f'v_mfma_f32_16x16x32_bf16 {vr(d,4)}, {vr(WF + 4*(n % NW), 4)}, {vr(OF + 8*ks + 4*u, 4)}, {vr(d,4) if ks % 5 else 0}')
        for x in fill.pop(i, []):
            if isinstance(x, tuple) and x[0] == 'ld':
                L = a.newlabel('L_ld')
                a(f's_cbranch_scc0 {L}'); a.raw('    ' + loads(1)[x[1]]); a.label(L); nld += 1
            elif isinstance(x, tuple):
                if 1 < x[1] < 5 and i < CP:
                    L = a.newlabel('L_w')
                    a(f's_cbranch_scc1 {L}'); a.raw(f'    s_waitcnt vmcnt({8 - 2*x[1]})'); a.label(L); a.raw(f'    s_waitcnt vmcnt({8 - 2*x[1] + nld})')
                swap(x[1])
                if x[1] == 5: st.mark(a, 9, 'hop')
            elif x == 'CP0':
                L = a.newlabel('L_cp')
                a('v_readfirstlane_b32 s55, v18'); a('s_cmp_eq_u32 s55, 0x04040404'); a(f's_cbranch_scc1 {L}')
                for y in repoll: a.raw('    ' + y)
                a.label(L); a.vm = []
            elif x == 'CP1':
                L = a.newlabel('L_cp')
                a.raw('    s_waitcnt vmcnt(10)'); st.mark(a, 7, 'hop'); st.mark(a, 8, 'hop')
                a(f's_cbranch_scc1 {L}')
                a.raw('    s_waitcnt vmcnt(0)')
                a('v_readfirstlane_b32 s55, v18'); a('s_cmp_lg_u32 s55, 0x04040404'); a(f's_cbranch_scc1 {L}')
                for y in loads(1): a.raw('    ' + y)
                a.label(L)
            elif x == 'CP2':
                L = a.newlabel('L_cp')
                a('s_cmp_eq_u32 s55, 0x04040404'); a(f's_cbranch_scc1 {L}')
                a('s_mov_b64 exec, 1'); poll(a, 17, 18, P['ws'], ['v_cmp_ne_u32 vcc, 0x04040404, v18'], zero=19); a('s_mov_b64 exec, -1'); st.mark(a, 8, 'hop')
                for y in loads(1): a(y)
                a.label(L)
            else: a(x)
    assert not fill
    st.mark(a, 9); st.mark(a, 7, 'tail'); st.mark(a, 10, 'hop')
    a.wait(lg=0); st.mark(a, 8, 'tail'); a('s_barrier'); st.mark(a, 9, 'tail')
    a('ds_read_b32 v22, v16')
    for T in range(5):
        a(f'ds_read_b128 {vr(RX + 4*T, 4)}, v8 offset:{1024*T}'); a(f'ds_read_b128 {vr(GA + 4*T, 4)}, v6 offset:{1024*T}')
        for k in (2*T, 2*T + 1): a(f'v_pk_add_f32 {vr(ACC[1] + 2*k, 2)}, {vr(ACC[1] + 2*k, 2)}, {vr(ACC[0] + 2*k, 2)}')
    for k in range(10):
        a(f'v_pk_add_f32 {vr(ACC[1] + 2*k, 2)}, {vr(ACC[1] + 2*k, 2)}, {vr(RX + 2*k, 2)}')
        a(f'v_pk_fma_f32 {vr(GA + 2*k, 2)}, {vr(ACC[1] + 2*k, 2)}, v[22:23], {vr(GA + 2*k, 2)} op_sel_hi:[1,0,1]')
        a(f'v_cvt_pk_bf16_f32 v{O + k}, v{GA + 2*k}, v{GA + 2*k + 1}')
        if k == 3: a(f'ds_write2_b64 v9, {vr(O,2)}, {vr(O+2,2)} offset0:0 offset1:1')
        if k == 7: a(f'ds_write2_b64 v9, {vr(O+4,2)}, {vr(O+6,2)} offset0:2 offset1:3')
        if k == 9: a(f'ds_write_b64 v9, {vr(O+8,2)} offset:32')
    for i in range(3): a(f'ds_read_b128 {vr(RX + 4*i, 4)}, v{248+i} offset:{1024*i}')
    for i in range(3):
        if i == 2: a('s_mov_b32 exec_hi, 0')
        a(f'global_store_dwordx4 v{252+i}, {vr(RX + 4*i, 4)}, {sr(P["out"],2)} {OFL}')
    a('s_mov_b32 exec_hi, -1')
    st.mark(a, 10); st.mark(a, 10, 'tail')
```

```python
from common import *
import final

XS, WSL = 16384, 20480
XR, WR = 0, 4*XS
WPHI = WR + 4*WSL
ZERO = WPHI + 4096
PHI = 102400
VFR = PHI + 40960

WOR = [0, 4, 1, 3, 2]

def kv_producer(a, st):
    s_j, s_R, s_rot, s_pw = S_J, S_IDX, S_ROT, S_PW
    SX, SW, SP = 28, 32, 36
    st.mark(a, 1, 'start')
    a('s_setprio 3')
    a('v_and_b32 v1, 63, v0')
    a('v_lshrrev_b32 v2, 3, v1'); a('v_mul_u32_u24 v2, 1280, v2')
    a('v_lshrrev_b32 v3, 4, v1'); a('v_and_b32 v4, 7, v1'); a('v_xor_b32 v3, v3, v4')
    a('v_lshl_add_u32 v10, v3, 4, v2'); a('v_xor_b32 v11, 64, v10')
    a(f's_lshl_b32 s40, s{s_R}, 2'); a(f's_add_u32 s40, s40, s{s_pw}'); a(f's_mul_i32 s40, s40, {32*1280}')
    if env('XFAKE', 0): a(f's_mul_i32 s40, s{s_pw}, {32*1280}')
    a(f's_lshl_b32 s41, s{s_pw}, 12')
    a(f's_mul_i32 s42, s{s_pw}, 5120'); a(f's_add_u32 s42, s42, {WR}')
    a(f's_mov_b32 s43, s{s_rot}'); a(f's_mov_b32 s44, s{s_rot}')
    srd_tail(a, SX, 2621440); srd_tail(a, SW, 2457600)
    order = []
    def X(t):
        a('s_lshl_b32 s45, s43, 7'); a('s_add_u32 s45, s45, s40')
        for i in range(4):
            a(f's_add_u32 m0, s41, {XR + ((t + 2) % 4)*XS + 1024*i}')
            if i: a(f's_add_u32 s45, s45, 10240')
            a(f'buffer_load_dwordx4 v{10 + (i & 1)}, {sr(SX,4)}, s45 offen lds'); order.append(t)
        a('s_add_u32 s43, s43, 1'); a(f's_cmp_eq_u32 s43, {NST}'); a('s_cselect_b32 s43, 0, s43')
    def Wt(t, pre=None):
        a(f's_mul_i32 s45, s44, {64*3840}')
        for i in range(5):
            if pre: pre(i)
            a(f's_add_u32 m0, s42, {((t + 2) % 4)*WSL + 1024*i}')
            a(f'buffer_load_dwordx4 v{12+i}, {sr(SW,4)}, s45 offen lds'); order.append(t)
        a('s_add_u32 s44, s44, 1'); a(f's_cmp_eq_u32 s44, {NST}'); a('s_cselect_b32 s44, 0, s44')
    a.wait(lg=0)
    st.mark(a, 3, 'start'); st.mark(a, 1)
    X(0); st.mark(a, 4, 'start')
    a(f's_mul_i32 s46, s{s_pw}, {16*3840}'); a(f's_mul_i32 s47, s{s_j}, 160'); a('s_add_u32 s46, s46, s47'); a('s_add_u32 s46, s46, 1280')
    a('v_lshl_add_u32 v7, v1, 4, s46'); a('v_mul_u32_u24 v8, 6554, v1'); a('s_movk_i32 s47, 1760'); a('s_movk_i32 s48, 1280'); a('s_movk_i32 s49, -1920')
    def waddr(i):
        if i: a(f'v_add_u32 v8, {64*6554}, v8'); a('v_add_u32 v7, 1024, v7')
        a('v_lshrrev_b32 v3, 16, v8'); a('v_bfe_u32 v4, v8, 16, 1'); a('v_bfe_u32 v5, v8, 20, 1')
        a(f'v_mad_u32_u24 v{12+i}, v3, s47, v7'); a('v_xor_b32 v5, v5, v4')
        a(f'v_mad_i32_i24 v{12+i}, v4, s49, v{12+i}'); a(f'v_mad_u32_u24 v{12+i}, v5, s48, v{12+i}')
    rest_loads(a)
    Wt(0, waddr); st.mark(a, 5, 'start')
    rest_setup(a)
    srd(a, SP, P['wphi'], 25600)
    a('v_lshlrev_b32 v2, 4, v1'); a(f's_lshl_b32 s47, s{s_pw}, 10')
    a(f's_mul_i32 s45, s{s_j}, 3200'); a('s_add_u32 s45, s45, s47')
    a(f'buffer_load_dwordx4 v[36:39], v2, {sr(SP,4)}, s45 offen'); order.append(0)
    a(f's_add_u32 s47, s47, {WPHI}'); a('v_add_u32 v35, s47, v2')
    PRO = env('PRO', 1)
    a('s_setprio 0')
    if env('WO1', 5): final.wo_addr(a, 72)
    o_weights_addr(a)
    st.mark(a, 6, 'start')
    if os.environ.get('DIAG') == 'start':
        a.wait(vm=9); st.mark(a, 7, 'start'); a.wait(vm=6); st.mark(a, 8, 'start'); a.wait(vm=1); st.mark(a, 9, 'start'); a.wait(vm=0); st.mark(a, 10, 'start')
    for k in range(4): a(f'v_mov_b32 v{52+k}, 0')
    a(f'v_add_u32 v3, {ZERO}, v2'); a(f'ds_write_b128 v3, v[52:55]')
    X(1)
    if PRO == 0: Wt(1); X(2)
    if PRO == 2: Wt(1)
    a('s_mov_b32 s48, %#x' % LOG2E)
    for q in range(4):
        a(f'v_lshlrev_b32 v40, 16, v{36+q}'); a(f'v_and_b32 v41, 0xffff0000, v{36+q}')
        a('v_mul_f32 v40, s48, v40'); a('v_mul_f32 v41, s48, v41'); a(f'v_cvt_pk_bf16_f32 v{36+q}, v40, v41')
    a('ds_write_b128 v35, v[36:39]')
    nwo = 0
    nx, nw = (3, 2) if PRO == 0 else ((2, 1) if PRO == 1 else (2, 2))
    for s in range(NST):
        last = max(i for i, o in enumerate(order) if o <= s)
        st.mark(a, s + 1, 'pre')
        a.wait(vm=len(order) - 1 - last, lg=0 if s == 0 else None)
        st.mark(a, s + 1, 'post')
        a('s_barrier')
        st.mark(a, s + 1, 'bar')
        if s == 0: st.mark(a, 2)
        budget = env('RAMP', 3); XA = env('XA', 2)
        while budget > 0:
            cw = nw < NST and nw <= s + 2; cx = nx < NST and nx <= s + XA
            if cw and (nw < nx or not cx): Wt(nw); nw += 1
            elif cx: X(nx); nx += 1
            else: break
            budget -= 1
        if s == NST - 2: o_weights_read(a)
        if s >= NST - 2:
            k = env('WOA', 1) if s == NST - 2 else env('WOB', 2)
            final.wo_issue(a, S_PW, WOR[nwo:nwo + k], 72); order.extend([99]*5*k); nwo += k
    assert nx == NST and nw == NST
    a.vm = []
    a.wait(lg=0); a('s_barrier')
    st.mark(a, 3)
    final.wo_issue(a, S_PW, WOR[nwo:env('WO1', 5)], 72)
    W3 = o_weights_fix(a)
    o_stage(a, st, W3)

WA, WB, WBb = 60, 64, 68
def o_weights_addr(a):
    a(f's_and_b32 s50, s{S_IDX}, 3'); a('s_mul_i32 s48, s50, 800'); a(f's_add_u32 s48, s48, {WPHI}')
    a('v_bfe_u32 v20, v1, 2, 2'); a('v_and_b32 v21, 3, v1'); a('v_lshrrev_b32 v26, 4, v1')
    a('v_lshrrev_b32 v22, 2, v1'); a('v_mul_u32_u24 v22, 40, v22'); a('v_add_u32 v22, s48, v22')
    a('v_mul_u32_u24 v23, 40, v20'); a('v_add_u32 v23, s48, v23'); a('v_add_u32 v23, 640, v23')
    a(f'v_mov_b32 v24, {ZERO}'); a('v_cmp_eq_u32 vcc, s50, v26'); a('v_cndmask_b32 v23, v24, v23, vcc')
    a('v_lshl_add_u32 v24, v21, 3, v22'); a('v_lshl_add_u32 v25, v21, 3, v23')
    a('v_and_b32 v26, 1, v20'); a('v_mul_u32_u24 v26, 0x8000, v26'); a('v_lshl_or_b32 v26, v26, 16, v26')
def o_weights_read(a):
    a(f'ds_read_b64_tr_b16 {vr(WA,2)}, v24'); a(f'ds_read_b64_tr_b16 {vr(WA+2,2)}, v25')
    a(f'ds_read_b64_tr_b16 {vr(WB,2)}, v22 offset:32'); a(f'ds_read_b64_tr_b16 {vr(WB+2,2)}, v23 offset:32')
def o_weights_fix(a):
    a('v_cmp_gt_u32 vcc, 2, v20')
    for q in range(4):
        a(f'v_xor_b32 v{WB+q}, v26, v{WB+q}')
        a(f'v_cndmask_b32 v{WBb+q}, v{WB+q}, 0, vcc'); a(f'v_cndmask_b32 v{WB+q}, 0, v{WB+q}, vcc')
    return WA, WB, WBb

def phi_parts(W3, QX, T, PA):
    WA, WB, WBb = W3; QY = QX + 4
    A0, A1, B = T, T + 4, T + 8
    E = [T + 12, T + 16, T + 20, T + 24, T + 28]
    c = [T + 32, T + 34, T + 36, T + 38]; Z = T + 40
    lo = [f'v_swap_b32 v{QX+2}, v{QY}', f'v_swap_b32 v{QX+3}, v{QY+1}',
          f'v_mfma_f32_16x16x32_bf16 {vr(A0,4)}, {vr(WA,4)}, {vr(QX,4)}, 0', f'v_mfma_f32_16x16x32_bf16 {vr(A1,4)}, {vr(WA,4)}, {vr(QY,4)}, 0',
          f'v_mfma_f32_16x16x32_bf16 {vr(B,4)}, {vr(WB,4)}, {vr(QX,4)}, 0', f'v_mfma_f32_16x16x32_bf16 {vr(B,4)}, {vr(WBb,4)}, {vr(QY,4)}, {vr(B,4)}']
    def gather(op2):
        return [f'v_permlane32_swap_b32 v{c[0]}, v{c[2]}', f'v_permlane32_swap_b32 v{c[1]}, v{c[3]}',
                f'{op2} v{c[0]}, v{c[0]}, v{c[2]}', f'{op2} v{c[1]}, v{c[1]}, v{c[3]}',
                f'v_permlane16_swap_b32 v{c[0]}, v{c[1]}',
                f'{op2} v{Z}, v{Z}, v{c[0]}', f'{op2} v{Z}, v{Z}, v{c[1]}']
    spread = [f'v_mov_b32 v{c[0]}, v{Z}', f'v_mov_b32 v{c[1]}, v{Z}',
              f'v_permlane16_swap_b32 v{c[0]}, v{c[1]}',
              f'v_mov_b32 v{c[2]}, v{c[0]}', f'v_mov_b32 v{c[3]}, v{c[1]}',
              f'v_permlane32_swap_b32 v{c[0]}, v{c[2]}', f'v_permlane32_swap_b32 v{c[1]}, v{c[3]}']
    src = [(A0, ''), (A0, '-'), (A1, ''), (A1, '-'), (B, '')]
    fast = [f'v_exp_f32 v{E[k]+q}, {sg}v{x+q}' for k, (x, sg) in enumerate(src) for q in range(4)]
    slow = []
    for m, (x, sg) in zip(c + [Z], src):
        slow += [f'v_max3_f32 v{m}, {sg}v{x}, {sg}v{x+1}, {sg}v{x+2}', f'v_max_f32 v{m}, {sg}v{x+3}, v{m}']
    slow += gather('v_max_f32') + spread
    for k, (m, (x, sg)) in enumerate(zip(c + [Z], src)):
        slow += [f'v_sub_f32 v{E[k]+q}, {sg}v{x+q}, v{m}' for q in range(4)]
    slow += [f'v_exp_f32 v{E[k]+q}, v{E[k]+q}' for k in range(5) for q in range(4)]
    sums = [f'v_pk_add_f32 {vr(m,2)}, {vr(E[k],2)}, {vr(E[k]+2,2)}' for k, m in enumerate(c + [Z])]
    sums += [f'v_add_f32 v{m}, v{m}, v{m+1}' for m in c + [Z]] + gather('v_add_f32')
    rest = [f'v_rcp_f32 v{Z}, v{Z}'] + spread
    for k, m in enumerate(c + [Z]):
        rest += [f'v_pk_mul_f32 {vr(E[k]+q,2)}, {vr(E[k]+q,2)}, {vr(m,2)} op_sel_hi:[1,0]' for q in (0, 2)]
    rest += [f'v_cvt_pk_bf16_f32 v{PA + 2*k + q}, v{E[k] + 2*q}, v{E[k] + 2*q + 1}' for k in range(5) for q in range(2)]
    return lo, fast, slow, sums, rest, Z

def o_stage(a, st, W3):
    li, lg = 2, 3
    a(f'v_and_b32 v{li}, 15, v0'); a(f'v_bfe_u32 v{lg}, v0, 4, 2')
    a(f's_and_b32 s50, s{S_IDX}, 3')
    a(f's_andn2_b32 s51, s{S_IDX}, 3'); a(f's_add_u32 s51, s51, s{S_PW}'); a('s_lshl_b32 s51, s51, 2')
    a(f's_lshl_b32 s40, s{S_J}, 9'); a(f's_add_u32 s40, s40, {WS_FL + 256}')
    if env('QFINE', 1):
        a('v_add_u32 v4, s51, v1'); a('v_mul_u32_u24 v7, 373, v4'); a('v_lshrrev_b32 v7, 12, v7')
        a('v_cmp_lt_u32 vcc, 53, v4'); a('v_cndmask_b32 v7, v7, 5, vcc'); a('v_subb_co_u32 v8, vcc, 0, 0, vcc')
        a('v_mul_u32_u24 v9, 11, v7'); a('v_add_u32 v9, v9, v8'); a('v_sub_u32 v4, v4, v9')
        a('v_cmp_lt_u32 vcc, 3, v7'); a('v_cndmask_b32 v8, 0, 1, vcc'); a('v_lshrrev_b32 v9, 3, v4'); a('v_and_b32 v8, v8, v9')
        a('v_add_u32 v4, v4, v8'); a('v_mul_u32_u24 v4, 86, v4'); a('v_lshrrev_b32 v4, 8, v4')
        a('v_lshl_add_u32 v4, v7, 2, v4'); a('v_min_u32 v4, 23, v4')
    else: a('v_min_u32 v4, 23, v1')
    a('v_lshl_add_u32 v4, v4, 2, s40')
    a(f's_lshl_b32 s40, s{S_J}, 6'); a('s_add_u32 s40, s40, s51'); a('s_mul_i32 s40, s40, 5120'); a(f's_add_u32 s40, s40, {WS_Q}')
    a('s_lshl_b32 s41, s50, 10'); a('s_add_u32 s41, s41, s40'); a('s_add_u32 s40, s40, 4096')
    a('v_lshl_add_u32 v5, v1, 4, s41'); a('v_lshl_add_u32 v6, v1, 4, s40')
    a('s_mul_i32 s52, s50, 10240'); a(f's_add_u32 s52, s52, {PHI}')
    a('v_lshl_add_u32 v15, v1, 4, s52')
    a('v_and_b32 v8, 7, v1'); a(f'v_lshl_add_u32 v8, v{lg}, 3, v8'); a('v_lshl_add_u32 v8, v8, 4, s52')
    a('v_and_b32 v9, 31, v1'); a('v_lshl_add_u32 v9, v9, 4, s52')
    a(f's_lshl_b32 s53, s{S_J}, 2'); a('s_add_u32 s53, s53, s50')
    a('s_lshl_b32 s40, s51, 5'); a('s_add_u32 s40, s40, s53'); a('s_mul_i32 s40, s40, 1280'); a(f's_add_u32 s40, s40, {WS_O}')
    a('v_lshl_add_u32 v10, v1, 4, s40')
    a(f'v_mul_u32_u24 v11, {32*1280}, v{lg}'); a(f'v_lshl_add_u32 v11, v{li}, 4, v11'); a('v_add_u32 v11, s40, v11')
    a(f's_lshr_b32 s40, s{S_J}, 2'); a('s_add_u32 s40, s40, s51'); a('s_lshl_b32 s40, s40, 8'); a(f's_add_u32 s40, s40, {WS_FO}')
    a('v_and_b32 v12, 2, v1'); a('v_add_u32 v12, v12, v1'); a('v_lshl_add_u32 v12, v12, 7, s40')
    a(f's_and_b32 s40, s{S_J}, 3'); a('s_lshl_b32 s40, s40, 3'); a('s_lshl_b32 s40, 1, s40'); a('v_mov_b32 v13, s40')
    a('s_barrier')
    st.mark(a, 4)
    poll_flag(a, 4, 7, 4 if env('QFINE', 1) else 24)
    if env('OPRIO', 1) == 1: a('s_setprio 2')
    st.mark(a, 5); st.mark(a, 4, 'mid')
    QF, PA, T = 72, 104, 144
    for p in range(4):
        a(f'global_load_dwordx4 {vr(QF + 8*p, 4)}, v5, {sr(P["ws"],2)} sc1'); a(f'global_load_dwordx4 {vr(QF + 8*p + 4, 4)}, v6, {sr(P["ws"],2)} sc1')
        if p < 3: a('v_add_u32 v5, 5120, v5'); a('v_add_u32 v6, 5120, v6')
    for p in (0, 2):
        x = phi_parts(W3, QF + 8*p, T, PA + 10*p); y = phi_parts(W3, QF + 8*p + 8, T + 44, PA + 10*p + 10)
        for s in x[0] + y[0]: a(s)
        st.mark(a, 5 + p, 'mid')
        for s in x[1] + y[1] + interleave(x[3], y[3]): a(s)
        a(f'v_max_f32 v14, v{x[5]}, v{y[5]}'); a('v_cmp_lt_f32 vcc, 0x5d800000, v14')
        Ls, Lb = a.newlabel('L_qslow'), a.newlabel('L_qback')
        a(f's_cbranch_vccnz {Ls}')
        a.label(Lb)
        def slow(a, x=x, y=y, Ls=Ls, Lb=Lb):
            a.label(Ls); a.forget()
            for s in interleave(x[2] + x[3], y[2] + y[3]): a(s)
            a(f's_branch {Lb}')
        a.deferred.append(slow)
        for s in interleave(x[4], y[4]): a(s)
        st.mark(a, 6 + p, 'mid')
    st.mark(a, 6)
    a('v_cmp_gt_u32 vcc, 32, v1')
    if env('OPRIO', 1) == 2: a('s_setprio 2')
    a('s_barrier')
    st.mark(a, 7); st.mark(a, 1, 'tail'); st.mark(a, 1, 'hop')
    K0, K1, XA, XB = 16, 20, 24, 28
    a(f'ds_read_b128 {vr(K1,4)}, v8 offset:1024'); a(f'ds_read_b128 {vr(K0,4)}, v15'); a(f'ds_read_b128 {vr(XA,4)}, v9 offset:1536')
    D = lambda p, u, t: T + 16*p + 8*u + 4*t
    def mm(p, t):
        K = K0 if t == 0 else K1
        return [f'v_mfma_f32_16x16x32_bf16 {vr(D(p,u,t),4)}, {vr(K,4)}, {vr(PA + 10*p + 4*u,4)}, 0' for u in range(2)] + \
               [f'v_mfma_f32_16x16x16_bf16 {vr(D(p,u,t),4)}, {vr(XA + 4*u + 2*t,2)}, {vr(PA + 10*p + 8,2)}, {vr(D(p,u,t),4)}' for u in range(2)]
    mask = [s for q in range(4) for s in (f'v_cndmask_b32 v{XB+q}, v{XA+q}, 0, vcc', f'v_cndmask_b32 v{XA+q}, 0, v{XA+q}, vcc')]
    def fin(p):
        o = []
        O = 32 + 8*(p & 1)
        for u in range(2): o.append(f'v_add_f32 v{D(p,u,1)+2}, 0x358637bd, v{D(p,u,1)+2}')
        for u in range(2): o.append(f'v_rcp_f32 v{D(p,u,1)+2}, v{D(p,u,1)+2}')
        for u in range(2):
            r = D(p,u,1) + 2
            for x in (D(p,u,1), D(p,u,1) + 1, D(p,u,0), D(p,u,0) + 1, D(p,u,0) + 2, D(p,u,0) + 3): o.append(f'v_mul_f32 v{x}, v{r}, v{x}')
        for u in range(2):
            for q in range(2): o.append(f'v_cvt_pk_bf16_f32 v{O + 2*u + q}, v{D(p,u,0) + 2*q}, v{D(p,u,0) + 2*q + 1}')
        o.append(f'global_store_dwordx4 v10, {vr(O,4)}, {sr(P["ws"],2)} sc1')
        for u in range(2): o.append(f'v_cvt_pk_bf16_f32 v{O+4+u}, v{D(p,u,1)}, v{D(p,u,1)+1}')
        o.append(f'v_cndmask_b32 v{48+p}, v{O+5}, v{O+4}, vcc')
        if p < 3: o += [f'v_add_u32 v10, {32*1280}, v10']
        return o
    big = lambda p: mm(p, 1)[:2] + mm(p, 0)[:2]
    small = lambda p: mm(p, 1)[2:] + mm(p, 0)[2:]
    for s in big(0) + interleave(big(1), mask): a(s)
    for s in small(0) + big(2): a(s)
    for s in interleave(small(1) + big(3), fin(0)): a(s)
    st.mark(a, 2, 'tail')
    for s in interleave(small(2) + small(3), fin(1)): a(s)
    for s in fin(2): a(s)
    for s in fin(3): a(s)
    a('v_permlane32_swap_b32 v48, v50'); a('v_permlane32_swap_b32 v49, v51')
    a('v_permlane16_swap_b32 v48, v49'); a('v_permlane16_swap_b32 v50, v51')
    a(f'global_store_dwordx4 v11, v[48:51], {sr(P["ws"],2)} offset:1024 sc1')
    st.mark(a, 3, 'tail'); st.mark(a, 2, 'hop')
    EARLYB = env('WO1', 5) == 5 and env('EARLYB', 1)
    if EARLYB: a('s_barrier')
    a.wait(vm=0)
    st.mark(a, 4, 'tail'); st.mark(a, 3, 'hop')
    a('s_mov_b64 exec, 15')
    a(f'global_atomic_add v12, v13, {sr(P["ws"],2)} sc1')
    a('s_mov_b64 exec, -1')
    st.mark(a, 8)
    a('s_setprio 0')
    if not EARLYB: a('s_barrier')

def kv_consumer(a, st):
    s_j, s_R, s_w = S_J, S_IDX, S_WAVE
    li, lg = 2, 3
    a('v_and_b32 v1, 63, v0'); a(f'v_and_b32 v{li}, 15, v0'); a(f'v_bfe_u32 v{lg}, v0, 4, 2')
    L = a.newlabel('L_clr')
    a(f's_cmp_lg_u32 s{s_w}, 0'); a(f's_cbranch_scc1 {L}')
    a(f's_lshl_b32 s40, s{s_j}, 9'); a(f's_lshl_b32 s41, s{s_R}, 2'); a('s_add_u32 s40, s40, s41'); a(f's_add_u32 s40, s40, {WS_FL}')
    a('v_lshl_add_u32 v16, v1, 6, s40')
    a('s_lshl_b32 s40, s2, 7'); a(f's_add_u32 s41, s40, {WS_FO}'); a(f's_add_u32 s40, s40, {WS_FA}')
    a('v_writelane_b32 v16, s41, 4'); a('v_writelane_b32 v16, s40, 5'); a('v_mov_b32 v17, 0')
    a.wait(lg=0)
    a('s_mov_b64 exec, 63')
    a(f'global_store_dword v16, v17, {sr(P["ws"],2)} sc1')
    a('s_mov_b64 exec, -1')
    a.label(L); a.vm = []
    AX = 4
    a(f'v_lshrrev_b32 v16, 1, v{li}'); a(f'v_xor_b32 v16, v16, v{lg}'); a('v_lshlrev_b32 v16, 4, v16')
    a(f'v_lshl_add_u32 v16, v{li}, 7, v16'); a(f's_lshl_b32 s40, s{s_w}, 12'); a(f'v_add_u32 v{AX}, s40, v16'); a(f'v_xor_b32 v{AX+1}, 64, v{AX}')
    AK, AVP, AVS = 6, 8, 10
    a(f'v_lshrrev_b32 v16, 2, v{li}'); a(f'v_lshl_add_u32 v16, v{lg}, 3, v16'); a('v_mul_u32_u24 v16, 320, v16')
    a(f'v_and_b32 v17, 1, v{lg}'); a('v_mul_u32_u24 v17, 160, v17')
    a(f'v_and_b32 v18, 3, v{li}'); a('v_mul_u32_u24 v19, 40, v18')
    a(f'v_add_u32 v16, {WR}, v16')
    a(f'v_add3_u32 v{AK}, v16, v17, v19')
    a('v_sub_u32 v16, v16, v17'); a('v_add_u32 v16, 160, v16')
    a(f'v_lshl_add_u32 v{AVP}, v18, 3, v16')
    a(f'v_add3_u32 v{AVS}, v16, v19, 32')
    for r in (AK, AVP, AVS): a(f'v_add_u32 v{r+1}, {3*WSL}, v{r}')
    KA, VA = 32, 72
    XF = 112
    WF = 128; NW = 6
    WPH = 160
    def rdx(ks, u):
        s = ks >> 1
        return f'ds_read_b128 {vr(XF + 8*(ks & 1) + 4*u, 4)}, v{AX + (ks & 1)} offset:{XR + ((s + 2) % 4)*XS + 2048*u}'
    def rdw(n):
        ks, T = divmod(n, 10); s = ks >> 1; slot = (s + 2) % 4
        base, o = (AK, 8*T) if T < 5 else ((AVP, 40*(T - 5)) if T < 9 else (AVS, 0))
        o += (ks & 1)*32*320 + (slot % 3)*WSL; base += slot // 3
        r = WF + 4*(n % NW)
        return [f'ds_read_b64_tr_b16 {vr(r,2)}, v{base} offset:{o}', f'ds_read_b64_tr_b16 {vr(r+2,2)}, v{base} offset:{o + 4*320}']
    a(f'v_lshrrev_b32 v16, 2, v{li}'); a('v_mul_u32_u24 v16, 40, v16'); a(f'v_mul_u32_u24 v17, 800, v{lg}')
    a('s_mov_b32 s41, %d' % WPHI); a('v_add3_u32 v16, v16, v17, s41')
    a(f'v_mov_b32 v17, {ZERO}'); a(f'v_cmp_eq_u32 vcc, v18, v{lg}'); a('v_cndmask_b32 v12, v17, v16, vcc')
    wph = [f'ds_read_b64_tr_b16 {vr(WPH + 10*T + 2*q, 2)}, v12 offset:{160*q + 8*T}' for T in range(5) for q in range(5)]
    E_V, E_P, E_A, E_A2, E_B, E_B4, E_O, E_M, E_F, E_KF, E_KP, E_KS, E_DBG = 212, 213, 214, 215, 216, 217, 218, 219, 222, 223, 224, 225, 226
    a(f's_mul_i32 s41, s{s_w}, 5120'); a(f's_add_u32 s41, s41, {VFR}'); a(f'v_lshl_add_u32 v{E_V}, v1, 4, s41')
    a(f'v_mul_u32_u24 v14, 10240, v{lg}'); a(f'v_mul_u32_u24 v15, 80, v{li}')
    a(f's_mul_i32 s41, s{s_w}, {32*80}'); a(f's_add_u32 s41, s41, {PHI}'); a(f'v_add3_u32 v{E_P}, v14, v15, s41')
    a(f'v_lshrrev_b32 v16, 2, v{li}'); a(f'v_lshl_add_u32 v16, v{lg}, 2, v16'); a('v_mul_u32_u24 v16, 80, v16')
    a(f's_mul_i32 s41, s{s_w}, 10240'); a(f's_add_u32 s41, s41, {PHI}')
    a(f'v_lshl_add_u32 v17, v18, 3, v16'); a(f'v_add_u32 v{E_A}, s41, v17')
    a(f'v_and_b32 v17, 1, v{li}'); a('v_lshl_add_u32 v17, v17, 3, v16'); a(f'v_add3_u32 v{E_A2}, v17, s41, 64')
    a(f's_lshl_b32 s41, s{s_w}, 10'); a(f's_add_u32 s41, s41, {VFR}'); a(f'v_lshl_add_u32 v{E_B}, v1, 4, s41')
    a(f'v_bfe_u32 v16, v{li}, 2, 1'); a(f'v_and_b32 v17, 1, v{li}'); a('v_lshl_add_u32 v16, v16, 1, v17'); a(f'v_lshl_add_u32 v16, v{lg}, 4, v16')
    a(f's_lshl_b32 s41, s{s_w}, 6'); a(f's_add_u32 s41, s41, {VFR + 4096}'); a(f'v_lshl_add_u32 v{E_B4}, v16, 4, s41')
    a(f'v_and_b32 v17, 2, v{li}'); a('v_cmp_eq_u32 s[48:49], 0, v17')
    a('v_lshlrev_b32 v19, 4, v1')
    a(f's_lshl_b32 s44, s{s_j}, 2'); a(f's_add_u32 s44, s44, s{s_w}'); a('s_lshl_b32 s44, s44, 4'); a(f's_add_u32 s44, s44, s{s_R}')
    a('s_lshl_b32 s44, s44, 11'); a(f's_add_u32 s44, s44, {WS_KV}')
    a(f'v_add_u32 v{E_O}, s44, v19')
    a(f'v_lshl_add_u32 v16, v{lg}, 3, v{li}'); a(f'v_lshl_add_u32 v{E_M}, v16, 4, s44')
    SEL = 152
    a(f'v_and_b32 v16, 1, v{li}'); a('v_lshlrev_b32 v16, 4, v16'); a('s_movk_i32 s41, 0x3f80'); a('v_lshlrev_b32 v16, v16, s41'); a(f'v_lshrrev_b32 v17, 1, v{li}')
    for q in range(8): a(f'v_cmp_eq_u32 vcc, {q}, v17'); a(f'v_cndmask_b32 v{SEL+q}, 0, v16, vcc')
    a(f's_lshl_b32 s40, s{s_j}, 9'); a(f's_add_u32 s40, s40, {WS_FL}')
    a(f's_lshl_b32 s41, s{s_w}, 4'); a(f's_add_u32 s41, s41, s{s_R}'); a('s_lshl_b32 s41, s41, 2'); a('s_add_u32 s41, s41, s40'); a(f'v_mov_b32 v{E_F}, s41')
    a(f's_and_b32 s50, s{s_R}, 3'); a('s_lshl_b32 s41, s50, 6'); a('s_add_u32 s41, s41, s40'); a(f'v_lshl_add_u32 v{E_KF}, v{li}, 2, s41')
    a(f's_lshl_b32 s41, s{s_j}, 2'); a('s_add_u32 s41, s41, s50'); a('s_lshl_b32 s41, s41, 15'); a(f's_lshl_b32 s40, s{s_w}, 9'); a('s_add_u32 s41, s41, s40')
    a(f's_add_u32 s41, s41, {WS_KV}'); a(f'v_lshlrev_b32 v16, 11, v{lg}'); a(f'v_lshl_add_u32 v16, v{li}, 4, v16'); a(f'v_add_u32 v{E_KP}, s41, v16')
    a('s_mul_i32 s41, s50, 10240'); a('s_add_u32 s41, s41, s40'); a(f's_add_u32 s41, s41, {PHI}')
    a(f'v_lshrrev_b32 v16, 1, v{lg}'); a(f'v_lshl_add_u32 v16, v16, 4, v{li}'); a(f'v_and_b32 v17, 1, v{lg}'); a('v_lshl_add_u32 v16, v16, 1, v17'); a(f'v_lshl_add_u32 v{E_KS}, v16, 3, s41')
    a(f'v_lshlrev_b32 v{E_DBG}, 2, v1')
    a.wait(lg=0)
    PD = NW - 2
    st.mark(a, 1)
    a('s_barrier')
    st.mark(a, 2)
    a(rdx(0, 0)); a(rdx(0, 1))
    for n in range(PD):
        for s in rdw(n): a(s)
    NK = 2*NST
    KO = 232
    kcvt = [f'v_cvt_pk_bf16_f32 v{KO + 12*u + i}, v{KA + 20*u + 2*i}, v{KA + 20*u + 2*i + 1}' for i in range(10) for u in range(2)]
    for n in range(10*NK):
        ks, T = divmod(n, 10)
        m = n + PD
        pre = []
        if m < 10*NK:
            if m % 20 == 0: pre.append('s_barrier')
            if m % 10 == 0: pre += [rdx(m // 10, 0), rdx(m // 10, 1)]
            rw = rdw(m)
        else: rw = []
        if wph and n >= 1 and n % 2 == 1 and not pre: pre.append(wph.pop(0))
        if n == 171 and env('NOANN', 0) < 2: pre.append(f'global_load_dword v{E_DBG+2}, v{E_DBG}, {sr(P["dbg"],2)} sc1')
        if n == 10*NK - 2: pre += ['s_waitcnt lgkmcnt(0)', 's_barrier']
        r = WF + 4*(n % NW)
        for u in range(2):
            x = XF + 8*(ks & 1) + 4*u
            if T < 5: d = KA + 20*u + 4*T; ins = f'v_mfma_f32_16x16x32_bf16 {vr(d,4)}, {vr(r,4)}, {vr(x,4)}, {vr(d,4) if ks else 0}'
            else: d = VA + 20*u + 4*(T - 5); ins = f'v_mfma_f32_16x16x32_bf16 {vr(d,4)}, {vr(x,4)}, {vr(r,4)}, {vr(d,4) if ks else 0}'
            a(ins)
            if u == 0:
                for s in pre: a(s)
            if rw: a(rw[u])
            if n >= 10*NK - 5:
                for _ in range(2): a(kcvt.pop(0))
        if n == 42:
            L = a.newlabel('L_ann0')
            a(f's_cmp_lg_u32 s{s_w}, 0'); a(f's_cbranch_scc1 {L}')
            announce(a, 16, also_conv=True)
            a.label(L); a.vm = []
    assert not wph
    st.mark(a, 3); st.mark(a, 1, 'mid')
    for s in kcvt: a(s)
    VO = 24
    vfill = []
    for T in range(5):
        r = VO + 4*(T & 1)
        for u in range(2):
            for q in range(2): vfill.append(f'v_cvt_pk_bf16_f32 v{r + 2*u + q}, v{VA + 20*u + 4*T + 2*q}, v{VA + 20*u + 4*T + 2*q + 1}')
        vfill.append(f'ds_write_b128 v{E_V}, {vr(r,4)} offset:{1024*T}')
    PK = KA
    def mm(u):
        o = []
        for T, t in [(T, 2) for T in range(5)] + [(T, t) for T in range(5) for t in range(2)]:
            d = PK + 20*u + 4*T; w = WPH + 10*T + 4*t; k = KO + 12*u + 4*t
            if t < 2: o.append(f'v_mfma_f32_16x16x32_bf16 {vr(d,4)}, {vr(w,4)}, {vr(k,4)}, {vr(d,4)}')
            else: o.append(f'v_mfma_f32_16x16x16_bf16 {vr(d,4)}, {vr(w,2)}, {vr(k,2)}, 0')
        return o
    EP, EM, TT, PO = [112, 72], [132, 92], 16, 24
    def exps(u): return [s for i in range(20) for s in (f'v_exp_f32 v{EP[u]+i}, v{PK + 20*u + i}', f'v_exp_f32 v{EM[u]+i}, -v{PK + 20*u + i}')]
    def sums(u):
        sp, sm = TT + 4*u, TT + 4*u + 2
        a(f'v_pk_add_f32 {vr(sp,2)}, {vr(EP[u],2)}, {vr(EP[u]+2,2)}'); a(f'v_pk_add_f32 {vr(sm,2)}, {vr(EM[u],2)}, {vr(EM[u]+2,2)}')
        for i in range(4, 20, 2):
            a(f'v_pk_add_f32 {vr(sp,2)}, {vr(sp,2)}, {vr(EP[u]+i,2)}'); a(f'v_pk_add_f32 {vr(sm,2)}, {vr(sm,2)}, {vr(EM[u]+i,2)}')
        a(f'v_add_f32 v{sp}, v{sp}, v{sp+1}'); a(f'v_add_f32 v{sm}, v{sm}, v{sm+1}')
    m0 = mm(0)
    for s in m0[:2] + interleave(m0[2:], vfill): a(s)
    e0 = exps(0)
    for s in interleave(mm(1), e0[:16]) + e0[16:]: a(s)
    a.wait(vm=0)
    check_ann(a, E_DBG, E_DBG + 2, preloaded=True)
    for s in exps(1): a(s)
    sums(0); sums(1)
    a(f'v_max3_f32 v{TT+1}, v{TT}, v{TT+2}, v{TT+4}'); a(f'v_max_f32 v{TT+1}, v{TT+1}, v{TT+6}')
    a(f'v_cmp_lt_f32 vcc, 0x5d800000, v{TT+1}')
    Ls, Lb = a.newlabel('L_kslow'), a.newlabel('L_kback')
    a(f's_cbranch_vccnz {Ls}')
    a.label(Lb)
    def slow(a):
        a.label(Ls); a.forget()
        for u in range(2):
            x = PK + 20*u; mx, mn = TT + 1, TT + 3
            a(f'v_max3_f32 v{mx}, v{x}, v{x+1}, v{x+2}'); a(f'v_min3_f32 v{mn}, v{x}, v{x+1}, v{x+2}')
            for i in range(3, 19, 2):
                a(f'v_max3_f32 v{mx}, v{mx}, v{x+i}, v{x+i+1}'); a(f'v_min3_f32 v{mn}, v{mn}, v{x+i}, v{x+i+1}')
            a(f'v_max_f32 v{mx}, v{mx}, v{x+19}'); a(f'v_min_f32 v{mn}, v{mn}, v{x+19}')
            for i in range(20): a(f'v_sub_f32 v{EP[u]+i}, v{x+i}, v{mx}'); a(f'v_sub_f32 v{EM[u]+i}, v{mn}, v{x+i}')
            for i in range(20): a(f'v_exp_f32 v{EP[u]+i}, v{EP[u]+i}'); a(f'v_exp_f32 v{EM[u]+i}, v{EM[u]+i}')
        sums(0); sums(1)
        a(f's_branch {Lb}')
    a.deferred.append(slow)
    for k in range(4): a(f'v_rcp_f32 v{TT + 2*k}, v{TT + 2*k}')
    for u in range(2):
        sp, sm = TT + 4*u, TT + 4*u + 2
        src = [(EP[u] + i, sp) for i in range(0, 16, 2)] + [(EM[u] + i, sm) for i in range(0, 16, 2)] + [(EP[u] + 16, sp), (EP[u] + 18, sp), (EM[u] + 16, sm), (EM[u] + 18, sm)]
        for c in range(5):
            r = PO + 4*(c & 1)
            for q in range(4):
                e, s = src[4*c + q]
                a(f'v_pk_mul_f32 {vr(e,2)}, {vr(e,2)}, {vr(s,2)} op_sel_hi:[1,0]')
            for q in range(4):
                e, s = src[4*c + q]
                a(f'v_cvt_pk_bf16_f32 v{r+q}, v{e}, v{e+1}')
            a(f'ds_write_b128 v{E_P}, {vr(r,4)} offset:{16*80*u + 16*c}')
    a('v_mov_b32 v16, 0x3f803f80'); a('v_mov_b32 v17, 1')
    a.wait(lg=0)
    st.mark(a, 4); st.mark(a, 2, 'mid')
    if env('CPRIO', 1): a('s_setprio 3')
    a('s_barrier'); st.mark(a, 3, 'mid')
    AFr, BFr, KVA = 32, 80, 112
    def rd(k):
        o = [f'ds_read_b128 {vr(BFr + 8*k, 4)}, v{E_B} offset:{5120*k}']
        for F in range(3):
            r = AFr + 12*k + 4*F
            for h in range(2):
                o.append(f'ds_read_b64_tr_b16 {vr(r + 2*h, 2)}, v{E_A if F < 2 else E_A2} offset:{(32*k + 16*h)*80 + (32*F if F < 2 else 0)}')
            if F == 0: o.append(f'ds_read_b128 {vr(BFr + 8*k + 4, 4)}, v{E_B4} offset:{5120*k}')
        return o
    def ml(k):
        o = []
        for dt in range(2):
            for F in range(3):
                d = KVA + 4*(3*dt + F)
                o.append(f'v_mfma_f32_16x16x32_bf16 {vr(d,4)}, {vr(AFr + 12*k + 4*F, 4)}, {vr(BFr + 8*k + 4*dt, 4)}, {vr(d,4) if k else 0}')
                if dt == 0 and F < 2:
                    o += [f'v_cndmask_b32 v{BFr + 8*k + 4 + q}, v16, v{BFr + 8*k + 4 + q}, s[48:49]' for q in (2*F, 2*F + 1)]
        return o
    for s in rd(0) + rd(1)[:4]: a(s)
    for s in interleave(ml(0), rd(1)[4:] + rd(2)[:4]): a(s)
    for s in interleave(ml(1), rd(2)[4:] + rd(3)[:4]): a(s)
    for s in interleave(ml(2), rd(3)[4:]): a(s)
    for s in ml(3): a(s)
    st.mark(a, 4, 'mid')
    PB = 136
    def cv(dst, t): return [f'v_cvt_pk_bf16_f32 v{dst + q}, v{KVA + 4*t + 2*q}, v{KVA + 4*t + 2*q + 1}' for q in range(2)]
    def stores(fl):
        for x in cv(PB, 0) + cv(PB + 2, 1): a(x)
        a(f'global_store_dwordx4 v{E_O}, {vr(PB, 4)}, {sr(P["ws"],2)} {fl}')
        for x in cv(PB + 8, 2) + cv(PB + 4, 3) + cv(PB + 6, 4) + cv(PB + 10, 5): a(x)
        a('s_mov_b32 exec_lo, 0x00ff00ff'); a('s_mov_b32 exec_hi, 0x00ff00ff')
        a(f'global_store_dwordx4 v{E_M}, {vr(PB + 4, 4)}, {sr(P["ws"],2)} offset:1024 {fl}')
        a('s_mov_b32 exec_lo, -1'); a('s_mov_b32 exec_hi, 0')
        a(f'global_store_dwordx4 v{E_O}, {vr(PB + 8, 4)}, {sr(P["ws"],2)} offset:1536 {fl}')
        a('s_mov_b64 exec, 1'); st.mark(a, 5, 'mid')
        a.wait(vm=0)
        a(f'global_store_dword v{E_F}, v17, {sr(P["ws"],2)} {fl}')
        a('s_mov_b64 exec, -1')
    by_mode(a, stores)
    if env('CPRIO', 1) == 1: a('s_setprio 0')
    st.mark(a, 5); st.mark(a, 6, 'mid')
    poll_flag(a, E_KF, 18, 16)
    st.mark(a, 6); st.mark(a, 7, 'mid')
    KP = 32
    KD = env('KD', 5)
    for k in range(8 + KD):
        if k < 8:
            if k and k % 2 == 0: a(f'v_add_u32 v{E_KP}, 8192, v{E_KP}')
            a(f'global_load_dwordx4 {vr(KP + 4 + 4*k, 4)}, v{E_KP}, {sr(P["ws"],2)} offset:{256*(k % 2)} sc1')
        m = k - KD + 1
        if 0 <= m < 8: a(f'v_mfma_f32_16x16x32_bf16 {vr(KP,4)}, {vr(SEL + 4*(m % 2), 4)}, {vr(KP + 4 + 4*m, 4)}, {vr(KP,4) if m else 0}')
    st.mark(a, 8, 'mid')
    a(f'v_cvt_pk_bf16_f32 v{KP}, v{KP}, v{KP+1}'); a(f'v_cvt_pk_bf16_f32 v{KP+1}, v{KP+2}, v{KP+3}')
    a(f'ds_write_b64 v{E_KS}, {vr(KP,2)}')
    if env('CPRIO', 1) == 2: a('s_setprio 0')
    a.wait(lg=0); st.mark(a, 9, 'mid')
    a('s_barrier')
    st.mark(a, 7); st.mark(a, 1, 'tail'); st.mark(a, 10, 'mid')
    if env('WO1', 5) < 5:
        final.wo_addr(a, 12)
        final.wo_issue(a, S_PW, WOR[env('WO1', 5):], 12)
```

```python
from common import *

QXS, QWS = 45056, 10240
QXR, QWR = 0, 3*QXS
GATE = QWR + 2*QWS
Q_LDS = GATE + 4096

def q_producer(a, st, s_j, s_p0, s_rot, s_pw):
    SX, SW = 28, 32
    a('s_setprio 3')
    a('v_and_b32 v1, 63, v0')
    a('v_lshrrev_b32 v2, 3, v1'); a('v_mul_u32_u24 v2, 1280, v2')
    a('v_lshrrev_b32 v3, 4, v1'); a('v_and_b32 v4, 7, v1'); a('v_xor_b32 v3, v3, v4')
    a('v_lshl_add_u32 v10, v3, 4, v2')
    a(f's_and_b32 s45, s{s_pw}, 1'); a('s_lshl_b32 s45, s45, 6')
    a('v_xor_b32 v10, s45, v10'); a('v_xor_b32 v11, 64, v10')
    a(f's_mul_i32 s40, s{s_p0}, {32*1280}'); a(f's_mul_i32 s45, s{s_pw}, {88*1280}'); a('s_add_u32 s40, s40, s45')
    if env('QFAKE', 0): a('s_mov_b32 s40, 0x1000000')
    a(f's_mul_i32 s41, s{s_pw}, {11*1024}')
    a(f's_mul_i32 s42, s{s_pw}, 2560'); a(f's_add_u32 s42, s42, {QWR}')
    a(f's_mov_b32 s43, s{s_rot}'); a(f's_mov_b32 s44, s{s_rot}')
    a(f's_and_b32 s49, s{s_j}, 4'); a('s_lshl_b32 s49, s49, 9')
    a(f's_mul_i32 s46, s{s_pw}, {16*3840}'); a(f's_mul_i32 s47, s{s_j}, 160'); a('s_add_u32 s46, s46, s47')
    a('v_lshl_add_u32 v7, v1, 4, s46'); a('v_mul_u32_u24 v8, 6554, v1'); a('s_movk_i32 s47, 3840'); a('s_movk_i32 s48, -160')
    for i in range(3):
        if i: a(f'v_add_u32 v8, {64*6554}, v8'); a('v_add_u32 v7, 1024, v7')
        a('v_lshrrev_b32 v3, 16, v8'); a('v_lshrrev_b32 v5, 17, v8'); a('v_and_b32 v5, 4, v5'); a('v_xor_b32 v5, v5, v3')
        a(f'v_mad_i32_i24 v{12+i}, v3, s48, v7'); a(f'v_mad_u32_u24 v{12+i}, v5, s47, v{12+i}')
    srd_tail(a, SX, 2621440); srd_tail(a, SW, 2457600)
    a('s_cmp_ge_u32 s54, 4'); a('s_cselect_b32 s47, 10, 11'); a(f's_add_u32 s47, s47, s{s_p0}'); a(f's_mul_i32 s{SX+2}, s47, {32*1280}')
    order = []
    def X(t, lo=0, hi=11):
        if lo == 0: a('s_lshl_b32 s45, s43, 7'); a('s_add_u32 s45, s45, s40')
        for i in range(lo, hi):
            a(f's_add_u32 s55, s41, {QXR + (t % 3)*QXS + 1024*i}'); a('s_xor_b32 m0, s55, s49')
            if i: a('s_add_u32 s45, s45, 10240')
            a(f'buffer_load_dwordx4 v{10 + (i & 1)}, {sr(SX,4)}, s45 offen lds'); order.append(t)
        if hi == 11: a('s_add_u32 s43, s43, 1'); a(f's_cmp_eq_u32 s43, {NST}'); a('s_cselect_b32 s43, 0, s43')
    def Wt(t):
        a(f's_mul_i32 s48, s44, {64*3840}')
        for i in range(3):
            a(f's_add_u32 m0, s42, {(t % 2)*QWS + 1024*i}')
            if i == 2: a('s_mov_b32 exec_hi, 0')
            a(f'buffer_load_dwordx4 v{12+i}, {sr(SW,4)}, s48 offen lds'); order.append(t)
        a('s_mov_b32 exec_hi, -1')
        a('s_add_u32 s44, s44, 1'); a(f's_cmp_eq_u32 s44, {NST}'); a('s_cselect_b32 s44, 0, s44')
    a.vm = []
    a.wait(lg=0)
    st.mark(a, 1)
    Wt(0); rest_loads(a); X(0); rest_setup(a)
    srd(a, 36, P['gate'], 1280)
    a('v_lshlrev_b32 v2, 4, v1'); a(f's_lshl_b32 s47, s{s_pw}, 10')
    a(f's_add_u32 m0, s47, {GATE}')
    a('buffer_load_dwordx4 v2, s[36:39], s47 offen lds'); order.append(0)
    QL = env('QL', 11)
    if env('QW1', 1): Wt(1)
    a('s_setprio 0')
    X(1, 0, QL)
    for s in range(NST):
        last = max(i for i, o in enumerate(order) if o <= s)
        st.mark(a, s + 1, 'pre')
        a.wait(vm=len(order) - 1 - last)
        st.mark(a, s + 1, 'post')
        a('s_barrier')
        st.mark(a, s + 1, 'bar')
        if s + 1 < NST:
            if s or not env('QW1', 1): Wt(s + 1)
            if QL < 11: X(s + 1, QL, 11)
        if s + 2 < NST: X(s + 2, 0, QL)
    a.vm = []

def q_pre(a, s_j, s_pw0):
    li, lg = 2, 3
    a('v_and_b32 v1, 63, v0'); a(f'v_and_b32 v{li}, 15, v0'); a(f'v_bfe_u32 v{lg}, v0, 4, 2')
    AX = 4
    a(f'v_lshrrev_b32 v16, 1, v{li}'); a(f'v_xor_b32 v16, v16, v{lg}'); a('v_lshlrev_b32 v16, 4, v16')
    a(f'v_lshl_add_u32 v16, v{li}, 7, v16'); a(f's_lshl_b32 s40, s{s_pw0}, 12'); a(f'v_add_u32 v{AX}, s40, v16'); a(f'v_xor_b32 v{AX+1}, 64, v{AX}')
    for s in (1, 2):
        for p in range(2): a(f'v_add_u32 v{AX + 2*s + p}, {s*QXS}, v{AX + p}')
    AP, AS = 10, 12
    a(f'v_lshrrev_b32 v16, 2, v{li}'); a(f'v_lshl_add_u32 v16, v{lg}, 3, v16'); a('v_mul_u32_u24 v16, 160, v16')
    a(f'v_and_b32 v17, 1, v{lg}'); a('v_mul_u32_u24 v17, 640, v17')
    a(f'v_and_b32 v18, 3, v{li}'); a('v_mul_u32_u24 v19, 40, v18'); a('v_lshlrev_b32 v18, 3, v18')
    a(f'v_add_u32 v16, {QWR}, v16'); a('v_add_u32 v20, v16, v17'); a('v_sub_u32 v21, v16, v17'); a('v_add_u32 v21, 640, v21')
    for h in range(2):
        a(f'v_add_u32 v{AP+h}, v{20+h}, v18'); a(f'v_add3_u32 v{AS+h}, v{20+h}, v19, 32')
    a('v_lshlrev_b32 v14, 2, v1')

def q_consumer(a, st, s_j, s_pg, npairs):
    NU = 2*npairs
    AX, AP, AS = 4, 10, 12
    QA = 32
    XF = 152
    WF = 168
    def rdx(n):
        ks, u = divmod(n, NU); s = ks >> 1
        return f'ds_read_b128 {vr(XF + 4*(n % 4), 4)}, v{AX + 2*(s % 3) + (ks & 1)} offset:{2048*u}'
    def rdw(ks):
        out = []
        for T in range(5):
            base, o = (AP, 40*T) if T < 4 else (AS, 0)
            o += (ks & 1)*32*160 + ((ks >> 1) % 2)*QWS
            r = WF + 20*(ks & 1) + 4*T
            out += [f'ds_read_b64_tr_b16 {vr(r,2)}, v{base} offset:{o}', f'ds_read_b64_tr_b16 {vr(r+2,2)}, v{base+1} offset:{o}']
        return out
    GU = 3 if npairs == 2 else 0
    GA, GX, GW, GAD = 112, 124, 136, 20
    if GU:
        a('s_lshl_b32 s42, s51, 12'); a(f'v_subrev_u32 v24, s42, v{AX}')
        for k in range(GU):
            a(f's_add_u32 s42, s41, {8*k}'); a('s_min_u32 s43, s42, 21'); a(f's_lshr_b32 s45, s{s_j}, 2'); a('s_xor_b32 s43, s43, s45'); a('s_lshl_b32 s43, s43, 11'); a(f'v_add_u32 v{GAD+k}, s43, v24')
        a(f'v_lshlrev_b32 v23, 4, v3'); a(f'v_add_u32 v23, {GATE}, v23'); a(f's_mov_b32 s44, s{S_ROT}')
    st.mark(a, 1)
    a('s_barrier')
    st.mark(a, 2)
    w0 = rdw(0)
    a(rdx(0))
    for s in w0: a(s)
    a(rdx(1))
    nx = 2
    NK = 2*NST
    for ks in range(NK - 2):
        fills = {u: [] for u in range(NU)}
        last = (ks + 1)*NU
        if ks & 1 == 0:
            w = rdw(ks + 1)
            for u in range(NU):
                fills[u].append(rdx(nx)); nx += 1
                k = -(-10 // (NU - 1))
                fills[u] += w[:k]; w = w[k:]
        else:
            for u in range(NU - 2):
                while nx < last and nx <= ks*NU + u + (2 if u < NU - 4 else 3): fills[u].append(rdx(nx)); nx += 1
            assert nx == last
            if ks + 1 < NK:
                w = rdw(ks + 1)
                fills[NU - 2] = ['BAR', rdx(nx)] + w[:5]; fills[NU - 1] = w[5:] + [rdx(nx + 1)]; nx += 2
        if ks == 3 and npairs == 3:
            L = a.newlabel('L_ann0')
            a(f's_cmp_lg_u32 s{S_WAVE}, 0'); a(f's_cbranch_scc1 {L}')
            announce(a, 16)
            a.label(L); a.vm = []
        gm = []
        if GU:
            sl = (ks >> 1) % 3
            pre = ['s_lshl_b32 s45, s44, 7', 'v_add_u32 v26, s45, v23'] if ks & 1 == 0 else ['s_add_u32 s44, s44, 1', f's_cmp_eq_u32 s44, {NST}', 's_cselect_b32 s44, 0, s44']
            pre.append(f'ds_read_b128 {vr(GW,4)}, v26 offset:{64*(ks & 1)}')
            for k in range(GU):
                pre.append(f'ds_read_b128 {vr(GX + 4*k, 4)}, v{GAD+k}')
                pre.append(f'v_xor_b32 v{GAD+k}, 64, v{GAD+k}')
                if ks & 1: pre.append(f'v_add_u32 v{GAD+k}, {QXS if sl < 2 else -2*QXS}, v{GAD+k}')
                gm.append(f'v_mfma_f32_16x16x32_bf16 {vr(GA + 4*k, 4)}, {vr(GW,4)}, {vr(GX + 4*k, 4)}, {vr(GA + 4*k, 4) if ks else 0}')
            fills[0] = fills[0] + pre
        if ks == NK - 5 and env('NOANN', 0) < 2: fills[1].append(f'global_load_dword v16, v14, {sr(P["dbg"],2)} sc1')
        for u in range(NU):
            x = XF + 4*((ks*NU + u) % 4)
            f = fills[u]
            for T in range(5):
                d = QA + 20*u + 4*T
                a(f'v_mfma_f32_16x16x32_bf16 {vr(d,4)}, {vr(WF + 20*(ks & 1) + 4*T, 4)}, {vr(x,4)}, {vr(d,4) if ks else 0}')
                k = -(-len(f) // (5 - T))
                for s in f[:k]:
                    if s == 'BAR': a.wait(lg=0); a('s_barrier')
                    else: a(s)
                f = f[k:]
            if u == 1:
                for s in gm: a(s)
        if ks == NK - 4:
            a.wait(vm=0)
            check_ann(a, 14, 16, preloaded=True)
            a(f's_lshl_b32 s40, s{s_j}, 6'); a(f's_add_u32 s40, s40, s{s_pg}'); a('s_mul_i32 s40, s40, 5120'); a(f's_add_u32 s40, s40, {WS_Q + 2048}')
            a('v_lshl_add_u32 v18, v1, 4, s40'); a('v_mov_b32 v19, 1')
    def store(ins):
        G, D = a.newlabel('L_g'), a.newlabel('L_d')
        a(f's_cbranch_scc1 {G}'); a(ins + ' ' + os.environ.get('LFL', '')); a(f's_branch {D}'); a.label(G); a.raw('    s_nop 1'); a.raw(f'    {ins} sc1'); a.label(D)
    steps = [(NK - 2 + k, 2*p + u) for p in range(npairs) for k in range(2) for u in range(2)]
    base = (NK - 2)*NU
    def rdx2(i):
        ks, u = steps[i]
        return f'ds_read_b128 {vr(XF + 4*((base + i) % 4), 4)}, v{AX + 2*((ks >> 1) % 3) + (ks & 1)} offset:{2048*u}'
    OB = 208
    def outs(p):
        o = [] if p == 0 else ['v_add_u32 v18, 5120, v18']
        for T in range(5):
            r = OB + 4*((5*p + T) % 4)
            for u in range(2):
                d = QA + 20*(2*p + u) + 4*T
                o += [f'v_cvt_pk_bf16_f32 v{r + 2*u + q}, v{d + 2*q}, v{d + 2*q + 1}' for q in range(2)]
            o.append(('st', f'global_store_dwordx4 v18, {vr(r,4)}, {sr(P["ws"],2)} offset:{1024*T - 2048}'))
        return o
    def emit(x):
        if isinstance(x, tuple): store(x[1])
        else: a(x)
    w = rdw(NK - 1); pend = []
    gpre = []; gm = []
    if GU:
        a('s_lshl_b32 s45, s44, 7'); a('v_add_u32 v26, s45, v23')
        for k2 in range(2):
            gpre.append([f'ds_read_b128 {vr(GW,4)}, v26 offset:{64*k2}'] + [x for k in range(GU) for x in (f'ds_read_b128 {vr(GX + 4*k, 4)}, v{GAD+k}', f'v_xor_b32 v{GAD+k}, 64, v{GAD+k}')])
        gm = [f'v_mfma_f32_16x16x32_bf16 {vr(GA + 4*k, 4)}, {vr(GW,4)}, {vr(GX + 4*k, 4)}, {vr(GA + 4*k, 4)}' for k in range(GU)]
    a(f's_cmp_eq_u32 s{S_MODE}, 0')
    for i, (ks, u) in enumerate(steps):
        f = [rdx2(i + 2)] if i + 2 < len(steps) else []
        if i < 2: f += w[5*i:5*i + 5]
        if GU and i in (2, 4): f += gpre[i // 2 - 1]
        if i % 4 == 0 and i: pend = outs(i // 4 - 1)
        x = XF + 4*((base + i) % 4)
        for T in range(5):
            d = QA + 20*u + 4*T
            a(f'v_mfma_f32_16x16x32_bf16 {vr(d,4)}, {vr(WF + 20*(ks & 1) + 4*T, 4)}, {vr(x,4)}, {vr(d,4)}')
            k = -(-len(f) // (5 - T))
            for s in f[:k]: a(s)
            f = f[k:]
            if (i % 4 or T >= 2):
                for _ in range(2 if (5*i + T) % 2 else 1):
                    if pend: emit(pend.pop(0))
        if GU and i in (3, 5):
            for s in gm: a(s)
        if i % 4 == 3: assert not pend
    st.mark(a, 3)
    for x in outs(npairs - 1): emit(x)
    if GU:
        a('v_cmp_eq_u32 vcc, 1, v3'); a(f'v_cndmask_b32 v{GA}, v{GA}, v{GA+4}, vcc')
        a('v_cmp_eq_u32 vcc, 2, v3'); a(f'v_cndmask_b32 v{GA}, v{GA}, v{GA+8}, vcc')
        a(f'v_mul_f32 v{GA}, 0xbfb8aa3b, v{GA}'); a(f'v_exp_f32 v{GA}, v{GA}'); a(f'v_add_f32 v{GA}, 1.0, v{GA}')
        a('s_mov_b64 exec, s[46:47]')
        a(f'global_store_dword v25, v{GA}, {sr(P["ws"],2)} sc1')
    a('s_mov_b64 exec, 1')
    a.wait(vm=0)
    store(f'global_store_dword v15, v19, {sr(P["ws"],2)}')
    a('s_mov_b64 exec, -1')
    st.mark(a, 5)

def q_role(a, st, tail):
    s_j, s_wave = S_J, S_WAVE
    a(f's_sub_u32 s54, s{S_IDX}, 16')
    a('s_mul_i32 s50, s54, 11'); a('s_cmp_eq_u32 s54, 5'); a('s_subb_u32 s50, s50, 0')
    Lc, L2, L3 = a.newlabel('L_qcons'), a.newlabel('L_q2'), a.newlabel('L_q3')
    a(f's_cmp_lt_u32 s{s_wave}, 4'); a(f's_cbranch_scc1 {Lc}')
    lg0 = list(a.lg)
    q_producer(a, st, s_j, 50, S_ROT, S_PW)
    a(f's_branch {tail}')
    a.label(Lc); a.forget(); a.lg = lg0
    rest_loads(a); rest_setup(a, True)
    a(f's_mul_i32 s51, s{s_wave}, 3')
    a('s_cmp_ge_u32 s54, 4'); a('s_cselect_b32 s52, 2, 3')
    a(f's_cmp_gt_u32 s{s_wave}, s52'); a('s_subb_u32 s51, s51, 0')
    a('s_add_u32 s53, s50, s51')
    q_pre(a, s_j, 51)
    a(f's_lshl_b32 s40, s{s_j}, 9'); a('s_lshl_b32 s41, s54, 4'); a('s_add_u32 s40, s40, s41'); a(f's_add_u32 s40, s40, {WS_FL + 256}')
    a('v_add_u32 v16, s40, v14'); a('v_mov_b32 v17, 0')
    a(f's_lshl_b32 s41, s{s_wave}, 2'); a('s_add_u32 s40, s40, s41'); a('v_mov_b32 v15, s40')
    a('s_lshl_b32 s40, s50, 1'); a(f's_sub_u32 s41, s{s_j}, s40'); a('s_and_b32 s41, s41, 7')
    a('v_lshl_add_u32 v25, v3, 3, s41'); a('s_cmp_ge_u32 s54, 4'); a('s_cselect_b32 s42, 20, 22'); a('v_cmp_gt_u32 s[46:47], s42, v25')
    a('v_add_u32 v25, s40, v25'); a('v_lshlrev_b32 v25, 6, v25'); a('v_lshl_add_u32 v25, v2, 2, v25'); a(f'v_add_u32 v25, {WS_G}, v25')
    a.wait(lg=0)
    a(f's_cmp_lg_u32 s{s_wave}, 0'); a(f's_cbranch_scc1 {L3}')
    a('s_mov_b64 exec, 15')
    a(f'global_store_dword v16, v17, {sr(P["ws"],2)} sc1')
    a('s_mov_b64 exec, s[46:47]')
    a(f'global_store_dword v25, v17, {sr(P["ws"],2)} sc1')
    a('s_mov_b64 exec, -1')
    a.label(L3); a.vm = []
    a(f's_cmp_ge_u32 s{s_wave}, s52'); a(f's_cbranch_scc1 {L2}')
    q_consumer(a, st, s_j, 53, 3)
    a(f's_branch {tail}')
    a.label(L2); a.forget()
    q_consumer(a, st, s_j, 53, 2)
    a(f's_branch {tail}')
```

```python
import sys
from common import *
import conv, kv, qrole, final

def build(st):
    a = Asm()
    a.label('L_codebeg')
    st.mark(a, 0)
    a('s_load_dwordx2 s[28:29], s[0:1], 0'); a('s_load_dwordx2 s[32:33], s[0:1], 64')
    a(f'v_readfirstlane_b32 s{S_WAVE}, v0')
    if env('PF_CODE', 1):
        a('s_getpc_b64 s[74:75]')
        a.label('L_pc')
        a('s_lshr_b32 s73, s2, 3'); a('s_mul_i32 s73, s73, 2560'); a('v_lshrrev_b32 v2, 4, v0'); a('v_min_u32 v2, 19, v2'); a('v_lshl_add_u32 v2, v2, 7, s73')
        a('v_min_u32 v2, L_codeend - L_pc - 4, v2')
        a('global_load_dword v255, v2, s[74:75]'); a.vm = []
    def mod10(r):
        a(f's_mul_i32 s40, s{r}, 26'); a('s_lshr_b32 s40, s40, 8'); a('s_mul_i32 s40, s40, 10'); a(f's_sub_u32 s{r}, s{r}, s40')
    r = S_ROT
    lg0 = list(a.lg)
    FIRST = os.environ.get('FIRST', 'q')
    def page():
        if env('PAGE', 1): a.raw('.p2align 12')
    def enter(L):
        if L != 'L_' + FIRST: page()
        a.label(L); a.forget(); a.lg = list(lg0)
    if FIRST != 'conv': a('s_cmpk_ge_u32 s2, 176'); a('s_cbranch_scc1 L_conv')
    if FIRST != 'kv':
        a('s_cmpk_ge_u32 s2, 128'); a('s_cbranch_scc1 L_nkv')
        a(f's_cmpk_lt_u32 s{S_WAVE}, 256'); a('s_cbranch_scc1 L_kvc'); a('s_branch L_kv')
        a.label('L_nkv')
        if FIRST == 'conv': a('s_cmpk_lt_u32 s2, 176'); a('s_cbranch_scc1 L_q')
    else:
        a('s_cmpk_ge_u32 s2, 128'); a('s_cbranch_scc1 L_q')
        a(f's_cmpk_lt_u32 s{S_WAVE}, 256'); a('s_cbranch_scc1 L_kvc')
    def role_kv():
        enter('L_kv')
        ids(a)
        a(f's_lshr_b32 s{r}, s{S_IDX}, 1'); a(f's_add_u32 s{r}, s{r}, s{S_J}'); a(f's_and_b32 s{r}, s{r}, 7'); a(f's_mul_i32 s{r}, s{r}, 5'); a(f's_lshr_b32 s{r}, s{r}, 2')
        kv.kv_producer(a, st)
        a.label('L_floader'); a.forget()
        final.f_loader(a, st)
        st.dump(a, 20, 2, S_WAVE, n=11)
        a.label('L_end'); a('s_endpgm')
        a.label('L_kvc'); a.forget(); a.lg = list(lg0)
        rest_loads(a); ids(a); rest_setup(a)
        kv.kv_consumer(a, st)
        a.label('L_fcompute'); a.forget()
        final.f_compute(a, st)
        st.dump(a, 20, 2, S_WAVE, n=11)
        a('s_endpgm')
    def role_q():
        enter('L_q')
        ids(a)
        a(f's_mul_i32 s{r}, s{S_IDX}, 11'); a(f's_sub_u32 s{r}, s{r}, {176 - env("QOFF", 5)}'); a(f's_lshr_b32 s{r}, s{r}, 3')
        a(f's_add_u32 s{r}, s{r}, s{S_J}'); a(f's_and_b32 s{r}, s{r}, 7'); a(f's_mul_i32 s{r}, s{r}, 5'); a(f's_lshr_b32 s{r}, s{r}, 2')
        qrole.q_role(a, st, 'L_tail')
        a.label('L_tail'); a.forget()
        a('s_barrier')
        st.mark(a, 6)
        a(f's_cmp_lt_u32 s{S_WAVE}, 4'); a('s_cbranch_scc1 L_fcompute')
        final.wo_addr(a); final.wo_issue(a, S_PW, range(5))
        a.wait(vm=0); a('s_barrier')
        st.mark(a, 7)
        a('s_branch L_floader')
    def role_conv():
        enter('L_conv')
        a('s_cmpk_ge_u32 s2, 256'); a('s_cbranch_scc1 L_end')
        rest_loads(a); ids(a)
        a(f's_sub_u32 s{r}, s{S_IDX}, 22'); a(f's_lshl_b32 s54, s{r}, 3'); a(f's_add_u32 s54, s54, s{S_J}')
        def rot_setup():
            a(f's_add_u32 s{r}, s{r}, {10 - env("S0", 2)}'); mod10(r)
            a(f's_lshl_b32 s{r}, s{r}, 2'); a(f's_add_u32 s{r}, s{r}, 3'); a(f's_mul_i32 s{r}, s{r}, 52'); a(f's_lshr_b32 s{r}, s{r}, 8')
            a(f's_sub_u32 s{r}, s{r}, s{S_J}')
        conv.conv_role(a, st, 54, r, S_WAVE, rot_setup)
        a(f's_cmp_lt_u32 s{S_WAVE}, 4'); a('s_cbranch_scc1 L_fcompute')
        a('s_barrier')
        st.mark(a, 6); st.mark(a, 7)
        a(f's_cmp_lg_u32 s{S_WAVE}, 7'); a('s_cbranch_scc1 L_floader')
        a('v_mov_b32 v251, 1'); a('s_mov_b64 exec, 0xff')
        a(f'global_atomic_add v250, v251, {sr(P["ws"],2)} sc1')
        a('s_mov_b64 exec, -1')
        a('s_branch L_floader')
    roles = dict(kv=role_kv, q=role_q, conv=role_conv)
    roles.pop(FIRST)()
    for f in roles.values(): f()
    a.label('L_codeend')
    for f in a.deferred: f(a)
    return a

if __name__ == '__main__':
    stamps = len(sys.argv) > 2 and sys.argv[2] == '1'
    a = build(Stamps(stamps))
    if env('ALIGN', 1): print('align', align8(a))
    n = NAME + '_kernel'
    ref = open('cdna_kernels/' + NAME + '.s.ref').read()
    head = ref[:ref.index('; @launch')]
    if len(sys.argv) > 3: s = header([(n, 256, 512, 163840)])
    else: s = head + '; @launch grid=(256,1,1) block=(512,1,1) lds=163840\n.amdgcn_target "amdgcn-amd-amdhsa--gfx950"\n.text\n'
    s += ('.p2align 12\n' if env('PAGE', 1) else '') + kbegin(n) + a.text() + kdesc(n, 256)
    open(sys.argv[1], 'w').write(s)
    print('nops', a.nops, 'instructions', len(a.ins))
```
